```python
import torch

def _softmax(x, axis=-1):
    return torch.softmax(x, dim=axis)
def _gelu(x):
    return torch.nn.functional.gelu(x, approximate="tanh")
def _silu(x):
    return torch.nn.functional.silu(x)
def _sigmoid(x):
    return torch.sigmoid(x)
def _layernorm(x, axis=-1, eps=1e-5):
    m = x.mean(dim=axis, keepdim=True)
    v = x.var(dim=axis, keepdim=True, unbiased=False)
    return (x - m) / torch.sqrt(v + eps)
def _scatter_add(tgt, idx, src, axis=0):
    return tgt.clone().index_add_(axis, idx, src)
def _segment_sum(src, seg, n):
    out = torch.zeros((n,) + src.shape[1:], dtype=src.dtype)
    return out.index_add_(0, seg, src)
def _pad(x, pw):
    flat = tuple(v for pair in reversed(pw) for v in pair)
    return torch.nn.functional.pad(x, flat)

kernel_name = 'standalone__memory_aug_memorizing_tr__prompt'

def setup_inputs():

    _w = (lambda a: (lambda t: t.to(torch.bfloat16) if t.is_floating_point() else t)(torch.as_tensor(a)))
    B, H, S, D = 1, 32, 2048, 192
    M, K = 2048, 2
    return {
        "q": _w((lambda *s: torch.randn(*s, dtype=torch.bfloat16) * 0.8)(B, H, S, D)),
        "k": _w((lambda *s: torch.randn(*s, dtype=torch.bfloat16) * 0.8)(B, H, S, D)),
        "v": _w((lambda *s: torch.randn(*s, dtype=torch.bfloat16) * 0.05)(B, H, S, D)),
        "mem_k": _w((lambda *s: torch.randn(*s, dtype=torch.bfloat16) * 0.8)(B, H, M, D)),
        "mem_v": _w((lambda *s: torch.randn(*s, dtype=torch.bfloat16) * 0.05)(B, H, M, D)),
        "idx": _w(torch.randint(0, M, (B, H, S, K)).to(torch.int64)),
        "gate_bias": _w((lambda *s: torch.randn(*s, dtype=torch.bfloat16) * 0.2)(H)),
    }

def reference(q, k, v, mem_k, mem_v, idx, gate_bias):
    B, H, S, D = q.shape
    K = idx.shape[-1]
    scale = D ** -0.5
    sl = torch.einsum("bhqd,bhkd->bhqk", q, k) * scale
    cm = torch.tril(torch.ones((S, S), dtype=q.dtype))
    sl = torch.where(cm[None, None] > 0, sl, -1e9)
    pl = _softmax(sl, axis=-1)
    ol = torch.einsum("bhqk,bhkd->bhqd", pl, v)
    idx_e = (lambda x, n, axis: torch.repeat_interleave(x, n, dim=axis))(idx.reshape(B, H, S * K)[..., None], D, axis=-1)
    mk = (lambda x, i, axis: torch.take_along_dim(x, i, dim=axis))(mem_k, idx_e, axis=2).reshape(B, H, S, K, D)
    mv = (lambda x, i, axis: torch.take_along_dim(x, i, dim=axis))(mem_v, idx_e, axis=2).reshape(B, H, S, K, D)
    sm = torch.einsum("bhqd,bhqkd->bhqk", q, mk) * scale
    pm = _softmax(sm, axis=-1)
    om = torch.einsum("bhqk,bhqkd->bhqd", pm, mv)
    g = _sigmoid(gate_bias)[None, :, None, None]
    return g * om + (1 - g) * ol
```

```python
import re

REG_RE = re.compile(r'\b([vas])\[(\d+):(\d+)\]|\b([vas])(\d+)\b|\b(vcc|exec|m0|scc)\b')

def regs_of(tok):
    out = set()
    for m in REG_RE.finditer(tok):
        if m.group(1):
            for r in range(int(m.group(2)), int(m.group(3)) + 1): out.add(m.group(1) + str(r))
        elif m.group(4): out.add(m.group(4) + m.group(5))
        else: out.add(m.group(6))
    return out

def split_ops(s):
    parts, depth, cur = [], 0, ""
    for ch in s:
        if ch == '[': depth += 1
        if ch == ']': depth -= 1
        if ch == ',' and depth == 0: parts.append(cur.strip()); cur = ""
        else: cur += ch
    if cur.strip(): parts.append(cur.strip())
    return parts

TRANS = ("v_exp_f32", "v_log_f32", "v_rcp_f32", "v_rsq_f32", "v_sqrt_f32")
SCC_W = ("s_add_u32", "s_sub_u32", "s_addc_u32", "s_subb_u32", "s_and_b32", "s_and_b64", "s_or_b32", "s_or_b64", "s_xor_b32",
         "s_lshl_b32", "s_lshr_b32", "s_bfe_u32", "s_add_i32", "s_sub_i32", "s_andn2_b64", "s_min_u32", "s_max_u32", "s_lshl_b64",
         "s_and_saveexec_b64", "s_andn2_b32", "s_xor_b64", "s_lshr_b64", "s_addk_i32")

class Op:
    def __init__(self, text, at=0.0, kind=None, tag=None, meta=None, after=None, wait=None, prio=0):
        self.text = text; self.at = at; self.tag = tag; self.meta = meta or {}
        self.after = list(after or []); self.wait = wait; self.prio = prio
        self.parse(kind)
    def parse(self, kind):
        t = self.text.strip()
        self.rd, self.wr = set(), set()
        if t.endswith(":"): self.kind = "L"; self.mn = ""; return
        if t.startswith(";") or t.startswith("."): self.kind = "C"; self.mn = ""; return
        mn, _, rest = t.partition(" ")
        self.mn = mn
        ops = split_ops(rest)
        R = [regs_of(o) for o in ops]
        k = None
        if mn.startswith("v_mfma"):
            k = "M"; self.wr = R[0]; self.rd = R[1] | R[2] | R[3]
            self.A, self.B, self.C, self.D = R[1], R[2], R[3], R[0]
        elif mn.startswith("v_permlane") and "swap" in mn:
            k = "V"; self.wr = R[0] | R[1]; self.rd = R[0] | R[1]
        elif mn.startswith("v_"):
            k = "X" if mn in TRANS else ("P" if mn.startswith("v_pk_") or mn.startswith("v_dot") else "V")
            self.wr = set(R[0]); self.rd = set().union(*R[1:]) if len(R) > 1 else set()
            if mn in ("v_writelane_b32", "v_fmac_f32"): self.rd |= R[0]
            if mn.startswith("v_cmpx"): self.wr.add("exec")
            if "_co_" in mn: self.wr.add("vcc")
        elif mn.startswith("ds_read"):
            k = "R"; self.wr = R[0]; self.rd = R[1]
        elif mn.startswith("ds_write"):
            k = "H"; self.rd = set().union(*R)
        elif mn.startswith("buffer_load") or mn.startswith("global_load"):
            if re.search(r'\blds\b', rest):
                k = "D"; self.rd = set().union(*R) | {"m0"}
            else:
                k = "G"; self.wr = R[0]; self.rd = set().union(*R[1:])
        elif mn.startswith("buffer_store") or mn.startswith("global_store"):
            k = "T"; self.rd = set().union(*R)
            self.data = R[0] if mn.startswith("buffer") else R[1]
        elif mn == "s_waitcnt": k = "W"
        elif mn == "s_barrier": k = "Z"
        elif mn == "s_nop": k = "N"
        elif mn.startswith("s_cbranch") or mn in ("s_branch", "s_setpc_b64", "s_call_b64", "s_endpgm"):
            k = "B"
            if "scc" in mn: self.rd.add("scc")
            if "vcc" in mn: self.rd.add("vcc")
            if mn == "s_setpc_b64": self.rd |= R[0]
            if mn == "s_call_b64": self.wr |= R[0]
        elif mn.startswith("s_cmp") or mn.startswith("s_bitcmp"):
            k = "S"; self.rd = set().union(*R); self.wr = {"scc"}
        elif mn.startswith("s_load") or mn in ("s_memtime", "s_memrealtime"):
            k = "K"; self.wr = R[0]; self.rd = set().union(*R[1:]) if len(R) > 1 else set()
        elif mn.startswith("s_"):
            k = "S"
            if R:
                self.wr = set(R[0]); self.rd = set().union(*R[1:]) if len(R) > 1 else set()
            if mn in SCC_W: self.wr.add("scc")
            if mn.startswith("s_cselect") or mn in ("s_addc_u32", "s_subb_u32"): self.rd.add("scc")
            if mn == "s_addk_i32": self.rd |= R[0]
            if "saveexec" in mn: self.wr.add("exec"); self.rd.add("exec")
        else:
            raise ValueError("unknown instr " + t)
        if k in "MVXPRHDGT": self.rd.add("exec")
        self.kind = kind or k
    def __repr__(self): return f"<{self.kind} {self.text} @{self.at}>"

def Wait(tags, at, **kw):
    o = Op("s_waitcnt lgkmcnt(0)", at=at, **kw); o.wait = set(tags if isinstance(tags, (list, set, tuple)) else [tags]); return o

def Bar(name, at, **kw):
    o = Op("s_barrier", at=at, **kw); o.name = name; o.vm = None; return o

COST = dict(M=1, V=1, X=2, P=1, R=2, H=4, D=3, G=3, T=3, S=1, W=1, Z=3, B=2, N=1, K=1)
MEMK = "RHDGT"

def lat(p, c, kinddep):
    if kinddep == "order": return COST[p.kind]
    if kinddep == "war": return COST[p.kind] + (3 if (p.kind == "M" and c.kind in "VXP" and (c.wr & p.C)) else 0)
    if p.kind == "M":
        if c.kind == "M" and c.C == p.D and not ((c.A | c.B) & p.D): return 4
        return 10
    if p.kind == "X": return 5
    if p.kind in "VP":
        if c.kind == "M": return 3
        if c.mn.startswith("v_permlane") or c.mn.startswith("v_read"): return 3
        if any(r[0] == 's' or r == 'vcc' for r in p.wr & c.rd): return 3 if c.kind not in "DGT" else 6
        return 2
    if p.kind == "S": return 2 if c.kind in "DGT" else 1
    if p.kind == "R": return 30
    if p.kind == "G": return 150
    return COST[p.kind]

def WaitVM(tag, at, **kw):
    o = Op("s_waitcnt vmcnt(0)", at=at, **kw); o.vmtag = tag; o.vm = None; return o

def schedule(ops, verbose=False, name="", order="at"):
    if order == "at": ops = sorted(ops, key=lambda o: o.at)
    else: ops = list(ops)
    n = len(ops)
    idx = {id(o): i for i, o in enumerate(ops)}
    deps = [dict() for _ in range(n)]
    lastw, readers = {}, {}
    lastfence = None; mem_since = []
    lastlds = None; lastvm = None; lastB = None; since_B = []; ldsops = []; lastH = None
    def add(i, j, l):
        if j is not None and j != i: deps[i][j] = max(deps[i].get(j, 0), l)
    for i, o in enumerate(ops):
        for r in o.rd:
            if r in lastw: add(i, lastw[r], lat(ops[lastw[r]], o, "raw"))
        for r in o.wr:
            if r in lastw: add(i, lastw[r], lat(ops[lastw[r]], o, "raw"))
            for j in readers.get(r, []): add(i, j, lat(ops[j], o, "war"))
        for a in o.after:
            add(i, idx[id(a)], COST[a.kind])
        if o.kind in MEMK:
            add(i, lastfence, 3); mem_since.append(i)
            if order == "at":
                if o.kind in "RH": add(i, lastlds, 1); lastlds = i
                else: add(i, lastvm, 1); lastvm = i
            else:
                if o.kind == "H":
                    for j in ldsops: add(i, j, 1)
                    lastH = i
                if o.kind == "R": add(i, lastH, 1)
                if o.kind in "RH": ldsops.append(i)
            if o.meta.get("needvm"):
                for j in range(i):
                    if getattr(ops[j], "vmtag", None) == o.meta["needvm"]: add(i, j, 1)
        if hasattr(o, "vmtag"):
            for j in range(i):
                if ops[j].tag == o.vmtag: add(i, j, 3)
        if o.kind == "Z":
            for j in mem_since: add(i, j, 30 if ops[j].kind in "RH" else 3)
            add(i, lastfence, 3); lastfence = i; mem_since = []
        if o.kind == "W" and o.wait:
            for j in range(i):
                if ops[j].tag in o.wait: add(i, j, 30)
        if o.kind == "M":
            pass
        if o.kind == "B":
            if o.meta.get("fence", True):
                for j in since_B: add(i, j, COST[ops[j].kind])
            lastB = i; since_B = []
        else:
            if lastB is not None and ops[lastB].meta.get("fence", True): add(i, lastB, 2)
            since_B.append(i)
        for r in o.rd: readers.setdefault(r, []).append(i)
        for r in o.wr: lastw[r] = i; readers[r] = []
    for j, p in enumerate(ops):
        if p.kind == "R":
            cov = None
            for k in range(j + 1, n):
                q = ops[k]
                if q.kind == "Z" or (q.kind == "W" and q.wait and p.tag in q.wait): cov = k; break
            if cov is not None:
                for k in range(cov + 1, n):
                    if j in deps[k] and (ops[k].rd | ops[k].wr) & p.wr: add(k, cov, COST[ops[cov].kind])
    prevM = None
    for i, o in enumerate(ops):
        if o.kind == "M":
            add(i, prevM, 4); prevM = i
    done = [None] * n
    out = []; now = 0; lastM = -100; lastk = None
    remaining = list(range(n))
    def ready_time(i):
        t = ops[i].at * 4
        for j, l in deps[i].items():
            if done[j] is None: return None
            t = max(t, done[j] + l)
        return t
    while remaining:
        rt = {i: ready_time(i) for i in remaining}
        nextM = next((i for i in remaining if ops[i].kind == "M"), None)
        mdue = None
        if nextM is not None and rt[nextM] is not None: mdue = max(rt[nextM], lastM + 4)
        pick = None
        if mdue is not None and mdue <= now: pick = nextM; start = now
        else:
            best = None
            for i in remaining:
                o = ops[i]
                if o.kind == "M" or rt[i] is None or rt[i] > now: continue
                st = now
                if o.kind in "VX" and st == lastM + 1: st += 1
                if o.kind == "P" and st < lastM + 4: st = lastM + 4
                c = COST[o.kind] + (1 if (o.kind in MEMK and lastk in ("V", "X", "P") and out and done[idx[id(out[-1])]] + COST[lastk] >= now) else 0)
                late = now - o.at * 4
                if mdue is not None and st + c > mdue and late < o.meta.get("slack", 40): continue
                key = (st - now, -o.prio, 0 if (now == lastM + 1 and o.kind in "ZBDGTRH") else 1, o.at)
                if best is None or key < best[0]: best = (key, i, st, c)
            if best is not None:
                _, pick, start, cost = best
        if pick is None:
            now += 1;
            assert now < 100000, f"schedule stuck in {name}: {[ops[i] for i in remaining[:5]]}"
            continue
        o = ops[pick]
        if o.kind == "M": cost = 1; lastM = start
        done[pick] = start; o.slot = start
        out.append(o); remaining.remove(pick); now = start + cost; lastk = o.kind
    total = max(now, lastM + 4)
    if verbose:
        s = ""
        for o in out: s += ("|" if o.kind == "M" else o.kind)
        print(f"[{name}] slots {total} ({total/4:.1f} gaps): {s}")
    resolve_waits(out)
    return out, total

def resolve_waits(seq):
    for i, o in enumerate(seq):
        if o.kind == "W" and o.wait:
            last = max((j for j in range(i) if seq[j].tag in o.wait and seq[j].kind in "RH"), default=None)
            assert last is not None, o
            cnt = sum(1 for j in range(last + 1, i) if seq[j].kind in "RH")
            o.text = f"s_waitcnt lgkmcnt({min(cnt, 15)})"

def parse_wait(o):
    vm = lg = None
    m = re.search(r'vmcnt\((\d+)\)', o.text); vm = int(m.group(1)) if m else None
    m = re.search(r'lgkmcnt\((\d+)\)', o.text); lg = int(m.group(1)) if m else None
    return vm, lg

def auto_waits(seq):
    out = []; lq = []; vq = []
    for o in seq:
        touch = o.rd | o.wr
        need_l = max((k for k, p in enumerate(lq) if p.kind in "RK" and p.wr & touch), default=None)
        need_v = max((k for k, p in enumerate(vq) if p.kind == "G" and p.wr & touch), default=None)
        if need_l is not None or need_v is not None:
            t = "s_waitcnt"
            if need_v is not None:
                c = min(len(vq) - 1 - need_v, 63); t += f" vmcnt({c})"; vq = vq[len(vq) - c:] if c else []
            if need_l is not None:
                c = min(len(lq) - 1 - need_l, 15)
                if any(p.kind == "K" for p in lq): c = 0
                t += f" lgkmcnt({c})"; lq = lq[len(lq) - c:] if c else []
            out.append(Op(t))
        if o.kind == "W" and not hasattr(o, "vmtag"):
            vm, lg = parse_wait(o)
            if vm is not None: vq = vq[len(vq) - vm:] if vm and len(vq) > vm else ([] if vm == 0 else vq)
            if lg is not None: lq = lq[len(lq) - lg:] if lg and len(lq) > lg else ([] if lg == 0 else lq)
        if o.kind == "Z" and hasattr(o, "vm"): lq = []
        if o.kind in "RHK": lq.append(o)
        if o.kind in "DGT": vq.append(o)
        out.append(o)
    return out

def states(o):
    if o.kind in "LC": return 0
    if o.kind == "N": return int(o.text.split()[1]) + 1
    if o.kind == "Z" and hasattr(o, "vm"): return 2
    return 1

def hazard_need(p, c):
    need = 0
    pv = p.kind in "VXP"; cv = c.kind in "VXP"
    if p.kind == "M":
        if c.kind == "M":
            if (c.A | c.B) & p.D: need = max(need, 8)
            if c.C & p.D and c.C != p.D: need = max(need, 6)
            if c.D & p.D and not (c.C & p.D): need = max(need, 6)
        elif cv or c.kind in MEMK:
            if (c.rd | c.wr) & p.D: need = max(need, 8)
            if cv and c.wr & p.C: need = max(need, 3)
    if pv:
        vw = {r for r in p.wr if r[0] in "va" and r != "vcc"}
        sw = {r for r in p.wr if r[0] == "s" or r == "vcc"}
        if c.kind == "M" and c.rd & vw: need = max(need, 2)
        if c.mn.startswith("v_permlane") and c.rd & vw: need = max(need, 2)
        if c.mn in ("v_readlane_b32", "v_readfirstlane_b32") and c.rd & vw: need = max(need, 1)
        if p.kind == "X" and cv and c.kind != "X" and c.rd & vw: need = max(need, 1)
        if p.kind == "X" and c.kind in MEMK and c.rd & vw: need = max(need, 1)
        if cv and c.rd & sw: need = max(need, 4 if c.mn in ("v_readlane_b32", "v_writelane_b32") else 2)
        if c.kind in "DGT" and c.rd & sw: need = max(need, 5)
        if "exec" in p.wr: need = max(need, 5)
        if c.kind == "B" and "vcc" in c.rd and "vcc" in p.wr: need = max(need, 1)
    if p.kind == "S" and "m0" in p.wr and c.kind == "D": need = max(need, 1)
    if p.kind == "T" and (cv or c.kind in "RG") and c.wr & p.data: need = max(need, 2)
    if p.kind == "H" and cv and c.wr & p.rd: need = max(need, 2)
    return need

def fix_hazards(seq, prev=None, insert=True, name=""):
    out = list(prev or []); base = len(out); added = 0
    for o in seq:
        short = 0; dist = 0
        for p in reversed(out[-40:]):
            if p.kind not in "LC":
                h = hazard_need(p, o)
                if h > dist: short = max(short, h - dist)
            dist += states(p)
            if dist >= 10: break
        if short:
            if not insert: raise AssertionError(f"hazard in {name}: {o.text} short {short}")
            out.append(Op(f"s_nop {short-1}")); added += 1
        out.append(o)
    return out[base:], added

def emit(seq):
    L = []
    for o in seq:
        if o.kind == "Z" and hasattr(o, "vm"):
            L.append(f"s_waitcnt vmcnt({o.vm}) lgkmcnt(0)" if o.vm is not None else "s_waitcnt vmcnt(0) lgkmcnt(0)")
        if hasattr(o, "vmtag"):
            L.append(f"s_waitcnt vmcnt({o.vm if o.vm is not None else 0})"); continue
        L.append(o.text)
    return L
```

```python
NONE = None
class Plan:
    def __init__(self, i):
        self.i = i; self.n2 = 4 * i + 2
        self.chan = [dict(X={}, Y={}), dict(X={}, Y={})]
        self.events = [[], [], [], []]
    def n(self, w): return self.n2 + 2 * (w & 1)
    def vl(self, w, j):
        pair, u = w >> 1, w & 1
        ring = 4 * pair
        slot = [[ring + 0, ring + 2], [ring + 1, 12 if pair == 0 else 8]][u][j]
        entry = 4 * w + j if pair == 0 else 4 * (3 - w) + 2 + j
        return (slot, ("MV", entry))
    def exit1(self, w):
        if w < 2: return (31, 0) if (self.i == 7 and w == 0) else (33, 0)
        n = self.n(w)
        return (max(n - 3, 0), 2 if n == 2 else 1)
LOAD, COMP = 1, 0
def make_plan(i):
    P = Plan(i); n2 = P.n2
    L, S = P.chan
    for t in range(0, 31): L["X"][t] = ("K", t + 3, (t + 1) & 1)
    for t in range(0, 32): L["Y"][t] = ("V", t + 2, 2 + (t & 1))
    for t in range(n2 - 1, 31): S["X"][t] = ("K", 64 - t, 4 + ((t + 1) & 1))
    for t in range(n2, 32): S["Y"][t] = ("V", 65 - t, 6 + (t & 1))
    for pair in range(2):
        C = P.chan[pair]
        for (ch, t, u, j) in (("X", 31, 0, 0), ("X", 32, 1, 0), ("Y", 32, 0, 1), ("X", 33, 1, 1)):
            slot, (k, e) = P.vl(2 * pair + u, j)
            C[ch][t] = ("MV", e, slot)
    def ev(w, t, typ, qb, slot, entry, wv=0): P.events[w].append((t, typ, qb, slot, entry, wv))
    def rnd(chs, tiles, tev):
        for c, (w, qb, slot) in zip(chs, tiles):
            if c[0] == "P": ev(w, -1, LOAD, 0, slot, 4 * w + qb)
            else: S[c[0]][c[1]] = ("MK", 4 * w + qb, slot)
        return [(w, tev, COMP, qb, slot, 4 * w + qb) for (w, qb, slot) in tiles]
    comp = []
    if i >= 3:
        s0 = {3: 0, 4: 2, 5: 5, 6: 8, 7: 11}[i]
        A = [(w, qb, 4 + 2 * w + qb) for qb in range(2) for w in range(4)]
        B = [(w, 2 + qb, 4 + 2 * w + qb) for qb in range(2) for w in range(4)]
        cA = [(c, s0 + t) for t in range(4) for c in "XY"]
        comp += rnd(cA, A, s0 + 5)
        cB = [("Y", s0 + 5)] + [(c, s0 + t) for t in (6, 7, 8) for c in "XY"] + [("X", s0 + 9)]
        comp += rnd(cB, B, s0 + 11)
    elif i == 2:
        A = [(w, qb, 4 + 2 * w + qb) for qb in range(2) for w in range(4)]
        comp += rnd([("P",)] * 4 + [(c, t) for t in range(2) for c in "XY"], A, 3)
        B = [(0, 2, 12)] + [(w, 2 + qb, 4 + 2 * w + qb) for qb in range(2) for w in range(4) if (w, qb) != (0, 0)]
        comp += rnd([("X", 2), ("Y", 3)] + [(c, t) for t in (4, 5, 6) for c in "XY"], B, 8)
    elif i == 1:
        A = [(w, qb, 4 + 4 * (w - 2) + qb) for qb in range(4) for w in (2, 3)]
        comp += rnd([("P",)] * 2 + [(c, t) for t in range(3) for c in "XY"], A, 4)
    else:
        A = [(w, qb, 4 + 4 * (w - 2) + qb) for qb in range(4) for w in (2, 3)]
        comp += [x + (1,) for x in rnd([("P",)] * 8, A, 0)]
    for x in comp: ev(*x)
    if i <= 1:
        t1 = 14
        for w in range(4):
            e0 = 4 * w if w < 2 else 4 * (3 - w) + 2
            ev(w, t1, LOAD, 0, 8 + w, e0)
            ev(w, t1 + 4, COMP, 0, 8 + w, e0); ev(w, t1 + 4, LOAD, 0, 8 + w, e0 + 1)
            ev(w, t1 + 8, COMP, 1, 8 + w, e0 + 1)
    for w in range(4): P.events[w].sort(key=lambda e: e[0])
    return P
```

```python
from core import *
class Ctx:
    def __init__(s, plan, w, t, ev=None): s.plan = plan; s.i = plan.i; s.w = w; s.t = t; s.n = plan.n(w); s.ev = ev

def wave_trace(plan, w, Pc, sites):
    tr = []; evs = list(plan.events[w]); pro = Pc["pro"]; n = plan.n(w); i = plan.i
    def events(p, t):
        r = Pc["rt"][p]
        while evs and evs[0][0] == t:
            e = evs.pop(0); c = Ctx(plan, w, t, e)
            if e[1] == 1:
                body = r["head"][:7] + r["LD"] + [o for k, o in enumerate(r["X"]) if k >= [x.text for x in r["X"]].index(f"L_nx{p}:")]
            else:
                body = [o for o in r["head"] if not (o.text == "s_waitcnt vmcnt(0)" and not e[5])] + r["E"][e[2]] + r["X"]
            tr.extend((o, c) for o in body)
        tr.extend((o, Ctx(plan, w, t)) for o in r["RET"])
    def add(seq, t):
        c = Ctx(plan, w, t)
        for o in seq:
            if "lonly" in o.meta and w >= 2: continue
            tr.append((o, c))
            if "site" in o.meta and evs and evs[0][0] == t:
                tr.append((Op("s_nop 7"), c)); events(sites[o.meta["site"]], t)
            if "evcall" in o.meta: events(1, t)
    add(pro["main"] + pro["disp"] + pro["blocks"][(i, w)] + pro["mid"] + pro["q1"] + pro["mk"] + (pro["mk2"] if (w >= 2 and n == 2) else []) + pro["q2"] + pro["jump"], -1)
    names = []
    for t in range(34):
        if t == 33: nm = "lastx" if (w >= 2 and n == 32) else "last"
        elif w >= 2 and n - 3 <= t <= n + 2: nm = ["diag1", "diag2", "sw1", "sw2", "sw3", "sw4"][t - n + 3]
        elif w == 0 and i == 7 and t >= 31: nm = ["diag1", "diag2f"][t - 31]
        else: nm = f"loop{t & 1}"
        names.append(nm); add(Pc[nm], t)
    add(Pc["fpre"] + Pc["final"], 34)
    assert not evs, ("unprocessed events", i, w, evs)
    return tr

def analyse(plans, Pc, sites, verb):
    allw = []
    cons = {}
    sop = {}
    def constrain(op, n):
        sop[id(op)] = op; cons[id(op)] = min(cons.get(id(op), 63), n)
    for plan in plans:
        W = []
        for w in range(4):
            tr = wave_trace(plan, w, Pc, sites)
            ep = 0; nvm = 0; rec = []; bars = []
            for pos, (o, c) in enumerate(tr):
                rec.append((o, c, ep, nvm))
                if o.kind in "DGT": nvm += 1
                if o.kind == "Z": bars.append(pos); ep += 1
            W.append((rec, bars))
        nb = {len(b) for _, b in W}; assert len(nb) == 1, ("barrier mismatch", plan.i, [len(b) for _, b in W])
        D = []; R = []; Wd = {};
        for w, (rec, bars) in enumerate(W):
            for pos, (o, c, ep, nvm) in enumerate(rec):
                for key in ("dma", "hw"):
                    if key in o.meta:
                        x = o.meta[key](c)
                        if x: D.append(dict(slot=x[0], tile=x[1], w=w, pos=pos, ep=ep, vm=nvm, h=(key == "hw")))
                if "src" in o.meta:
                    x = o.meta["src"](c)
                    if x: R.append(dict(slot=x[0], tile=x[1], w=w, pos=pos, ep=ep, op=o))
                if "wdst" in o.meta: Wd[c.ev[4]] = (w, ep, pos)
        assert sorted(Wd) == list(range(16)), ("W entries", plan.i, sorted(Wd))
        for w, (rec, bars) in enumerate(W):
            k = 0
            for pos, (o, c, ep, nvm) in enumerate(rec):
                if "wsrc" in o.meta:
                    j = int(o.text.split("offset:")[1]) // 64
                    e = (4 * w + j) if c.t < 33 else plan.vl(w, j)[1][1]
                    ww, wep, wpos = Wd[e]
                    assert (ww == w and wpos < pos) or wep < ep, ("W visibility", plan.i, w, e)
        bytile = {}
        for d in D: bytile.setdefault((d["slot"], d["tile"]), []).append(d)
        def lgkm_done(w, rpos, pos):
            rec = W[w][0]; cnt = 0
            for k in range(rpos + 1, pos):
                o = rec[k][0]
                if o.kind == "Z": return True
                if o.kind == "W" and not hasattr(o, "vmtag"):
                    lg = parse_wait(o)[1]
                    if lg is not None and lg <= cnt: return True
                if o.kind in "RHK": cnt += 1
            return False
        seen = set()
        for r in R:
            key = (r["slot"], r["tile"]); ds = bytile.get(key, [])
            want = r["op"].meta.get("cnt", 12)
            assert len(ds) == want, ("tile incomplete", plan.i, r["w"], key, len(ds), W[r["w"]][0][r["pos"]][1].t)
            for d in ds:
                rec, bars = W[d["w"]]
                if d["w"] == r["w"]:
                    assert d["pos"] < r["pos"], ("read before load", key)
                    if d["h"]: continue
                    site = None
                    for k in range(r["pos"] - 1, d["pos"], -1):
                        o = rec[k][0]
                        if o.kind == "W" and not hasattr(o, "vmtag") and parse_wait(o)[0] is not None and parse_wait(o)[0] <= rec[k][3] - d["vm"] - 1: site = "ok"; break
                    if site: continue
                    for k in range(r["pos"] - 1, d["pos"], -1):
                        o = rec[k][0]
                        if (hasattr(o, "vmtag") and o.vmtag == r["op"].meta.get("needvm")) or (o.kind == "Z" and not r["op"].meta.get("needvm")): site = k; break
                    assert site is not None, ("no wait site", plan.i, r["w"], key)
                else:
                    assert d["ep"] < r["ep"], ("cross-wave read too early", plan.i, r["w"], key, d["ep"], r["ep"])
                    site = bars[r["ep"] - 1]
                    if d["h"]: continue
                    if any(rec[k][0].kind == "W" and not hasattr(rec[k][0], "vmtag") and parse_wait(rec[k][0])[0] == 0 for k in range(d["pos"] + 1, site)): continue
                constrain(rec[site][0], rec[site][3] - d["vm"] - 1)
            sig = (key, r["w"], r["ep"], r["pos"])
            first = min(d["ep"] for d in ds)
            for d2 in D:
                if d2["slot"] != r["slot"] or d2["tile"] == r["tile"]: continue
                if r["tile"][0] == "Q" and d2["tile"][0] == "Q": continue
                if d2["ep"] > r["ep"]: continue
                if d2["ep"] == r["ep"] and d2["w"] == r["w"] and d2["pos"] > r["pos"]:
                    assert lgkm_done(r["w"], r["pos"], d2["pos"]), ("WAR own", plan.i, key, d2); continue
                ok = d2["ep"] < first or (d2["ep"] == first and all(d["w"] == d2["w"] and d["pos"] > d2["pos"] for d in ds if d["ep"] == first))
                assert ok, ("slot clobbered", plan.i, r["w"], key, r["ep"], d2)
        read = {(r["slot"], r["tile"]) for r in R}
        for key in bytile:
            assert key in read, ("tile never read", plan.i, key)
        for w in (2, 3):
            rec, bars = W[w]
            epq = min(ep for (o, c, ep, nvm) in rec if o.tag == "QL")
            prec, pbars = W[3 - w]
            lastq = max(nvm for (o, c, ep, nvm) in prec if o.tag == "QS")
            site = pbars[epq - 1]
            if not any("lonly" in o.meta for (o, c, ep, nvm) in prec[:site]): constrain(prec[site][0], prec[site][3] - lastq - 1)
            for k, (o, c, ep, nvm) in enumerate(rec):
                if getattr(o, "vmtag", None) == "QL":
                    lq = max(n2 for (o2, c2, e2, n2) in rec if o2.tag == "QL")
                    constrain(o, nvm - lq - 1)
        allw.append(W)
    for W in allw:
        for rec, bars in W:
            for (o, c, ep, nvm) in rec:
                if hasattr(o, "vm"):
                    o.vm = cons.get(id(o), 63 if o.kind != "Z" else 30)
                    assert o.vm >= 0
    if verb:
        for nm in ("loop0", "loop1", "diag1", "diag2", "sw1", "sw2", "sw3", "sw4", "diag2f", "last", "lastx", "final"):
            print(nm, [(getattr(o, "name", getattr(o, "vmtag", "")), o.vm) for o in Pc[nm] if hasattr(o, "vm")])
        print("pro", [(getattr(o, "name", getattr(o, "vmtag", "")), o.vm) for o in Pc["pro"]["main"] + Pc["pro"]["mid"] if hasattr(o, "vm")])
    for W in allw:
        for rec, bars in W:
            lq = []; vq = []; prov = {}
            for (o, c, ep, nvm) in rec:
                touch = o.rd | o.wr
                for p in lq:
                    assert not (p.kind in "RK" and p.wr & touch), ("missing lgkm wait", c.i, c.w, c.t, p.text, o.text)
                for p in vq:
                    assert not (p.kind == "G" and p.wr & touch), ("missing vm wait", c.i, c.w, c.t, p.text, o.text)
                vm = lg = None
                if hasattr(o, "vm"): vm = o.vm; lg = 0 if o.kind == "Z" else None
                elif o.kind == "W": vm, lg = parse_wait(o)
                if vm is not None and len(vq) > vm: vq = vq[len(vq) - vm:] if vm else []
                if lg is not None and len(lq) > lg: lq = lq[len(lq) - lg:] if lg else []
                if o.kind in "RHK": lq.append(o)
                if o.kind in "DGT": vq.append(o)
                if o.kind == "M" and "frag" in o.meta:
                    want = o.meta["frag"](c)
                    for r in o.A: assert prov.get(r) == want, ("frag provenance", c.i, c.w, c.t, o.text, prov.get(r), want)
                for r in o.wr: prov[r] = o.meta["gives"](c) if "gives" in o.meta else None
            fix_hazards([x[0] for x in rec], insert=False, name=f"i{rec[0][1].i} w{rec[0][1].w}")
    if verb: print("trace analysis OK")
```

```python
import sys, struct, math
from core import *
from plan import make_plan, NONE

KN = "standalone__memory_aug_memorizing_tr__prompt_kernel"
OV = 0; SB = [96, 128]; PB = [160, 176]; MN = 192; LR = 208; LS = 212; TMP = 216; NT = 8
KA = 226; VA = 228; PAT = 232; LTB = 233; XV = 234; YV = 236; DX = 238; DY = 239; CHK = 240; TA = 241; EV = 242
NEG = 243; FF = 244; OFF = 248; T0 = 249
QA = 96; FRB = 192
sX, sY, sG, sOUT, sWS = 4, 8, 12, 16, 20
bK, bV, bMK, bMV, bQ = 24, 26, 28, 30, 32
sT, sEXIT, sW, sI, sN, sU = 34, 35, 36, 37, 38, 39
sUA = 40
sSOX, sMX, sSOY, sMY, sWX, sWY, sTX, sTY = 43, 44, 45, 46, 47, 48, 49, 79
sTP = 50
sTHR, sG_, sOMG = 52, 54, 55
sDM = 56
sRM = 64
sDL = 70
sPM = 72
sEF = 76
sNEV = 78
sRET = 80
sEI, sREC = 82, 83
sRING, sROW, sA, sB_, sC, sD = 84, 85, 86, 87, 88, 89
sCP = 90
sV0, sV1, sWE, sXK, sM0 = 92, 93, 94, 95, 96
sPV0, sPV1 = 97, 98
sST = 53
TILE = 12288
TB = 159744; WB = TB + 2176; XCH = TB
Z2G, Z1G = 6, 64
NTMOD = "nt"

def f32(x): return "0x%08x" % struct.unpack("<I", struct.pack("<f", x))[0]
def vr(a, n=1): return f"v{a}" if n == 1 else f"v[{a}:{a+n-1}]"
def ar(a, n=1): return f"a{a}" if n == 1 else f"a[{a}:{a+n-1}]"
def sr(a, n=1): return f"s{a}" if n == 1 else f"s[{a}:{a+n-1}]"
def FR(n): return FRB + 4 * (n % 16)
def Oreg(qb, dt): return vr(OV + 48 * qb + 4 * dt, 4) if qb < 2 else ar(48 * (qb - 2) + 4 * dt, 4)
def Qreg(qb, s): return ar(QA + 24 * qb + 4 * s, 4)
def St(p, kt, qb): return SB[p] + 16 * kt + 4 * qb
def lin(a, b, n): return [a + (b - a) * k / max(n - 1, 1) for k in range(n)]
def bc(f):
    return (vr(f, 2), (0, 0)) if f % 2 == 0 else (vr(f - 1, 2), (1, 1))
def pkmul(d, a, f):
    r, (lo, hi) = bc(f); return f"v_pk_mul_f32 {vr(d,2)}, {vr(a,2)}, {r} op_sel:[0,{lo}] op_sel_hi:[1,{hi}]"
def pkfma(d, a, f, c):
    r, (lo, hi) = bc(f); return f"v_pk_fma_f32 {vr(d,2)}, {vr(a,2)}, {r}, {vr(c,2)} op_sel:[0,{lo},0] op_sel_hi:[1,{hi},1]"

def cur_ring(c, t):
    return 4 if (c.w >= 2 and t >= c.n + 2) else 0
def ktile(c, j):
    if j > 33: return None
    if c.w >= 2 and c.n <= j < c.n + 2: return None
    r = cur_ring(c, j); return (r + (j & 1), ("K", 67 - j if r else j))
def vtile(c, j):
    r = cur_ring(c, j); return (r + 2 + (j & 1), ("V", 67 - j if r else j))
def chan(c, ch, t):
    d = c.plan.chan[c.w >> 1][ch].get(t)
    if d is None: return None
    kind, src, dest = d
    return (dest, (kind, src))

def qk(p, tiles, ats, czero=()):
    ops = []; k = 0
    for (kt, qb) in tiles:
        d = vr(St(p, kt, qb), 4)
        for s in range(6):
            c = d if s else ("0" if qb in czero else vr(MN + 4 * qb, 4))
            ops.append(Op(f"v_mfma_f32_16x16x32_bf16 {d}, {ar(FR(24*p+6*kt+s),4)}, {Qreg(qb,s)}, {c}", at=ats[k],
                          meta=dict(kt=kt, frag=lambda c, kt=kt, s=s: ("K", c.t + 1, kt, s)))); k += 1
    return ops
def pv(p, qbs, ats, czero=False):
    ops = []; k = 0
    for dt in range(12):
        for qb in qbs:
            o = Oreg(qb, dt)
            ops.append(Op(f"v_mfma_f32_16x16x32_bf16 {o}, {ar(FR(24*p+12+dt),4)}, {vr(PB[1-p]+4*qb,4)}, {'0' if czero else o}", at=ats[k],
                          meta=dict(frag=lambda c, dt=dt: ("V", c.t, dt)))); k += 1
    return ops
def vreads(p, g0, g1):
    ops = []; at = lin(g0, g1, 24)
    for dt in range(12):
        a = FR(24 * p + 12 + dt)
        for eh in range(2):
            ops.append(Op(f"ds_read_b64_tr_b16 {ar(a+2*eh,2)}, {vr(VA+(dt&3))} offset:{p*TILE + eh*6144 + (dt>>2)*1024}",
                          at=at[2*dt+eh], tag=f"V{dt}", meta=dict(src=lambda c: vtile(c, c.t), gives=lambda c, dt=dt: ("V", c.t, dt))))
    return ops
def kreads(p, g0, g1):
    ops = []; at = lin(g0, g1, 12)
    for n in range(12):
        kt, s = n // 6, n % 6
        ops.append(Op(f"ds_read_b128 {ar(FR(24*p+24+n),4)}, {vr(KA+(s&1))} offset:{p*TILE + kt*6144 + (s>>1)*1024}",
                      at=at[n], tag=f"K{kt}", meta=dict(src=lambda c: ktile(c, c.t + 2), gives=lambda c, kt=kt, s=s: ("K", c.t + 2, kt, s))))
    return ops
def softmax(sp, tiles, g0, g1, fresh, acc=LS):
    ops = []; n = 4 * len(tiles); at = lin(g0, g1, n); k = 0; fresh = set(fresh)
    for (kt, qb) in tiles:
        for r in range(4):
            t = TMP + (k % NT)
            ops.append(Op(f"v_exp_f32 {vr(t)}, {vr(St(sp,kt,qb)+r)}", at=at[k]))
            a = at[k] + 1.5
            if qb in fresh:
                if r == 1: ops.append(Op(f"v_add_f32 {vr(acc+qb)}, {vr(t-1)}, {vr(t)}", at=a)); fresh.discard(qb)
            else: ops.append(Op(f"v_add_f32 {vr(acc+qb)}, {vr(acc+qb)}, {vr(t)}", at=a))
            if r & 1: ops.append(Op(f"v_cvt_pk_bf16_f32 {vr(PB[sp]+4*qb+2*kt+(r>>1))}, {vr(t-1)}, {vr(t)}", at=a + 0.01))
            k += 1
    return ops
def duty(ch, g0, g1):
    vo, srd, so, m0 = (XV, sX, sSOX, sMX) if ch == "X" else (YV, sY, sSOY, sMY)
    ops = [Op(f"v_add_u32 {vr(vo)}, {vr(PAT)}, {vr(vo)}", at=g0), Op(f"v_add_u32 {vr(vo+1)}, {vr(PAT)}, {vr(vo+1)}", at=g0 + 0.01)]
    at = lin(g0 + 2, g1, 6)
    for a in range(3):
        ops.append(Op(f"s_add_u32 m0, {sr(m0)}, {sr(sUA+a)}", at=at[2*a] - 1.5))
        for rg in range(2):
            ops.append(Op(f"buffer_load_dwordx4 {vr(vo+rg)}, {sr(srd,4)}, {sr(so)} offen offset:{rg*3072+a*128} {NTMOD} lds",
                          at=at[2*a+rg], meta=dict(dma=lambda c, ch=ch: chan(c, ch, c.t))))
    return ops
def decode(ch, g0, g1):
    vo, srd, so, m0, w, tb, dv, bs = (XV, sX, sSOX, sMX, sWX, sTX, DX, bK) if ch == "X" else (YV, sY, sSOY, sMY, sWY, sTY, DY, bV)
    T = [f"v_readlane_b32 {sr(w)}, {vr(dv)}, {sr(sT)}",
         f"s_and_b32 {sr(tb)}, {sr(w)}, 0xfff",
         f"s_and_b32 {sr(m0)}, {sr(w)}, 0xff000",
         f"s_lshr_b32 {sr(so)}, {sr(w)}, 8",
         f"s_and_b32 {sr(so)}, {sr(so)}, 0xff000",
         f"s_bitcmp1_b32 {sr(w)}, 28",
         f"s_cselect_b64 {sr(sTP,2)}, {sr(bMV,2)}, {sr(bMK,2)}",
         f"s_bitcmp1_b32 {sr(w)}, 29",
         f"s_cselect_b64 {sr(srd,2)}, {sr(sTP,2)}, {sr(bs,2)}",
         f"v_add_u32 {vr(TA)}, {sr(tb)}, {vr(LTB)}",
         f"ds_read_b64 {vr(vo,2)}, {vr(TA)}"]
    at = lin(g0, g1, len(T))
    at[6] = at[5] + 0.001; at[8] = at[7] + 0.001
    return [Op(x, at=a, tag="TB" + ch) for x, a in zip(T, at)]
sites = []
def check(p, g, qbs=(0, 1, 2, 3)):
    k = len(sites); sites.append(p)
    ops = []
    if len(qbs) == 4:
        ops.append(Op(f"v_max3_f32 {vr(CHK)}, {vr(LS)}, {vr(LS+1)}, {vr(LS+2)}", at=g - 3))
        ops.append(Op(f"v_max_f32 {vr(CHK)}, {vr(CHK)}, {vr(LS+3)}", at=g - 2))
    else:
        ops.append(Op(f"v_max_f32 {vr(CHK)}, {vr(LS+qbs[0])}, {vr(LS+qbs[1])}", at=g - 2))
    ops.append(Op(f"s_cmp_eq_u32 {sr(sT)}, {sr(sNEV)}", at=g - 9))
    ops.append(Op(f"s_cselect_b64 {sr(sEF,2)}, -1, 0", at=g - 8.999))
    ops.append(Op(f"v_cmp_lt_f32 vcc, {sr(sTHR)}, {vr(CHK)}", at=g - 1.5))
    ops.append(Op(f"s_or_b64 vcc, vcc, {sr(sEF,2)}", at=g - 1))
    b = Op(f"s_cbranch_vccnz L_stub{k}", at=g + 0.1, meta=dict(site=k)); ops.append(b)
    for j, qb in enumerate(qbs):
        ops.append(Op(f"v_add_f32 {vr(LR+qb)}, {vr(LR+qb)}, {vr(LS+qb)}", at=g + 0.2 + 0.01 * j))
    return ops
def masks(p, diag, full, at):
    ops = [Op(f"v_mov_b32 {vr(NEG)}, 0xff800000", at=0.5)]
    for (kt, qb), a in zip(full, at[len(diag):]):
        for r in range(4): ops.append(Op(f"v_mov_b32 {vr(St(p,kt,qb)+r)}, 0xff800000", at=a + 0.01 * r))
    for (kt, qb), a in zip(diag, at):
        for r in range(4):
            x = vr(St(p, kt, qb) + r)
            ops.append(Op(f"v_cndmask_b32 {x}, {x}, {vr(NEG)}, {sr(sDM+2*r,2)}", at=a + 0.01 * r))
    return ops
def xlane(op, x, t, at):
    T = [f"v_mov_b32 {vr(t)}, {vr(x)}", f"v_permlane16_swap_b32 {vr(x)}, {vr(t)}", f"{op} {vr(x)}, {vr(x)}, {vr(t)}",
         f"v_mov_b32 {vr(t)}, {vr(x)}", f"v_permlane32_swap_b32 {vr(x)}, {vr(t)}", f"{op} {vr(x)}, {vr(x)}, {vr(t)}"]
    return [Op(s, at=at + 0.001 * k) for k, s in enumerate(T)]
def initmax(sp, qb, at, x, t):
    a, b = St(sp, 0, qb), St(sp, 1, qb)
    T = [f"v_max3_f32 {vr(x)}, {vr(a)}, {vr(a+1)}, {vr(a+2)}", f"v_max3_f32 {vr(t)}, {vr(a+3)}, {vr(b)}, {vr(b+1)}",
         f"v_max3_f32 {vr(x)}, {vr(x)}, {vr(b+2)}, {vr(b+3)}", f"v_max_f32 {vr(x)}, {vr(x)}, {vr(t)}"]
    ops = [Op(s, at=at + 0.001 * k) for k, s in enumerate(T)]
    ops += xlane("v_max_f32", x, t, at + 0.01)
    for k, r in enumerate([a, a+1, a+2, a+3, b, b+1, b+2, b+3]):
        ops.append(Op(f"v_sub_f32 {vr(r)}, {vr(r)}, {vr(x)}", at=at + 0.02 + 0.001 * k))
    for r in range(4): ops.append(Op(f"v_sub_f32 {vr(MN+4*qb+r)}, 0, {vr(x)}", at=at + 0.03 + 0.001 * r))
    return ops
def step_inc(at): return [Op(f"s_add_u32 {sr(sT)}, {sr(sT)}, 1", at=at)]
ALLT = [(kt, qb) for kt in range(2) for qb in range(4)]
KT0 = [(0, qb) for qb in range(4)]; KT1 = [(1, qb) for qb in range(4)]

def frame(p, kr=True, vr_=True, v0=7, v1=55):
    ops = [Bar("Z2", Z2G + 0.1), Bar("Z1", Z1G + 0.1)]
    ops += duty("X", Z2G + 1, 60) + duty("Y", Z1G + 1, 93)
    ops += decode("Y", 0.3, 53.5) + decode("X", 62, 91.5)
    if vr_: ops += vreads(p, v0 + 0.2, v1)
    if kr: ops += kreads(p, Z1G + 1.2, 92.2) + [Wait("K0", 93.5)]
    ops += step_inc(93.6)
    return ops

def normal(p, tiles=ALLT, diag=(), full=(), name="", tail=None):
    ops = frame(p)
    ats = []
    for (kt, qb) in tiles: ats += [24 * kt + 6 * qb + s for s in range(6)]
    ops += qk(p, tiles, ats) + pv(p, range(4), list(range(48, 96)))
    ops += [Wait([f"V{d}" for d in range(5)], 45.5)]
    ops += softmax(1 - p, KT1, 0.2, 40, ()) + check(p, 47) + softmax(p, KT0, 48.2, 91, range(4))
    if diag or full:
        ops += masks(p, diag, full, [24 * kt + 6 * qb + 9 for kt, qb in diag] + [24 * kt + 6 * qb for kt, qb in full])
    if tail: ops += tail
    return finish(ops, name)

def finish(ops, name, order="at"):
    z2 = [o for o in ops if getattr(o, "name", "") == "Z2"]
    if z2:
        for o in ops:
            if o.meta.get("kt") == 1 or (o.kind == "V" and o.wr & {f"v{XV}", f"v{XV+1}"}): o.after.append(z2[0])
    seq, tot = schedule(ops, verbose=VERB, name=name, order=order)
    seq = auto_waits(seq)
    seq, nn = fix_hazards(seq)
    if VERB and nn: print(f"   {name}: {nn} nops inserted")
    out = []
    for o in seq:
        out.append(o)
        if "site" in o.meta: out.append(Op(f"L_back{o.meta['site']}:"))
    return out

def raw(lines):
    return [x if isinstance(x, Op) else Op(x) for x in lines]
def rawfin(lines):
    seq = auto_waits(raw(lines)); seq, _ = fix_hazards(seq); return seq

def lreduce(qbs, at):
    ops = []
    for j, qb in enumerate(qbs): ops += xlane("v_add_f32", LR + qb, T0 + (j & 1), at + 0.1 * j)
    return ops
def pbuild(j, dst, woff_sgpr, imm, at, t):
    T = [f"ds_read_b32 {vr(t)}, {vr(TA)} offset:{imm}",
         f"v_exp_f32 {vr(t+1)}, -|{vr(t)}|",
         f"v_add_f32 {vr(t+2)}, 1.0, {vr(t+1)}",
         f"v_rcp_f32 {vr(t+2)}, {vr(t+2)}",
         f"v_cmp_le_f32 vcc, 0, {vr(t)}",
         f"v_mul_f32 {vr(t+2)}, {sr(sG_)}, {vr(t+2)}",
         f"v_mul_f32 {vr(t+1)}, {vr(t+1)}, {vr(t+2)}",
         f"v_cndmask_b32 {vr(t)}, {vr(t+1)}, {vr(t+2)}, vcc",
         f"v_cndmask_b32 {vr(t+3)}, {vr(t+2)}, {vr(t+1)}, vcc",
         f"v_cvt_pk_bf16_f32 {vr(t)}, {vr(t)}, {vr(t)}",
         f"v_cvt_pk_bf16_f32 {vr(t+3)}, {vr(t+3)}, {vr(t+3)}",
         f"v_and_b32 {vr(t)}, {vr(CHK)}, {vr(t)}",
         f"v_and_b32 {vr(t+3)}, {vr(CHK)}, {vr(t+3)}",
         f"v_cndmask_b32 {vr(dst)}, 0, {vr(t)}, {sr(sPM,2)}", f"v_cndmask_b32 {vr(dst+1)}, 0, {vr(t)}, {sr(sPM+2,2)}",
         f"v_cndmask_b32 {vr(dst+2)}, 0, {vr(t+3)}, {sr(sPM,2)}", f"v_cndmask_b32 {vr(dst+3)}, 0, {vr(t+3)}, {sr(sPM+2,2)}"]
    ops = [Op(s, at=at + 0.001 * k) for k, s in enumerate(T)]
    return ops
def pbuild_pre(woff_sgpr, at):
    T = [f"v_mbcnt_lo_u32_b32 {vr(TA)}, -1, 0", f"v_mbcnt_hi_u32_b32 {vr(TA)}, -1, {vr(TA)}",
         f"v_and_b32 {vr(CHK)}, 1, {vr(TA)}", f"v_lshlrev_b32 {vr(CHK)}, 4, {vr(CHK)}", f"v_mov_b32 {vr(NEG)}, 0xffff",
         f"v_lshlrev_b32 {vr(CHK)}, {vr(CHK)}, {vr(NEG)}",
         f"v_and_b32 {vr(TA)}, 15, {vr(TA)}", f"v_lshlrev_b32 {vr(TA)}, 2, {vr(TA)}", f"v_add_u32 {vr(TA)}, {sr(woff_sgpr)}, {vr(TA)}"]
    return [Op(s, at=at + 0.001 * k) for k, s in enumerate(T)]
def pvmem(acc, preg, addr, imm0, fr0, nfr, at0, at1, src, needvm=None, k0=0):
    ops = []; at = lin(at0, at1, 12)
    for dt in range(12):
        a = fr0 + 4 * ((k0 + dt) % nfr)
        for eh in range(2):
            ops.append(Op(f"ds_read_b64_tr_b16 {ar(a+2*eh,2)}, {vr(addr+(dt&3))} offset:{imm0 + eh*6144 + (dt>>2)*1024}",
                          at=at[dt] + 0.01 * eh, meta=dict(src=src, needvm=needvm)))
        o = vr(acc + 4 * dt, 4)
        ops.append(Op(f"v_mfma_f32_16x16x32_bf16 {o}, {ar(a,4)}, {vr(preg,4)}, {o}", at=at[dt] + 0.02))
    return ops
def outstore(acc, soff, at0, at1):
    ops = []; at = lin(at0, at1, 6)
    for u in range(6):
        x = acc + 8 * u; a = at[u]
        T = [f"v_cvt_pk_bf16_f32 {vr(x)}, {vr(x)}, {vr(x+1)}", f"v_cvt_pk_bf16_f32 {vr(x+1)}, {vr(x+2)}, {vr(x+3)}",
             f"v_cvt_pk_bf16_f32 {vr(x+2)}, {vr(x+4)}, {vr(x+5)}", f"v_cvt_pk_bf16_f32 {vr(x+3)}, {vr(x+6)}, {vr(x+7)}",
             f"v_permlane16_swap_b32 {vr(x)}, {vr(x+2)}", f"v_permlane16_swap_b32 {vr(x+1)}, {vr(x+3)}",
             f"buffer_store_dwordx4 {vr(x,4)}, {vr(OFF)}, {sr(sOUT,4)}, {sr(soff)} offen offset:{64*u} {STMOD}"]
        ops += [Op(s, at=a + 0.001 * k) for k, s in enumerate(T)]
    return ops
STMOD = ""
MV = 96

def merge_m0(ops):
    rest, groups = [], []
    for o in ops:
        if "m0" in o.wr: groups.append([o])
        elif o.kind == "D": groups[-1].append(o)
        else: rest.append(o)
    groups.sort(key=lambda g: g[1].at)
    for g in groups:
        for o in g[2:]: o.at = min(o.at, g[1].at + 1)
    return rest + [o for g in groups for o in g]

def listframe(p, pre, mid, post, kr=False, vrd=None):
    ops = decode("Y", 0.3, 5)[:-2] + pre + [Bar("Z2", Z2G + 0.1)]
    ops += merge_m0(duty("X", Z2G + 1, 60) + mid)
    ops += [Op(o.text, at=50 + k, tag="TBY") for k, o in enumerate(decode("Y", 0, 0)[-2:])]
    ops += [Bar("Z1", Z1G + 0.1)] + duty("Y", Z1G + 1, 93)
    if kr: ops += kreads(p, Z1G + 1.2, 90)
    ops += post
    ops += decode("X", 66, 91.5)
    if kr: ops += [Wait("K0", 93.5)]
    ops += step_inc(93.6)
    return ops

def diag2():
    p = 0
    ops = frame(p, kr=False)
    tiles = [(0, 2), (0, 3), (1, 3)]
    ops += qk(p, tiles, lin(0, 44, 18)) + pv(p, range(4), list(range(48, 96)))
    ops += [Wait([f"V{d}" for d in range(5)], 45.5)]
    ops += softmax(1, KT1, 0.2, 40, ()) + check(p, 47)
    ops += masks(p, [(0, 2), (1, 3)], [(1, 2)], [22, 50, 30])
    ops += softmax(0, tiles, 48.2, 88, (2, 3))
    ops += [Op(f"v_mov_b32 {vr(PB[0]+8+2+k)}, 0", at=49 + k) for k in range(2)]
    ops += [Op(f"v_mov_b32 {vr(LS+k)}, 0", at=51 + k) for k in range(2)]
    ops += [Op(f"v_mbcnt_lo_u32_b32 {vr(T0)}, -1, 0", at=47.3), Op(f"v_mbcnt_hi_u32_b32 {vr(T0)}, -1, {vr(T0)}", at=47.4),
            Op(f"v_lshlrev_b32 {vr(T0)}, 4, {vr(T0)}", at=47.5)]
    at = lin(50, 94, 24)
    for j in range(4):
        for h in range(2):
            k0 = 6 * j + 3 * h
            ops.append(Op(f"s_add_u32 {sr(sA)}, {sr(sB_)}, {((j^2)*6+3*h)*1024}", at=at[k0] - 1.2))
            for s in range(3):
                ops.append(Op(f"buffer_load_dwordx4 {Qreg(j,3*h+s)}, {vr(T0)}, {sr(sWS,4)}, {sr(sA)} offen offset:{s*1024}",
                              at=at[k0+s], tag="QL"))
    return finish(ops, "DIAG2")

def sw1():
    p = 1
    pre = check(p, 2, qbs=(2, 3))
    for o in pre: o.at = max(o.at, 0)
    pre += lreduce(range(4), 3)
    for j in range(4):
        pre += [Op(f"v_rcp_f32 {vr(FF+j)}, {vr(LR+j)}", at=4 + 0.1 * j), Op(f"v_mul_f32 {vr(FF+j)}, {sr(sOMG)}, {vr(FF+j)}", at=4.5 + 0.1 * j)]
    BV = SB[1]
    pre += [Op(f"s_lshl_b32 {sr(sA)}, {sr(sW)}, 9", at=2.5), Op(f"s_lshl_b32 {sr(sC)}, {sr(sU)}, 6", at=2.5), Op(f"s_sub_u32 {sr(sA)}, {sr(sA)}, {sr(sC)}", at=2.5),
            Op(f"v_add_u32 {vr(T0+2)}, {sr(sA)}, {vr(LTB)}", at=2.6),
            Op(f"s_mov_b64 {sr(sG,2)}, {sr(bMV,2)}", at=2.6)]
    for j in range(4):
        for nb in range(2):
            pre.append(Op(f"ds_read_b64 {vr(BV+4*j+2*nb,2)}, {vr(T0+2)} offset:{j*128+nb*64}", at=2.7))
    mid = vreads(p, 7, 30)
    mid += pv(p, (2, 3), lin(14, 50, 24))
    at = lin(8, 62, 48); k = 0
    bulk = []
    for j in range(4):
        for nb in range(2):
            for rg in range(2):
                r = BV + 4 * j + 2 * nb + rg
                bulk.append(Op(f"v_add_u32 {vr(r)}, {vr(PAT)}, {vr(r)}", at=7))
    for j in (3, 2, 0, 1):
        for nb in range(2):
            for a in range(3):
                bulk.append(Op(f"s_mov_b32 m0, {(8+j)*TILE + nb*6144 + 896*a}", at=at[k] - 0.5))
                for rg in range(2):
                    bulk.append(Op(f"buffer_load_dwordx4 {vr(BV+4*j+2*nb+rg)}, {sr(sG,4)}, 0 offen offset:{rg*3072+a*128} {NTMOD} lds",
                                   at=at[k], tag=f"VS{j}", meta=dict(dma=lambda c, j=j: (8 + j, ("MV", 4 * c.w + j))))); k += 1
    mid += bulk
    post = []
    for j in range(2):
        for r in range(0, 48, 2): post.append(Op(pkmul(OV + 48*j + r, OV + 48*j + r, FF + j), at=52))
    post += [Op(f"v_add_u32 {vr(KA+k)}, {4*TILE}, {vr(KA+k)}", at=60) for k in range(6)]
    post += [Op(f"s_mov_b32 {sr(sRING)}, {4*TILE}", at=60)]
    for r in range(0, 96, 2):
        post += [Op(f"v_accvgpr_read_b32 {vr(MV+r)}, {ar(r)}", at=66), Op(f"v_accvgpr_read_b32 {vr(MV+r+1)}, {ar(r+1)}", at=66),
                 Op(pkmul(MV + r, MV + r, FF + 2 + r // 48), at=66)]
    ops = listframe(p, pre, mid, post)
    return finish(ops, "SW1", order="list")

ACC = [OV, OV + 48, MV, MV + 48]
def sw2():
    p = 0
    pre = [Op(f"s_lshl_b32 {sr(sA)}, {sr(sW)}, 8", at=0), Op(f"s_add_u32 {sr(sA)}, {sr(sA)}, {WB}", at=0)]
    pre += pbuild_pre(sA, 0)
    for j in range(4): pre += pbuild(j, MN + 4 * j, sA, 64 * j, 0.5 + 0.1 * j, TMP + 4 * (j & 1))
    for o in pre:
        if o.kind == "R": o.meta["wsrc"] = True
    pre += [Op(f"v_add_u32 {vr(T0+k)}, {2*TILE}, {vr(VA+k)}", at=1) for k in range(4)]
    mid = []; post = []
    order = [3, 2, 0, 1]
    for n_, j in enumerate(order):
        dst = mid if n_ < 2 else post
        a0 = 20 + 18 * n_
        dst.append(WaitVM(f"VS{j}", at=a0 - 1))
        dst += pvmem(ACC[j], MN + 4 * j, T0, j * TILE, 0, 24, a0, a0 + 16, (lambda c, j=j: (8 + j, ("MV", 4 * c.w + j))), needvm=f"VS{j}", k0=12 * n_)
    post += [Op(f"s_add_u32 {sr(sA)}, {sr(sROW)}, {3*6144}", at=60)] + outstore(ACC[3], sA, 60, 90)
    ops = listframe(p, pre, mid, post, kr=True)
    return finish(ops, "SW2", order="list")

def sw3_fin():
    ops = []
    for n_, j in enumerate([2, 0, 1]):
        s = [sC, sD, sA][n_]
        ops += [Op(f"s_add_u32 {sr(s)}, {sr(sROW)}, {j*6144}", at=0)] + outstore(ACC[j], s, 0.1 + 20 * n_, 15 + 20 * n_)
    return ops
def sw3():
    p = 1
    fin = sw3_fin()
    n1 = 1 + 7 * 6
    pre = fin[:n1]
    tiles = [(0, 0), (0, 1), (1, 1)]
    mid = [WaitVM("QL", at=10)]
    q = qk(p, tiles, lin(14, 34, 18), czero=(0, 1))
    for o in q: o.after.append(mid[0])
    mid += q + masks(p, [(0, 0), (1, 1)], [(1, 0)], [24, 38, 16])
    mid += initmax(p, 0, 40, T0, T0 + 1) + initmax(p, 1, 40.5, T0 + 2, T0 + 3)
    mid += fin[n1:]
    post = softmax(p, tiles, 56, 88, (0, 1), acc=LR)
    post += [Op(f"v_mov_b32 {vr(PB[1]+r)}, 0", at=60) for r in (2, 3, 8, 9, 10, 11, 12, 13, 14, 15)]
    post += [Op(f"v_mov_b32 {vr(LR+2+k)}, 0", at=60) for k in range(2)]
    ops = listframe(p, pre, mid, post, kr=True)
    return finish(ops, "SW3", order="list")

def sw4():
    p = 0
    ops = frame(p)
    tiles = [(0, 2), (0, 3), (0, 0), (0, 1), (1, 3), (1, 0), (1, 1)]
    ops += qk(p, tiles, list(range(42)), czero=(2, 3)) + pv(p, range(4), list(range(48, 96)), czero=True)
    ops += [Wait([f"V{d}" for d in range(5)], 45.5)]
    ops += masks(p, [(0, 2), (1, 3)], [(1, 2)], [9, 33, 2])
    ops += initmax(p, 2, 11, T0, T0 + 1) + initmax(p, 3, 34, T0 + 2, T0 + 3)
    ops += softmax(p, KT0, 48.2, 91, range(4))
    return finish(ops, "SW4")

def xch_write(at):
    T = [f"v_mbcnt_lo_u32_b32 {vr(T0+2)}, -1, 0", f"v_mbcnt_hi_u32_b32 {vr(T0+2)}, -1, {vr(T0+2)}",
         f"v_and_b32 {vr(T0+2)}, 15, {vr(T0+2)}", f"v_lshlrev_b32 {vr(T0+2)}, 2, {vr(T0+2)}",
         f"s_lshl_b32 {sr(sA)}, {sr(sW)}, 8", f"s_add_u32 {sr(sC)}, {sr(sA)}, {XCH}", f"s_sub_u32 {sr(sD)}, {XCH+768}, {sr(sA)}",
         f"v_add_u32 {vr(T0+3)}, {sr(sC)}, {vr(T0+2)}", f"v_add_u32 {vr(T0+2)}, {sr(sD)}, {vr(T0+2)}",
         f"ds_write_b32 {vr(T0+3)}, {vr(MN+8)}", f"ds_write_b32 {vr(T0+3)}, {vr(MN+12)} offset:64",
         f"ds_write_b32 {vr(T0+3)}, {vr(LR+2)} offset:128", f"ds_write_b32 {vr(T0+3)}, {vr(LR+3)} offset:192"]
    return [Op(s, at=at + 0.001 * k) for k, s in enumerate(T)]
def xch_read(at):
    t = TMP
    T = [f"ds_read_b32 {vr(t)}, {vr(T0+2)}", f"ds_read_b32 {vr(t+1)}, {vr(T0+2)} offset:64",
         f"ds_read_b32 {vr(t+2)}, {vr(T0+2)} offset:128", f"ds_read_b32 {vr(t+3)}, {vr(T0+2)} offset:192"]
    for j in range(2):
        m = t + 4 + 2 * j
        T += [f"v_min_f32 {vr(m)}, {vr(MN+4*j)}, {vr(t+j)}",
              f"v_sub_f32 {vr(FF+j)}, {vr(m)}, {vr(MN+4*j)}", f"v_sub_f32 {vr(FF+2+j)}, {vr(m)}, {vr(t+j)}",
              f"v_exp_f32 {vr(FF+j)}, {vr(FF+j)}", f"v_exp_f32 {vr(FF+2+j)}, {vr(FF+2+j)}",
              f"v_mul_f32 {vr(m)}, {vr(FF+j)}, {vr(LR+j)}", f"v_fma_f32 {vr(m)}, {vr(FF+2+j)}, {vr(t+2+j)}, {vr(m)}",
              f"v_rcp_f32 {vr(m)}, {vr(m)}", f"v_mul_f32 {vr(m)}, {sr(sOMG)}, {vr(m)}",
              f"v_mul_f32 {vr(FF+j)}, {vr(FF+j)}, {vr(m)}", f"v_mul_f32 {vr(FF+2+j)}, {vr(FF+2+j)}, {vr(m)}"]
    return [Op(s, at=at + 0.001 * k) for k, s in enumerate(T)]
PM = SB[1]
def last_post(at):
    ops = xch_read(at) + pbuild_pre(sWE, at + 1)
    for j in range(2): ops += pbuild(j, PM + 4 * j, sWE, 64 * j, at + 2 + j, PM + 8 + 4 * j)
    for o in ops:
        if o.kind == "R" and o.at >= at + 1: o.meta["wsrc"] = True
    return ops
def last():
    p = 1
    ops = softmax(0, KT1[:1], 0, 3, ()) + [Bar("Z2", 4)] + duty("X", 5, 18) + vreads(p, 5, 24)
    ops += softmax(0, KT1[1:], 4, 20, ())
    ops += check(p, 22)
    ops += lreduce(range(4), 23) + xch_write(24)
    m = pv(p, range(4), list(range(24, 72)))
    ops += m[:16] + [Bar("Z1", 40)] + m[16:] + last_post(41)
    return finish(ops, "LAST", order="list")
def lastx():
    fin = sw3_fin()
    ops = fin[:15] + [Bar("Z2", 4)] + duty("X", 5, 18) + fin[15:]
    ops += [Op(f"v_mov_b32 {vr(MN+r)}, {f32(1e30)}", at=5) for r in (0, 4, 8, 12)]
    ops += [Op(f"v_mov_b32 {vr(LR+r)}, 0", at=5) for r in range(4)]
    ops += xch_write(6) + [Bar("Z1", 40)]
    ops += [Op(f"v_mov_b32 {vr(OV+r)}, 0", at=41) for r in range(96)]
    ops += [Op(f"v_accvgpr_write_b32 {ar(r)}, 0", at=41) for r in range(96)]
    ops += last_post(41)
    return finish(ops, "LASTX", order="list")
def final():
    ops = []
    for j in range(2):
        for r in range(0, 48, 2): ops.append(Op(pkmul(OV + 48*j + r, OV + 48*j + r, FF + j), at=0))
    A = TMP
    for j, s in enumerate((sV0, sV1)):
        ops += [Op(f"s_sub_u32 {sr(sA)}, {sr(s)}, {sr(sRING)}", at=0), Op(f"s_sub_u32 {sr(sA)}, {sr(sA)}, {2*TILE}", at=0)]
        ops += [Op(f"v_add_u32 {vr(A+4*j+k)}, {sr(sA)}, {vr(VA+k)}", at=0) for k in range(4)]
    ops += [Op(f"v_mbcnt_lo_u32_b32 {vr(T0)}, -1, 0", at=0), Op(f"v_mbcnt_hi_u32_b32 {vr(T0)}, -1, {vr(T0)}", at=0),
            Op(f"v_lshlrev_b32 {vr(T0)}, 4, {vr(T0)}", at=0)]
    for k, s in enumerate((sV0, sV1, sPV0, sPV1)): ops.append(Op(f"v_add_u32 {vr(T0+1+k)}, {sr(s)}, {vr(T0)}", at=0))
    ops.append(Bar("Z3", 1))
    for j in range(2):
        pm = pvmem(OV + 48 * j, PM + 4 * j, A + 4 * j, 0, QA, 24, 4 + 14 * j, 16 + 14 * j, (lambda c, j=j: c.plan.vl(c.w, j)), k0=12 * j)
        for o in pm:
            if o.kind == "R": o.tag = f"PM{j}"
        ops += pm
    for j in range(2):
        ops.append(Wait(f"PM{j}", 18 + 14 * j)); w = ops[-1]
        for dt in range(12):
            ops.append(Op(f"ds_write_b128 {vr(T0+1+j)}, {ar(48*j+4*dt,4)} offset:{1024*dt}", at=18 + 14 * j, after=[w],
                          meta=dict(hw=lambda c, j=j: (c.plan.vl(c.w, j)[0], ("XO", c.w, j)))))
    ops.append(Bar("Z4", 40))
    LB = MV + 48
    land = [96 + 4 * k for k in range(8)] + [144 + 4 * k for k in range(12)]
    k = 0
    for j in range(2):
        for dt in range(12):
            r = land[k % len(land)]; k += 1
            ops.append(Op(f"ds_read_b128 {vr(r,4)}, {vr(T0+3+j)} offset:{1024*dt}", at=41,
                          meta=dict(src=lambda c, j=j: (c.plan.vl(3 - c.w, j)[0], ("XO", 3 - c.w, j)))))
            o = OV + 48 * j + 4 * dt
            ops += [Op(pkfma(o, r, FF + 2 + j, o), at=42 + k * 0.01), Op(pkfma(o + 2, r + 2, FF + 2 + j, o + 2), at=42 + k * 0.01)]
        ops += [Op(f"s_add_u32 {sr([sA,sC][j])}, {sr(sB_)}, {j*6144}", at=41)] + outstore(OV + 48 * j, [sA, sC][j], 42.1 + 0.12 * j, 42.2 + 0.12 * j)
    return finish(ops, "FINAL", order="list")

def routine(p):
    so, sn = 1 - p, p
    L = [f"L_rt{p}:", "s_nop 7"]
    x, t, al = T0, T0 + 1, T0 + 2
    for qb in range(4):
        a, b = St(so, 0, qb), St(so, 1, qb)
        L += [f"v_cmp_lt_f32 vcc, {sr(sTHR)}, {vr(LS+qb)}", "s_nop 1", f"s_cbranch_vccz L_rs{p}_{qb}"]
        L += [f"v_max3_f32 {vr(x)}, {vr(a)}, {vr(a+1)}, {vr(a+2)}", f"v_max3_f32 {vr(t)}, {vr(a+3)}, {vr(b)}, {vr(b+1)}",
              f"v_max3_f32 {vr(x)}, {vr(x)}, {vr(b+2)}, {vr(b+3)}", f"v_max3_f32 {vr(x)}, {vr(x)}, {vr(t)}, 0"]
        L += xlane("v_max_f32", x, t, 0)
        L += [f"v_exp_f32 {vr(al)}, -{vr(x)}"]
        for base in (a, b, St(sn, 0, qb), St(sn, 1, qb), MN + 4 * qb):
            L += [f"v_sub_f32 {vr(base+r)}, {vr(base+r)}, {vr(x)}" for r in range(4)]
        L += [f"v_mul_f32 {vr(LR+qb)}, {vr(LR+qb)}, {vr(al)}"]
        for r in range(48):
            if qb < 2: L += [f"v_mul_f32 {vr(OV+48*qb+r)}, {vr(OV+48*qb+r)}, {vr(al)}"]
            else:
                q = 48 * (qb - 2) + r
                L += [f"v_accvgpr_read_b32 {vr(t)}, {ar(q)}", f"v_mul_f32 {vr(t)}, {vr(t)}, {vr(al)}", f"v_accvgpr_write_b32 {ar(q)}, {vr(t)}"]
        L += sorted(softmax(so, [(0, qb), (1, qb)], 0, 7, (qb,)), key=lambda o: o.at)
        L += [f"L_rs{p}_{qb}:"]
    rare = rawfin(L)
    H = [f"L_ev{p}:", f"s_cmp_eq_u32 {sr(sT)}, {sr(sNEV)}", f"s_cbranch_scc0 L_ret{p}",
         f"s_and_b32 {sr(sA)}, {sr(sREC)}, 0xff000", f"s_bfe_u32 {sr(sC)}, {sr(sREC)}, 0x40014",
         f"s_bitcmp1_b32 {sr(sREC)}, 10", f"s_cbranch_scc1 L_ld{p}",
         f"s_bitcmp1_b32 {sr(sREC)}, 11", f"s_cbranch_scc0 L_nw{p}", "s_waitcnt vmcnt(0)", f"L_nw{p}:",
         f"s_sub_u32 {sr(sA)}, {sr(sA)}, {sr(sRING)}",
         f"v_add_u32 {vr(T0)}, {sr(sA)}, {vr(KA)}", f"v_add_u32 {vr(T0+1)}, {sr(sA)}, {vr(KA+1)}"]
    land = [SB[so] + 4 * k for k in range(8)] + [PB[sn] + 4 * k for k in range(4)]
    RD = []
    for n in range(12):
        kt, s = n // 6, n % 6
        RD.append(Op(f"ds_read_b128 {vr(land[n],4)}, {vr(T0+(s&1))} offset:{kt*6144+(s>>1)*1024}", meta=dict(src=lambda c: (c.ev[3], ("MK", c.ev[4])))))
    H2 = [f"v_mbcnt_lo_u32_b32 {vr(T0+2)}, -1, 0", f"v_mbcnt_hi_u32_b32 {vr(T0+2)}, -1, {vr(T0+2)}",
          f"v_and_b32 {vr(T0+2)}, 15, {vr(T0+2)}", f"v_lshlrev_b32 {vr(T0+2)}, 2, {vr(T0+2)}",
          f"s_lshl_b32 {sr(sC)}, {sr(sC)}, 6", f"s_add_u32 {sr(sC)}, {sr(sC)}, {WB}", f"v_add_u32 {vr(T0+2)}, {sr(sC)}, {vr(T0+2)}",
          f"s_bfe_u32 {sr(sD)}, {sr(sREC)}, 0x20008"]
    for qb in range(1, 4): H2 += [f"s_cmp_eq_u32 {sr(sD)}, {qb}", f"s_cbranch_scc1 L_e{p}_{qb}"]
    head = raw(H) + RD + raw(H2)
    E = []
    for qb in range(4):
        B = [f"L_e{p}_{qb}:"]
        for n in range(12):
            kt, s = n // 6, n % 6
            d = vr(TMP + 4 * kt, 4)
            B += [f"s_waitcnt lgkmcnt({11-n})", f"v_mfma_f32_16x16x32_bf16 {d}, {vr(land[n],4)}, {Qreg(qb,s)}, {d if s else '0'}"]
        if qb < 3: B += [f"s_branch L_ex{p}"]
        E.append(raw(B))
    X = [f"L_ex{p}:", "s_nop 7"]
    for r in range(4): X += [f"v_sub_f32 {vr(TMP+r)}, {vr(TMP+r)}, {vr(TMP+4+r)}"]
    for r in range(1, 4): X += [f"v_cndmask_b32 {vr(TMP)}, {vr(TMP)}, {vr(TMP+r)}, {sr(sRM+2*(r-1),2)}"]
    X += [f"s_mov_b64 exec, {sr(sDL,2)}", Op(f"ds_write_b32 {vr(T0+2)}, {vr(TMP)}", meta=dict(wdst=True)), "s_mov_b64 exec, -1",
          f"L_nx{p}:", "s_waitcnt lgkmcnt(0)", f"s_add_u32 {sr(sEI)}, {sr(sEI)}, 1", "s_nop 0",
          f"v_readlane_b32 {sr(sREC)}, {vr(EV)}, {sr(sEI)}", "s_nop 1", f"s_and_b32 {sr(sNEV)}, {sr(sREC)}, 0xff", f"s_sub_u32 {sr(sNEV)}, {sr(sNEV)}, 1",
          f"s_branch L_ev{p}"]
    LD = [f"L_ld{p}:", f"s_mov_b32 {sr(sM0)}, m0", f"s_lshl_b32 {sr(sC)}, {sr(sC)}, 7", f"s_lshl_b32 {sr(sD)}, {sr(sU)}, 6",
          f"s_sub_u32 {sr(sC)}, {sr(sC)}, {sr(sD)}", f"v_add_u32 {vr(T0)}, {sr(sC)}, {vr(LTB)}",
          f"ds_read_b64 {vr(TMP,2)}, {vr(T0)}", f"ds_read_b64 {vr(TMP+2,2)}, {vr(T0)} offset:64", f"s_mov_b64 {sr(sG,2)}, {sr(bMK,2)}",
          "s_waitcnt lgkmcnt(0)"]
    LD += [f"v_add_u32 {vr(TMP+k)}, {vr(PAT)}, {vr(TMP+k)}" for k in range(4)]
    for nb in range(2):
        for a in range(3):
            LD += [f"s_add_u32 m0, {sr(sA)}, {nb*6144+896*a}", "s_nop 0"]
            for rg in range(2):
                LD.append(Op(f"buffer_load_dwordx4 {vr(TMP+2*nb+rg)}, {sr(sG,4)}, 0 offen offset:{rg*3072+a*128} {NTMOD} lds",
                             meta=dict(dma=lambda c: (c.ev[3], ("MK", c.ev[4])))))
    LD += [f"s_mov_b32 m0, {sr(sM0)}", f"s_branch L_nx{p}"]
    RET = [f"L_ret{p}:", "s_nop 1", f"s_setpc_b64 {sr(sRET,2)}"]
    return dict(rare=rare, head=head, E=E, X=rawfin(X), LD=raw(LD), RET=raw(RET))

def lanemask(fn):
    m = 0
    for l in range(64):
        if fn(l & 15, l >> 4): m |= 1 << l
    return m
def smov64(r, m): return [f"s_mov_b32 {sr(r)}, 0x{m & 0xffffffff:08x}", f"s_mov_b32 {sr(r+1)}, 0x{m >> 32:08x}"]
def desc_word(d):
    if d is None: return 16 * 128 | (15 * 3) << 12 | 255 << 20
    kind, src, dest = d
    if kind in ("K", "V"): return 16 * 128 | (dest * 3) << 12 | (src * 3) << 20
    return src * 128 | (dest * 3) << 12 | (1 << 29) | ((1 << 28) if kind == "MV" else 0)
def rec_word(e):
    t, typ, qb, slot, entry, wv = e
    return (t + 1) | qb << 8 | typ << 10 | wv << 11 | (slot * 3) << 12 | entry << 20

def interleave(A, B):
    out = []; n = len(A)
    for k, g in enumerate(A):
        out += g; out += B[len(B) * k // n: len(B) * (k + 1) // n]
    return out

def prologue(plans):
    KB = 84
    l, c_, g_ = T0, T0 + 1, T0 + 2
    t1, t2, t3, t4 = T0 + 3, T0 + 4, T0 + 5, T0 + 6
    H = ["s_cmp_ge_u32 s2, 256", "s_cbranch_scc1 L_end",
         f"s_load_dwordx16 s[{KB}:{KB+15}], s[0:1], 0", "s_load_dwordx2 s[100:101], s[0:1], 72"]
    if STAMP: H += ["s_memtime s[60:61]", "s_memrealtime s[62:63]"]
    H += [f"v_lshrrev_b32 {vr(t1)}, 6, v0", f"v_and_b32 {vr(l)}, 63, v0", f"v_readfirstlane_b32 {sr(sW)}, {vr(t1)}",
          "s_and_b32 s3, s2, 7", "s_lshl_b32 s3, s3, 2", f"s_bfe_u32 {sr(sI)}, s2, 0x20003", f"s_add_u32 s3, s3, {sr(sI)}",
          f"s_lshr_b32 {sr(sI)}, s2, 5", f"s_and_b32 {sr(sU)}, {sr(sW)}, 1",
          f"v_lshrrev_b32 {vr(t2)}, 3, {vr(l)}", f"v_and_b32 {vr(t3)}, 6, {vr(t2)}", f"v_and_b32 {vr(t4)}, 7, {vr(l)}",
          f"v_xor_b32 {vr(t3)}, {vr(t3)}, {vr(t4)}", f"v_lshlrev_b32 {vr(PAT)}, 4, {vr(t3)}",
          f"v_mul_u32_u24 {vr(XV)}, 384, {vr(t2)}", f"v_add3_u32 {vr(XV)}, {vr(XV)}, {vr(PAT)}, 0", f"v_add_u32 {vr(XV)}, 3072, {vr(XV)}",
          f"s_sub_u32 {sr(sT)}, 15, {sr(sI)}", f"s_cmp_lt_u32 {sr(sW)}, 2", f"s_cselect_b32 {sr(sT)}, {sr(sT)}, {sr(sI)}",
          f"s_lshl_b32 {sr(sT)}, {sr(sT)}, 1", f"s_add_u32 {sr(sT)}, {sr(sT)}, {sr(sU)}",
          f"s_mul_i32 {sr(sEXIT)}, s3, 786432",
          f"s_mul_i32 {sr(sUA)}, {sr(sW)}, 3072",
          "s_waitcnt lgkmcnt(0)"]
    if STAMP: H += [f"v_mov_b32 {vr(STV)}, 0", f"v_mov_b32 {vr(STV+1)}, 0", f"v_writelane_b32 {vr(STV)}, s60, 0", f"v_writelane_b32 {vr(STV+1)}, s62, 0", f"s_mov_b32 {sr(sST)}, 1"]
    for b, ka in ((bK, KB + 2), (bQ, KB), (bV, KB + 4), (bMK, KB + 6), (bMV, KB + 8)):
        H += [f"s_add_u32 {sr(b)}, {sr(ka)}, {sr(sEXIT)}", f"s_addc_u32 {sr(b+1)}, {sr(ka+1)}, 0",
              f"s_sub_u32 {sr(b)}, {sr(b)}, 3072", f"s_subb_u32 {sr(b+1)}, {sr(b+1)}, 0"]
    for s, b in ((sX, bK), (sY, bV), (sG, bQ)):
        H += [f"s_mov_b64 {sr(s,2)}, {sr(b,2)}", f"s_mov_b32 {sr(s+2)}, {786432+3072}", f"s_mov_b32 {sr(s+3)}, 0x20000"]
    H += [f"s_lshl_b32 {sr(sN)}, s3, 14", f"s_lshl_b32 {sr(sSOX)}, {sr(sT)}, 9", f"s_add_u32 {sr(sN)}, {sr(sN)}, {sr(sSOX)}",
          f"v_lshl_add_u32 {vr(t1)}, {vr(l)}, 3, {sr(sN)}", f"s_lshl_b32 {sr(sN)}, s3, 1", f"v_mov_b32 {vr(t2)}, {sr(sN)}",
          f"s_mul_i32 {sr(sSOY)}, {sr(sT)}, 24576"]
    def tile4(srd, blk, slot, kind):
        G = []
        for a in range(3):
            G.append([f"s_add_u32 m0, {sr(sUA)}, {slot*TILE+896*a}", f"s_add_u32 {sr(sSOX)}, {sr(sUA)}, {blk*TILE}",
                      Op(f"buffer_load_dwordx4 {vr(XV)}, {sr(srd,4)}, {sr(sSOX)} offen offset:{128*a} {NTMOD} lds", meta=dict(dma=lambda c: (slot, (kind, blk))))])
        return G
    def qblk(j):
        G = []
        for a in range(3):
            for rg in range(2):
                pre = [f"s_add_u32 m0, {sr(sMY)}, {j*6144+896*a}", f"s_add_u32 {sr(sSOX)}, {sr(sSOY)}, {j*6144}"] if rg == 0 else []
                G.append(pre + [Op(f"buffer_load_dwordx4 {vr(XV)}, {sr(sG,4)}, {sr(sSOX)} offen offset:{rg*3072+128*a} {NTMOD} lds", tag=f"Q{j}",
                                   meta=dict(dma=lambda c: (4 + 2 * c.w + (j >> 1), ("Q", c.w, j)), cnt=6))])
        return G
    H += [f"s_mul_i32 {sr(sMY)}, {sr(sW)}, {2*TILE}", f"s_add_u32 {sr(sMY)}, {sr(sMY)}, {4*TILE}"]
    for g in tile4(sX, 0, 12, "K") + qblk(0): H += g
    H += [f"global_load_dwordx2 {vr(YV,2)}, {vr(t1)}, {sr(KB+10,2)}", f"global_load_ushort {vr(CHK)}, {vr(t2)}, {sr(KB+12,2)}"]
    A = [f"s_add_u32 {sr(sOUT)}, {sr(KB+14)}, {sr(sEXIT)}", f"s_addc_u32 {sr(sOUT+1)}, {sr(KB+15)}, 0", f"s_mov_b32 {sr(sOUT+2)}, 786432", f"s_mov_b32 {sr(sOUT+3)}, 0x20000",
         f"s_mul_i32 {sr(sN)}, s2, 49152", f"s_add_u32 {sr(sN)}, {sr(sN)}, 0x1000000", f"s_add_u32 {sr(sWS)}, s100, {sr(sN)}", f"s_addc_u32 {sr(sWS+1)}, s101, 0",
         f"s_mov_b32 {sr(sWS+2)}, 49152", f"s_mov_b32 {sr(sWS+3)}, 0x20000"]
    Aend = len(A)
    A += [f"v_and_b32 {vr(c_)}, 15, {vr(l)}", f"v_lshrrev_b32 {vr(g_)}, 4, {vr(l)}",
          f"v_lshrrev_b32 {vr(t1)}, 3, {vr(c_)}", f"v_mul_u32_u24 {vr(t1)}, 3072, {vr(t1)}", f"v_and_b32 {vr(t2)}, 7, {vr(c_)}",
          f"v_lshl_add_u32 {vr(t1)}, {vr(t2)}, 7, {vr(t1)}", f"v_and_b32 {vr(t3)}, 6, {vr(c_)}"]
    for j in range(2): A += [f"v_or_b32 {vr(t2)}, {4*j}, {vr(g_)}", f"v_xor_b32 {vr(t2)}, {vr(t2)}, {vr(t3)}", f"v_lshl_add_u32 {vr(KA+j)}, {vr(t2)}, 4, {vr(t1)}"]
    A += [f"v_bfe_u32 {vr(t2)}, {vr(l)}, 2, 3", f"v_lshrrev_b32 {vr(t1)}, 5, {vr(l)}", f"v_mul_u32_u24 {vr(t1)}, 3072, {vr(t1)}",
          f"v_lshl_add_u32 {vr(t1)}, {vr(t2)}, 7, {vr(t1)}", f"v_and_b32 {vr(t3)}, 1, {vr(l)}", f"v_lshl_add_u32 {vr(t1)}, {vr(t3)}, 3, {vr(t1)}",
          f"v_add_u32 {vr(t1)}, {2*TILE}, {vr(t1)}", f"v_and_b32 {vr(t2)}, 6, {vr(t2)}", f"v_bfe_u32 {vr(t3)}, {vr(l)}, 1, 1"]
    for x in range(4): A += [f"v_or_b32 {vr(t4)}, {2*x}, {vr(t3)}", f"v_xor_b32 {vr(t4)}, {vr(t4)}, {vr(t2)}", f"v_lshl_add_u32 {vr(VA+x)}, {vr(t4)}, 4, {vr(t1)}"]
    A += [f"v_mul_u32_u24 {vr(OFF)}, 384, {vr(c_)}", f"v_and_b32 {vr(t1)}, 1, {vr(g_)}", f"v_lshl_add_u32 {vr(OFF)}, {vr(t1)}, 5, {vr(OFF)}",
          f"v_lshrrev_b32 {vr(t1)}, 1, {vr(g_)}", f"v_lshl_add_u32 {vr(OFF)}, {vr(t1)}, 4, {vr(OFF)}",
          f"v_lshrrev_b32 {vr(t1)}, 3, {vr(l)}", f"s_lshl_b32 {sr(sN)}, {sr(sU)}, 6", f"s_add_u32 {sr(sN)}, {sr(sN)}, {TB}", f"v_lshl_add_u32 {vr(LTB)}, {vr(t1)}, 3, {sr(sN)}"]
    for r in range(4): A += smov64(sDM + 2 * r, lanemask(lambda c, g: 4 * g + r > c))
    for r in range(1, 4): A += smov64(sRM + 2 * (r - 1), lanemask(lambda c, g: (c & 3) == r))
    A += smov64(sDL, lanemask(lambda c, g: g == c >> 2))
    for pp in range(2): A += smov64(sPM + 2 * pp, lanemask(lambda c, g: g == c >> 2 and ((c & 3) >> 1) == pp))
    A += [f"s_mov_b32 {sr(sTHR)}, {f32(THR)}"]
    A += [f"v_accvgpr_write_b32 {ar(r)}, 0" for r in range(96)]
    B = [f"s_lshl_b32 {sr(sN)}, {sr(sI)}, 2", f"s_add_u32 {sr(sNEV)}, {sr(sN)}, 2",
         f"s_lshl_b32 {sr(sN)}, {sr(sU)}, 1", f"s_add_u32 {sr(sN)}, {sr(sN)}, {sr(sNEV)}",
         f"s_mov_b32 {sr(sWX)}, {(-3<<20) & 0xffffffff}", f"s_mov_b32 {sr(sTX)}, {desc_word(('K',63,4))}", f"s_mov_b32 {sr(sTY)}, {desc_word(('V',65,6))}",
         f"s_cmp_lt_u32 {sr(sW)}, 2",
         f"s_cselect_b32 {sr(sWX)}, {3<<20}, {sr(sWX)}",
         f"s_cselect_b32 {sr(sTX)}, {desc_word(('K',4,0))}, {sr(sTX)}",
         f"s_cselect_b32 {sr(sTY)}, {desc_word(('V',2,2))}, {sr(sTY)}",
         f"s_cselect_b32 {sr(sWY)}, 0, {sr(sNEV)}"]
    B0 = B
    B = [
         f"v_mul_lo_u32 {vr(t1)}, {vr(l)}, {sr(sWX)}", f"v_and_b32 {vr(t2)}, 1, {vr(l)}", f"v_mul_u32_u24 {vr(t2)}, {3<<12}, {vr(t2)}",
         f"v_add_u32 {vr(t1)}, {vr(t1)}, {vr(t2)}", f"v_add_u32 {vr(DX)}, {sr(sTX)}, {vr(t1)}", f"v_add_u32 {vr(DY)}, {sr(sTY)}, {vr(t1)}",
         f"v_mov_b32 {vr(t3)}, {desc_word(None)}",
         f"v_cmp_gt_u32 vcc, {sr(sWY)}, {vr(l)}", f"v_cndmask_b32 {vr(DY)}, {vr(DY)}, {vr(t3)}, vcc",
         f"v_cmp_lt_u32 vcc, 31, {vr(l)}", f"v_cndmask_b32 {vr(DY)}, {vr(DY)}, {vr(t3)}, vcc",
         f"v_add_u32 {vr(t2)}, 2, {vr(l)}", f"v_cmp_gt_u32 vcc, {sr(sWY)}, {vr(t2)}", f"v_cndmask_b32 {vr(DX)}, {vr(DX)}, {vr(t3)}, vcc",
         f"v_cmp_lt_u32 vcc, 29, {vr(l)}", f"v_cndmask_b32 {vr(DX)}, {vr(DX)}, {vr(t3)}, vcc",
         f"v_mov_b32 {vr(EV)}, 0xff"]
    B += [f"v_mov_b32 {vr(OV+r)}, 0" for r in range(96)]
    B += [f"v_mov_b32 {vr(LR+r)}, 0" for r in range(4)]
    Tb = [f"v_mul_u32_u24 {vr(YV)}, 384, {vr(YV)}", f"v_mul_u32_u24 {vr(YV+1)}, 384, {vr(YV+1)}",
          f"v_bfe_u32 {vr(t1)}, {vr(l)}, 3, 1", f"v_xor_b32 {vr(t2)}, 1, {vr(t1)}", f"v_mul_u32_u24 {vr(t2)}, 3072, {vr(t2)}",
          f"v_add_u32 {vr(YV)}, {vr(YV)}, {vr(t2)}", f"v_add_u32 {vr(YV+1)}, {vr(YV+1)}, {vr(t2)}",
          f"v_and_b32 {vr(t2)}, 7, {vr(l)}", f"v_lshlrev_b32 {vr(t2)}, 3, {vr(t2)}", f"v_lshl_add_u32 {vr(t2)}, {vr(t1)}, 2, {vr(t2)}",
          f"v_lshl_add_u32 {vr(t2)}, {vr(g_)}, 7, {vr(t2)}", f"s_lshl_b32 {sr(sWX)}, {sr(sW)}, 9", f"s_add_u32 {sr(sWX)}, {sr(sWX)}, {TB}",
          f"v_add_u32 {vr(t2)}, {sr(sWX)}, {vr(t2)}", f"ds_write_b32 {vr(t2)}, {vr(YV)}", f"ds_write_b32 {vr(t2)}, {vr(YV+1)} offset:64",
          f"v_bfe_u32 {vr(t1)}, {vr(l)}, 4, 1", f"v_bfe_u32 {vr(t3)}, {vr(l)}, 1, 3", f"v_lshl_add_u32 {vr(t1)}, {vr(t1)}, 4, {vr(t3)}",
          f"v_mul_u32_u24 {vr(t1)}, 384, {vr(t1)}", f"v_add_u32 {vr(t1)}, 3072, {vr(t1)}",
          f"v_and_b32 {vr(t3)}, 31, {vr(l)}", f"v_lshlrev_b32 {vr(t3)}, 2, {vr(t3)}", f"v_add_u32 {vr(t3)}, {TB+2048}, {vr(t3)}", f"ds_write_b32 {vr(t3)}, {vr(t1)}",
          f"v_lshlrev_b32 {vr(CHK)}, 16, {vr(CHK)}", f"v_mul_f32 {vr(CHK)}, {f32(-1.4426950408889634)}, {vr(CHK)}", f"v_exp_f32 {vr(CHK)}, {vr(CHK)}",
          f"v_add_f32 {vr(CHK)}, 1.0, {vr(CHK)}", f"v_rcp_f32 {vr(CHK)}, {vr(CHK)}", f"v_cvt_pk_bf16_f32 {vr(CHK)}, {vr(CHK)}, {vr(CHK)}",
          f"v_and_b32 {vr(CHK)}, 0xffff0000, {vr(CHK)}", f"v_sub_f32 {vr(TA)}, 1.0, {vr(CHK)}", f"v_cvt_pk_bf16_f32 {vr(TA)}, {vr(TA)}, {vr(TA)}",
          f"v_and_b32 {vr(TA)}, 0xffff0000, {vr(TA)}", f"v_readfirstlane_b32 {sr(sG_)}, {vr(CHK)}", f"v_readfirstlane_b32 {sr(sOMG)}, {vr(TA)}"]
    if NOMEM: Tb += [f"s_mov_b32 {sr(sG_)}, 0"]
    seq = H + A[:Aend] + interleave(qblk(1), A[Aend:]) + B0 + interleave(qblk(2) + tile4(sX, 1, 1, "K"), B + Tb)
    cval = f32(192 ** -0.5 * 1.4426950408889634)
    seq += [f"s_mov_b32 {sr(sCP)}, {cval}", f"s_mov_b32 {sr(sCP+1)}, {cval}", f"s_mov_b32 {sr(sRING)}, 0", f"s_mov_b32 {sr(sROW)}, {sr(sSOY)}",
            f"v_add_u32 {vr(t1)}, {sr(sMY)}, {vr(KA)}", f"v_add_u32 {vr(t2)}, {sr(sMY)}, {vr(KA+1)}", f"v_lshlrev_b32 {vr(t3)}, 4, {vr(l)}",
            f"s_mul_i32 {sr(sB_)}, {sr(sW)}, 24576"]
    def presc(j):
        Z = SB[0] + 24 * (j & 1)
        G = [WaitVM(f"Q{j}", 0)]
        for s in range(6):
            G.append(Op(f"ds_read_b128 {vr(Z+4*s,4)}, {vr(t1+(s&1))} offset:{j*6144+(s>>1)*1024}",
                        meta=dict(src=lambda c: (4 + 2 * c.w + (j >> 1), ("Q", c.w, j)), needvm=f"Q{j}", cnt=6)))
        for r in range(0, 24, 2):
            for q in range(2):
                tt = TMP + 2 * q + 4 * ((r >> 1) & 1)
                G += [f"v_lshlrev_b32 {vr(tt)}, 16, {vr(Z+r+q)}", f"v_and_b32 {vr(tt+1)}, 0xffff0000, {vr(Z+r+q)}"]
            for q in range(2):
                tt = TMP + 2 * q + 4 * ((r >> 1) & 1)
                G += [f"v_pk_mul_f32 {vr(tt,2)}, {vr(tt,2)}, {sr(sCP,2)}"]
            for q in range(2):
                tt = TMP + 2 * q + 4 * ((r >> 1) & 1)
                G += [f"v_cvt_pk_bf16_f32 {vr(Z+r+q)}, {vr(tt)}, {vr(tt+1)}"]
            for q in range(2): G += [f"v_accvgpr_write_b32 {ar(QA+24*j+r+q)}, {vr(Z+r+q)}"]
            if r & 2:
                s = r >> 2
                if s % 3 == 0: G += [f"s_add_u32 {sr(sA)}, {sr(sB_)}, {(6*j+s)*1024}"]
                G += [Op(f"buffer_store_dwordx4 {vr(Z+4*s,4)}, {vr(t3)}, {sr(sWS,4)}, {sr(sA)} offen offset:{(s%3)*1024}", tag="QS")]
        return G
    p0, p1 = presc(0), presc(1)
    seq += p0[:7] + interleave(qblk(3), p0[7:])
    seq += p1[:7] + interleave(tile4(sY, 0, 2, "V") + tile4(sX, 2, 0, "K") + tile4(sY, 1, 3, "V"), p1[7:])
    seq += presc(2) + presc(3)
    seq += [f"s_mul_i32 {sr(sUA)}, {sr(sU)}, 6144", f"s_add_u32 {sr(sUA+1)}, {sr(sUA)}, 896", f"s_add_u32 {sr(sUA+2)}, {sr(sUA)}, 1792",
            f"s_sub_u32 {sr(sB_)}, 3, {sr(sW)}", f"s_mul_i32 {sr(sB_)}, {sr(sB_)}, 24576"]
    main = rawfin(seq)
    blocks = {}
    disp = [f"s_lshl_b32 {sr(sA)}, {sr(sI)}, 2", f"s_add_u32 {sr(sA)}, {sr(sA)}, {sr(sW)}"]
    for i in range(8):
        for w in range(4):
            pl = plans[i]; Bk = [f"L_cfg{i}_{w}:"]
            for ch, dv, sh in (("X", DX, -1), ("Y", DY, 0)):
                for t, d in sorted(pl.chan[w >> 1][ch].items()):
                    if d[0] in ("MK", "MV") or (ch == "X" and t == 0):
                        Bk += [f"s_mov_b32 {sr(sC)}, {desc_word(d)}", f"v_writelane_b32 {vr(dv)}, {sr(sC)}, {(t+sh) % 64}"]
            for k, e in enumerate(pl.events[w]):
                Bk += [f"s_mov_b32 {sr(sC)}, {rec_word(e)}", f"v_writelane_b32 {vr(EV)}, {sr(sC)}, {k}"]
            ex, xk = pl.exit1(w)
            Bk += [f"s_mov_b32 {sr(sEXIT)}, {ex}", f"s_mov_b32 {sr(sXK)}, {xk}",
                   f"s_mov_b32 {sr(sV0)}, {pl.vl(w,0)[0]*TILE}", f"s_mov_b32 {sr(sV1)}, {pl.vl(w,1)[0]*TILE}",
                   f"s_mov_b32 {sr(sPV0)}, {pl.vl(3-w,0)[0]*TILE}", f"s_mov_b32 {sr(sPV1)}, {pl.vl(3-w,1)[0]*TILE}",
                   f"s_mov_b32 {sr(sWE)}, {WB + pl.vl(w,0)[1][1]*64}", "s_branch L_cfgdone"]
            blocks[(i, w)] = raw(Bk)
            if (i, w) != (7, 3): disp += [f"s_cmp_eq_u32 {sr(sA)}, {4*i+w}", f"s_cbranch_scc1 L_cfg{i}_{w}"]
    disp += ["s_branch L_cfg7_3"]
    mid = ["L_cfgdone:", f"s_mov_b32 {sr(sEI)}, 0", f"s_mov_b32 {sr(sT)}, -1", "s_nop 0", f"v_readlane_b32 {sr(sREC)}, {vr(EV)}, 0", "s_nop 1",
           f"s_and_b32 {sr(sNEV)}, {sr(sREC)}, 0xff", f"s_sub_u32 {sr(sNEV)}, {sr(sNEV)}, 1", Bar("ZP", 0),
           Op(f"s_call_b64 {sr(sRET,2)}, L_ev1", meta=dict(evcall=1)), f"s_mov_b32 {sr(sT)}, 63"]
    p = 1
    ops = [Op(f"v_add_u32 {vr(T0+k)}, {12*TILE}, {vr(KA+k)}", at=0) for k in range(2)]
    for n in range(12):
        kt, s = n // 6, n % 6
        ops.append(Op(f"ds_read_b128 {ar(FR(24+n),4)}, {vr(T0+(s&1))} offset:{kt*6144+(s>>1)*1024}", at=0.1, meta=dict(src=lambda c: (12, ("K", 0)), gives=lambda c, kt=kt, s=s: ("K", 0, kt, s))))
    ops += decode("X", 1, 2)
    tl = [(kt, qb) for qb in range(4) for kt in range(2)]
    ops += qk(p, tl, [1] * 48, czero=range(4))
    q1 = finish(ops, "PRO_QK", order="list")
    mk = [f"s_cmp_lg_u32 {sr(sN)}, 2", "s_cbranch_scc1 L_nomask", f"s_cmp_lt_u32 {sr(sW)}, 2", "s_cbranch_scc1 L_nomask"]
    mk2 = masks(p, [(0, 0), (1, 1)], [(1, 0)], [1, 2, 3]) + [Op("L_nomask:")]
    ops = kreads(p, 0, 1)
    for qb in range(4): ops += initmax(p, qb, 0.5, T0 + 2 * (qb & 1), T0 + 1 + 2 * (qb & 1))
    ops += softmax(p, KT0, 1, 2, range(4)) + [Wait("K0", 2), Op(f"s_mov_b32 {sr(sT)}, 0", at=2)]
    q2 = [Op("s_nop 7")] + finish(ops, "PRO_SM", order="list")
    jump = raw([f"s_cmp_eq_u32 {sr(sXK)}, 2", "s_cbranch_scc1 L_diag2", f"s_cmp_lt_u32 {sr(sW)}, 2", "s_cbranch_scc0 L_loop0", Op("s_waitcnt vmcnt(0)", meta=dict(lonly=1))])
    return dict(main=main, disp=raw(disp), blocks=blocks, mid=raw(mid), q1=q1, mk=raw(mk), mk2=mk2, q2=q2, jump=jump)

def stamp_ops():
    if not STAMP: return []
    return raw(["s_memtime s[2:3]", "s_memrealtime s[0:1]", f"s_mov_b32 {sr(sM0)}, m0", "s_waitcnt lgkmcnt(0)", f"s_mov_b32 m0, {sr(sST)}",
                f"s_add_u32 {sr(sST)}, {sr(sST)}, 1", f"v_writelane_b32 {vr(STV)}, s2, m0", f"v_writelane_b32 {vr(STV+1)}, s0, m0", f"s_mov_b32 m0, {sr(sM0)}"])

def build():
    plans = [make_plan(i) for i in range(8)]
    Pc = {}
    Pc["pro"] = prologue(plans)
    Pc["loop0"] = normal(0, name="LOOP0", tail=[Op(f"s_cmp_eq_u32 {sr(sT)}, {sr(sEXIT)}", at=94), Op("s_cbranch_scc1 L_exit", at=95.2)])
    Pc["loop1"] = normal(1, name="LOOP1", tail=[Op("s_branch L_loop0", at=95.2)])
    Pc["exit"] = raw(["L_exit:", f"s_cmp_eq_u32 {sr(sT)}, 33", "s_cbranch_scc1 L_last"])
    Pc["diag1"] = normal(1, tiles=[t for t in ALLT if t != (1, 0)], diag=[(0, 0), (1, 1)], full=[(1, 0)], name="DIAG1",
                         tail=[Op(f"s_cmp_lt_u32 {sr(sW)}, 2", at=94), Op("s_cbranch_scc1 L_diag2f", at=95.2)])
    Pc["diag2"] = diag2(); Pc["sw1"] = sw1(); Pc["sw2"] = sw2()
    Pc["sw2x"] = raw([f"s_cmp_eq_u32 {sr(sT)}, 33", "s_cbranch_scc1 L_lastx"])
    Pc["sw3"] = sw3(); Pc["sw4"] = sw4()
    Pc["sw4x"] = raw([f"s_mov_b32 {sr(sEXIT)}, 33", f"s_cmp_eq_u32 {sr(sT)}, 33", "s_cbranch_scc1 L_last", "s_branch L_loop1"])
    Pc["diag2f"] = normal(0, tiles=[(0, 2), (0, 3), (1, 3)], diag=[(0, 2), (1, 3)], full=[(0, 0), (0, 1), (1, 0), (1, 1), (1, 2)], name="DIAG2F")
    Pc["last"] = last(); Pc["lastx"] = lastx()
    Pc["fpre"] = raw(["L_final:", f"s_sub_u32 {sr(sB_)}, 15, {sr(sI)}", f"s_mul_i32 {sr(sB_)}, {sr(sB_)}, 49152",
                      f"s_mov_b32 {sr(sC)}, -24576", f"s_cmp_lt_u32 {sr(sW)}, 2", f"s_cselect_b32 {sr(sA)}, 0, {3*24576+12288}", f"s_cselect_b32 {sr(sC)}, 24576, {sr(sC)}",
                      f"s_mul_i32 {sr(sC)}, {sr(sC)}, {sr(sW)}", f"s_add_u32 {sr(sB_)}, {sr(sB_)}, {sr(sA)}", f"s_add_u32 {sr(sB_)}, {sr(sB_)}, {sr(sC)}", "s_nop 7"])
    Pc["final"] = final()
    Pc["rt"] = [routine(0), routine(1)]
    return plans, Pc

def layout(Pc):
    pro = Pc["pro"]; S = stamp_ops
    seq = pro["main"] + pro["disp"] + pro["mid"] + pro["q1"] + pro["mk"] + pro["mk2"] + pro["q2"] + pro["jump"]
    seq += [Op(".p2align 6"), Op("L_loop0:")] + S() + Pc["loop0"] + [Op("L_loop1:")] + S() + Pc["loop1"]
    seq += Pc["exit"] + S() + Pc["diag1"] + [Op("L_diag2:")] + S() + Pc["diag2"] + S() + Pc["sw1"] + S() + Pc["sw2"] + Pc["sw2x"] + S() + Pc["sw3"] + S() + Pc["sw4"] + Pc["sw4x"]
    seq += [Op("L_lastx:")] + S() + Pc["lastx"] + [Op("s_branch L_final")]
    seq += [Op("L_diag2f:")] + S() + Pc["diag2f"] + [Op("L_last:")] + S() + Pc["last"] + Pc["fpre"] + S() + Pc["final"]
    if STAMP:
        seq += S() + raw(["s_waitcnt vmcnt(0)"]) + S()
        seq += raw([f"s_sub_u32 {sr(sA)}, {sr(sWS)}, s100", f"s_sub_u32 {sr(sA)}, {sr(sA)}, 0x1000000",
                    f"s_mul_hi_u32 {sr(sA)}, {sr(sA)}, {(1<<32)//49152+1}", f"s_lshl_b32 {sr(sA)}, {sr(sA)}, 2", f"s_add_u32 {sr(sA)}, {sr(sA)}, {sr(sW)}",
                    f"s_lshl_b32 {sr(sA)}, {sr(sA)}, 9", "v_mbcnt_lo_u32_b32 v0, -1, 0", "v_mbcnt_hi_u32_b32 v0, -1, v0", "v_lshlrev_b32 v0, 3, v0",
                    f"v_add_u32 v0, {sr(sA)}, v0", f"global_store_dwordx2 v0, {vr(STV,2)}, s[100:101]"])
    seq += raw(["L_end:", "s_endpgm"])
    for k, p in enumerate(sites):
        seq += raw([f"L_stub{k}:", f"s_call_b64 {sr(sRET,2)}, L_rt{p}", f"s_branch L_back{k}"])
    for p in range(2):
        r = Pc["rt"][p]
        seq += r["rare"] + r["head"] + r["E"][0] + r["E"][1] + r["E"][2] + r["E"][3] + r["X"] + r["LD"] + r["RET"]
    for k in sorted(pro["blocks"]): seq += pro["blocks"][k]
    return seq

HEADER = open("standalone__memory_aug_memorizing_tr__prompt.s.ref").read().split("; @launch")[0]
def text(seq):
    L = [HEADER.rstrip("\n"), "; @launch grid=(256,1,1) block=(256,1,1) lds=163840",
         '.amdgcn_target "amdgcn-amd-amdhsa--gfx950"', ".text", f".globl {KN}", ".p2align 8", f".type {KN},@function", f"{KN}:"]
    L += emit(seq)
    L += ['.section .rodata,"a"', ".p2align 6", f".amdhsa_kernel {KN}", "  .amdhsa_next_free_vgpr 512", "  .amdhsa_next_free_sgpr 102",
          "  .amdhsa_accum_offset 256", "  .amdhsa_group_segment_fixed_size 0", "  .amdhsa_kernarg_size 80", "  .amdhsa_user_sgpr_count 2",
          "  .amdhsa_user_sgpr_kernarg_segment_ptr 1", "  .amdhsa_system_sgpr_workgroup_id_x 1", ".end_amdhsa_kernel"]
    return "\n".join(L) + "\n"

VERB = True; STAMP = False; NOMEM = False; THR = 2.0 ** 24; STV = 224
if __name__ == "__main__":
    import argparse
    ap = argparse.ArgumentParser()
    ap.add_argument("-o", default="k.s"); ap.add_argument("--stamp", action="store_true"); ap.add_argument("--nomem", action="store_true")
    ap.add_argument("--thr", type=float, default=2.0 ** 24); ap.add_argument("-q", action="store_true")
    a = ap.parse_args()
    STAMP = a.stamp; NOMEM = a.nomem; THR = a.thr; VERB = not a.q
    plans, Pc = build()
    import trace
    trace.analyse(plans, Pc, sites, VERB)
    open(a.o, "w").write(text(layout(Pc)))
```

```python
import sys, struct, math
from core import *
from plan import make_plan, NONE

KN = "standalone__memory_aug_memorizing_tr__prompt_kernel"
OV = 0; SB = [96, 128]; PB = [160, 176]; MN = 192; LR = 208; LS = 212; TMP = 216; NT = 8
KA = 226; VA = 228; PAT = 232; LTB = 233; XV = 234; YV = 236; DX = 238; DY = 239; CHK = 240; TA = 241; EV = 242
NEG = 243; FF = 244; OFF = 248; T0 = 249
QA = 96; FRB = 192
sX, sY, sG, sOUT, sWS = 4, 8, 12, 16, 20
bK, bV, bMK, bMV, bQ = 24, 26, 28, 30, 32
sT, sEXIT, sW, sI, sN, sU = 34, 35, 36, 37, 38, 39
sUA = 40
sSOX, sMX, sSOY, sMY, sWX, sWY, sTX, sTY = 43, 44, 45, 46, 47, 48, 49, 79
sTP = 50
sTHR, sG_, sOMG = 52, 54, 55
sDM = 56
sRM = 64
sDL = 70
sPM = 72
sEF = 76
sNEV = 78
sRET = 80
sEI, sREC = 82, 83
sRING, sROW, sA, sB_, sC, sD = 84, 85, 86, 87, 88, 89
sCP = 90
sV0, sV1, sWE, sXK, sM0 = 92, 93, 94, 95, 96
sPV0, sPV1 = 97, 98
sST = 53
TILE = 12288
TB = 159744; WB = TB + 2176; XCH = TB
Z2G, Z1G = 6, 64
NTMOD = "nt"

def f32(x): return "0x%08x" % struct.unpack("<I", struct.pack("<f", x))[0]
def vr(a, n=1): return f"v{a}" if n == 1 else f"v[{a}:{a+n-1}]"
def ar(a, n=1): return f"a{a}" if n == 1 else f"a[{a}:{a+n-1}]"
def sr(a, n=1): return f"s{a}" if n == 1 else f"s[{a}:{a+n-1}]"
def FR(n): return FRB + 4 * (n % 16)
def Oreg(qb, dt): return vr(OV + 48 * qb + 4 * dt, 4) if qb < 2 else ar(48 * (qb - 2) + 4 * dt, 4)
def Qreg(qb, s): return ar(QA + 24 * qb + 4 * s, 4)
def St(p, kt, qb): return SB[p] + 16 * kt + 4 * qb
def lin(a, b, n): return [a + (b - a) * k / max(n - 1, 1) for k in range(n)]
def bc(f):
    return (vr(f, 2), (0, 0)) if f % 2 == 0 else (vr(f - 1, 2), (1, 1))
def pkmul(d, a, f):
    r, (lo, hi) = bc(f); return f"v_pk_mul_f32 {vr(d,2)}, {vr(a,2)}, {r} op_sel:[0,{lo}] op_sel_hi:[1,{hi}]"
def pkfma(d, a, f, c):
    r, (lo, hi) = bc(f); return f"v_pk_fma_f32 {vr(d,2)}, {vr(a,2)}, {r}, {vr(c,2)} op_sel:[0,{lo},0] op_sel_hi:[1,{hi},1]"

def cur_ring(c, t):
    return 4 if (c.w >= 2 and t >= c.n + 2) else 0
def ktile(c, j):
    if j > 33: return None
    if c.w >= 2 and c.n <= j < c.n + 2: return None
    r = cur_ring(c, j); return (r + (j & 1), ("K", 67 - j if r else j))
def vtile(c, j):
    r = cur_ring(c, j); return (r + 2 + (j & 1), ("V", 67 - j if r else j))
def chan(c, ch, t):
    d = c.plan.chan[c.w >> 1][ch].get(t)
    if d is None: return None
    kind, src, dest = d
    return (dest, (kind, src))

def qk(p, tiles, ats, czero=()):
    ops = []; k = 0
    for (kt, qb) in tiles:
        d = vr(St(p, kt, qb), 4)
        for s in range(6):
            c = d if s else ("0" if qb in czero else vr(MN + 4 * qb, 4))
            ops.append(Op(f"v_mfma_f32_16x16x32_bf16 {d}, {ar(FR(24*p+6*kt+s),4)}, {Qreg(qb,s)}, {c}", at=ats[k],
                          meta=dict(kt=kt, frag=lambda c, kt=kt, s=s: ("K", c.t + 1, kt, s)))); k += 1
    return ops
def pv(p, qbs, ats, czero=False):
    ops = []; k = 0
    for dt in range(12):
        for qb in qbs:
            o = Oreg(qb, dt)
            ops.append(Op(f"v_mfma_f32_16x16x32_bf16 {o}, {ar(FR(24*p+12+dt),4)}, {vr(PB[1-p]+4*qb,4)}, {'0' if czero else o}", at=ats[k],
                          meta=dict(frag=lambda c, dt=dt: ("V", c.t, dt)))); k += 1
    return ops
def vreads(p, g0, g1):
    ops = []; at = lin(g0, g1, 24)
    for dt in range(12):
        a = FR(24 * p + 12 + dt)
        for eh in range(2):
            ops.append(Op(f"ds_read_b64_tr_b16 {ar(a+2*eh,2)}, {vr(VA+(dt&3))} offset:{p*TILE + eh*6144 + (dt>>2)*1024}",
                          at=at[2*dt+eh], tag=f"V{dt}", meta=dict(src=lambda c: vtile(c, c.t), gives=lambda c, dt=dt: ("V", c.t, dt))))
    return ops
def kreads(p, g0, g1):
    ops = []; at = lin(g0, g1, 12)
    for n in range(12):
        kt, s = n // 6, n % 6
        ops.append(Op(f"ds_read_b128 {ar(FR(24*p+24+n),4)}, {vr(KA+(s&1))} offset:{p*TILE + kt*6144 + (s>>1)*1024}",
                      at=at[n], tag=f"K{kt}", meta=dict(src=lambda c: ktile(c, c.t + 2), gives=lambda c, kt=kt, s=s: ("K", c.t + 2, kt, s))))
    return ops
def softmax(sp, tiles, g0, g1, fresh, acc=LS):
    ops = []; n = 4 * len(tiles); at = lin(g0, g1, n); k = 0; fresh = set(fresh)
    for (kt, qb) in tiles:
        for r in range(4):
            t = TMP + (k % NT)
            ops.append(Op(f"v_exp_f32 {vr(t)}, {vr(St(sp,kt,qb)+r)}", at=at[k]))
            a = at[k] + 1.5
            if qb in fresh:
                if r == 1: ops.append(Op(f"v_add_f32 {vr(acc+qb)}, {vr(t-1)}, {vr(t)}", at=a)); fresh.discard(qb)
            else: ops.append(Op(f"v_add_f32 {vr(acc+qb)}, {vr(acc+qb)}, {vr(t)}", at=a))
            if r & 1: ops.append(Op(f"v_cvt_pk_bf16_f32 {vr(PB[sp]+4*qb+2*kt+(r>>1))}, {vr(t-1)}, {vr(t)}", at=a + 0.01))
            k += 1
    return ops
def duty(ch, g0, g1):
    vo, srd, so, m0 = (XV, sX, sSOX, sMX) if ch == "X" else (YV, sY, sSOY, sMY)
    ops = [Op(f"v_add_u32 {vr(vo)}, {vr(PAT)}, {vr(vo)}", at=g0), Op(f"v_add_u32 {vr(vo+1)}, {vr(PAT)}, {vr(vo+1)}", at=g0 + 0.01)]
    at = lin(g0 + 2, g1, 6)
    for a in range(3):
        ops.append(Op(f"s_add_u32 m0, {sr(m0)}, {sr(sUA+a)}", at=at[2*a] - 1.5))
        for rg in range(2):
            ops.append(Op(f"buffer_load_dwordx4 {vr(vo+rg)}, {sr(srd,4)}, {sr(so)} offen offset:{rg*3072+a*128} {NTMOD} lds",
                          at=at[2*a+rg], meta=dict(dma=lambda c, ch=ch: chan(c, ch, c.t))))
    return ops
def decode(ch, g0, g1):
    vo, srd, so, m0, w, tb, dv, bs = (XV, sX, sSOX, sMX, sWX, sTX, DX, bK) if ch == "X" else (YV, sY, sSOY, sMY, sWY, sTY, DY, bV)
    T = [f"v_readlane_b32 {sr(w)}, {vr(dv)}, {sr(sT)}",
         f"s_and_b32 {sr(tb)}, {sr(w)}, 0xfff",
         f"s_and_b32 {sr(m0)}, {sr(w)}, 0xff000",
         f"s_lshr_b32 {sr(so)}, {sr(w)}, 8",
         f"s_and_b32 {sr(so)}, {sr(so)}, 0xff000",
         f"s_bitcmp1_b32 {sr(w)}, 28",
         f"s_cselect_b64 {sr(sTP,2)}, {sr(bMV,2)}, {sr(bMK,2)}",
         f"s_bitcmp1_b32 {sr(w)}, 29",
         f"s_cselect_b64 {sr(srd,2)}, {sr(sTP,2)}, {sr(bs,2)}",
         f"v_add_u32 {vr(TA)}, {sr(tb)}, {vr(LTB)}",
         f"ds_read_b64 {vr(vo,2)}, {vr(TA)}"]
    at = lin(g0, g1, len(T))
    at[6] = at[5] + 0.001; at[8] = at[7] + 0.001
    return [Op(x, at=a, tag="TB" + ch) for x, a in zip(T, at)]
sites = []
def check(p, g, qbs=(0, 1, 2, 3)):
    k = len(sites); sites.append(p)
    ops = []
    if len(qbs) == 4:
        ops.append(Op(f"v_max3_f32 {vr(CHK)}, {vr(LS)}, {vr(LS+1)}, {vr(LS+2)}", at=g - 3))
        ops.append(Op(f"v_max_f32 {vr(CHK)}, {vr(CHK)}, {vr(LS+3)}", at=g - 2))
    else:
        ops.append(Op(f"v_max_f32 {vr(CHK)}, {vr(LS+qbs[0])}, {vr(LS+qbs[1])}", at=g - 2))
    ops.append(Op(f"s_cmp_eq_u32 {sr(sT)}, {sr(sNEV)}", at=g - 9))
    ops.append(Op(f"s_cselect_b64 {sr(sEF,2)}, -1, 0", at=g - 8.999))
    ops.append(Op(f"v_cmp_lt_f32 vcc, {sr(sTHR)}, {vr(CHK)}", at=g - 1.5))
    ops.append(Op(f"s_or_b64 vcc, vcc, {sr(sEF,2)}", at=g - 1))
    b = Op(f"s_cbranch_vccnz L_stub{k}", at=g + 0.1, meta=dict(site=k)); ops.append(b)
    for j, qb in enumerate(qbs):
        ops.append(Op(f"v_add_f32 {vr(LR+qb)}, {vr(LR+qb)}, {vr(LS+qb)}", at=g + 0.2 + 0.01 * j))
    return ops
def masks(p, diag, full, at):
    ops = [Op(f"v_mov_b32 {vr(NEG)}, 0xff800000", at=0.5)]
    for (kt, qb), a in zip(full, at[len(diag):]):
        for r in range(4): ops.append(Op(f"v_mov_b32 {vr(St(p,kt,qb)+r)}, 0xff800000", at=a + 0.01 * r))
    for (kt, qb), a in zip(diag, at):
        for r in range(4):
            x = vr(St(p, kt, qb) + r)
            ops.append(Op(f"v_cndmask_b32 {x}, {x}, {vr(NEG)}, {sr(sDM+2*r,2)}", at=a + 0.01 * r))
    return ops
def xlane(op, x, t, at):
    T = [f"v_mov_b32 {vr(t)}, {vr(x)}", f"v_permlane16_swap_b32 {vr(x)}, {vr(t)}", f"{op} {vr(x)}, {vr(x)}, {vr(t)}",
         f"v_mov_b32 {vr(t)}, {vr(x)}", f"v_permlane32_swap_b32 {vr(x)}, {vr(t)}", f"{op} {vr(x)}, {vr(x)}, {vr(t)}"]
    return [Op(s, at=at + 0.001 * k) for k, s in enumerate(T)]
def initmax(sp, qb, at, x, t):
    a, b = St(sp, 0, qb), St(sp, 1, qb)
    T = [f"v_max3_f32 {vr(x)}, {vr(a)}, {vr(a+1)}, {vr(a+2)}", f"v_max3_f32 {vr(t)}, {vr(a+3)}, {vr(b)}, {vr(b+1)}",
         f"v_max3_f32 {vr(x)}, {vr(x)}, {vr(b+2)}, {vr(b+3)}", f"v_max_f32 {vr(x)}, {vr(x)}, {vr(t)}"]
    ops = [Op(s, at=at + 0.001 * k) for k, s in enumerate(T)]
    ops += xlane("v_max_f32", x, t, at + 0.01)
    for k, r in enumerate([a, a+1, a+2, a+3, b, b+1, b+2, b+3]):
        ops.append(Op(f"v_sub_f32 {vr(r)}, {vr(r)}, {vr(x)}", at=at + 0.02 + 0.001 * k))
    for r in range(4): ops.append(Op(f"v_sub_f32 {vr(MN+4*qb+r)}, 0, {vr(x)}", at=at + 0.03 + 0.001 * r))
    return ops
def step_inc(at): return [Op(f"s_add_u32 {sr(sT)}, {sr(sT)}, 1", at=at)]
ALLT = [(kt, qb) for kt in range(2) for qb in range(4)]
KT0 = [(0, qb) for qb in range(4)]; KT1 = [(1, qb) for qb in range(4)]

def frame(p, kr=True, vr_=True, v0=7, v1=55):
    ops = [Bar("Z2", Z2G + 0.1), Bar("Z1", Z1G + 0.1)]
    ops += duty("X", Z2G + 1, 60) + duty("Y", Z1G + 1, 93)
    ops += decode("Y", 0.3, 53.5) + decode("X", 62, 91.5)
    if vr_: ops += vreads(p, v0 + 0.2, v1)
    if kr: ops += kreads(p, Z1G + 1.2, 92.2) + [Wait("K0", 93.5)]
    ops += step_inc(93.6)
    return ops

def normal(p, tiles=ALLT, diag=(), full=(), name="", tail=None):
    ops = frame(p)
    ats = []
    for (kt, qb) in tiles: ats += [24 * kt + 6 * qb + s for s in range(6)]
    ops += qk(p, tiles, ats) + pv(p, range(4), list(range(48, 96)))
    ops += [Wait([f"V{d}" for d in range(5)], 45.5)]
    ops += softmax(1 - p, KT1, 0.2, 40, ()) + check(p, 47) + softmax(p, KT0, 48.2, 91, range(4))
    if diag or full:
        ops += masks(p, diag, full, [24 * kt + 6 * qb + 9 for kt, qb in diag] + [24 * kt + 6 * qb for kt, qb in full])
    if tail: ops += tail
    return finish(ops, name)

def finish(ops, name, order="at"):
    z2 = [o for o in ops if getattr(o, "name", "") == "Z2"]
    if z2:
        for o in ops:
            if o.meta.get("kt") == 1 or (o.kind == "V" and o.wr & {f"v{XV}", f"v{XV+1}"}): o.after.append(z2[0])
    seq, tot = schedule(ops, verbose=VERB, name=name, order=order)
    seq = auto_waits(seq)
    seq, nn = fix_hazards(seq)
    if VERB and nn: print(f"   {name}: {nn} nops inserted")
    out = []
    for o in seq:
        out.append(o)
        if "site" in o.meta: out.append(Op(f"L_back{o.meta['site']}:"))
    return out

def raw(lines):
    return [x if isinstance(x, Op) else Op(x) for x in lines]
def rawfin(lines):
    seq = auto_waits(raw(lines)); seq, _ = fix_hazards(seq); return seq

def lreduce(qbs, at):
    ops = []
    for j, qb in enumerate(qbs): ops += xlane("v_add_f32", LR + qb, T0 + (j & 1), at + 0.1 * j)
    return ops
def pbuild(j, dst, woff_sgpr, imm, at, t):
    T = [f"ds_read_b32 {vr(t)}, {vr(TA)} offset:{imm}",
         f"v_exp_f32 {vr(t+1)}, -|{vr(t)}|",
         f"v_add_f32 {vr(t+2)}, 1.0, {vr(t+1)}",
         f"v_rcp_f32 {vr(t+2)}, {vr(t+2)}",
         f"v_cmp_le_f32 vcc, 0, {vr(t)}",
         f"v_mul_f32 {vr(t+2)}, {sr(sG_)}, {vr(t+2)}",
         f"v_mul_f32 {vr(t+1)}, {vr(t+1)}, {vr(t+2)}",
         f"v_cndmask_b32 {vr(t)}, {vr(t+1)}, {vr(t+2)}, vcc",
         f"v_cndmask_b32 {vr(t+3)}, {vr(t+2)}, {vr(t+1)}, vcc",
         f"v_cvt_pk_bf16_f32 {vr(t)}, {vr(t)}, {vr(t)}",
         f"v_cvt_pk_bf16_f32 {vr(t+3)}, {vr(t+3)}, {vr(t+3)}",
         f"v_and_b32 {vr(t)}, {vr(CHK)}, {vr(t)}",
         f"v_and_b32 {vr(t+3)}, {vr(CHK)}, {vr(t+3)}",
         f"v_cndmask_b32 {vr(dst)}, 0, {vr(t)}, {sr(sPM,2)}", f"v_cndmask_b32 {vr(dst+1)}, 0, {vr(t)}, {sr(sPM+2,2)}",
         f"v_cndmask_b32 {vr(dst+2)}, 0, {vr(t+3)}, {sr(sPM,2)}", f"v_cndmask_b32 {vr(dst+3)}, 0, {vr(t+3)}, {sr(sPM+2,2)}"]
    ops = [Op(s, at=at + 0.001 * k) for k, s in enumerate(T)]
    return ops
def pbuild_pre(woff_sgpr, at):
    T = [f"v_mbcnt_lo_u32_b32 {vr(TA)}, -1, 0", f"v_mbcnt_hi_u32_b32 {vr(TA)}, -1, {vr(TA)}",
         f"v_and_b32 {vr(CHK)}, 1, {vr(TA)}", f"v_lshlrev_b32 {vr(CHK)}, 4, {vr(CHK)}", f"v_mov_b32 {vr(NEG)}, 0xffff",
         f"v_lshlrev_b32 {vr(CHK)}, {vr(CHK)}, {vr(NEG)}",
         f"v_and_b32 {vr(TA)}, 15, {vr(TA)}", f"v_lshlrev_b32 {vr(TA)}, 2, {vr(TA)}", f"v_add_u32 {vr(TA)}, {sr(woff_sgpr)}, {vr(TA)}"]
    return [Op(s, at=at + 0.001 * k) for k, s in enumerate(T)]
def pvmem(acc, preg, addr, imm0, fr0, nfr, at0, at1, src, needvm=None, k0=0):
    ops = []; at = lin(at0, at1, 12)
    for dt in range(12):
        a = fr0 + 4 * ((k0 + dt) % nfr)
        for eh in range(2):
            ops.append(Op(f"ds_read_b64_tr_b16 {ar(a+2*eh,2)}, {vr(addr+(dt&3))} offset:{imm0 + eh*6144 + (dt>>2)*1024}",
                          at=at[dt] + 0.01 * eh, meta=dict(src=src, needvm=needvm)))
        o = vr(acc + 4 * dt, 4)
        ops.append(Op(f"v_mfma_f32_16x16x32_bf16 {o}, {ar(a,4)}, {vr(preg,4)}, {o}", at=at[dt] + 0.02))
    return ops
def outstore(acc, soff, at0, at1):
    ops = []; at = lin(at0, at1, 6)
    for u in range(6):
        x = acc + 8 * u; a = at[u]
        T = [f"v_cvt_pk_bf16_f32 {vr(x)}, {vr(x)}, {vr(x+1)}", f"v_cvt_pk_bf16_f32 {vr(x+1)}, {vr(x+2)}, {vr(x+3)}",
             f"v_cvt_pk_bf16_f32 {vr(x+2)}, {vr(x+4)}, {vr(x+5)}", f"v_cvt_pk_bf16_f32 {vr(x+3)}, {vr(x+6)}, {vr(x+7)}",
             f"v_permlane16_swap_b32 {vr(x)}, {vr(x+2)}", f"v_permlane16_swap_b32 {vr(x+1)}, {vr(x+3)}",
             f"buffer_store_dwordx4 {vr(x,4)}, {vr(OFF)}, {sr(sOUT,4)}, {sr(soff)} offen offset:{64*u} {STMOD}"]
        ops += [Op(s, at=a + 0.001 * k) for k, s in enumerate(T)]
    return ops
STMOD = ""
MV = 96

def merge_m0(ops):
    rest, groups = [], []
    for o in ops:
        if "m0" in o.wr: groups.append([o])
        elif o.kind == "D": groups[-1].append(o)
        else: rest.append(o)
    groups.sort(key=lambda g: g[1].at)
    for g in groups:
        for o in g[2:]: o.at = min(o.at, g[1].at + 1)
    return rest + [o for g in groups for o in g]

def listframe(p, pre, mid, post, kr=False, vrd=None):
    ops = decode("Y", 0.3, 5)[:-2] + pre + [Bar("Z2", Z2G + 0.1)]
    ops += merge_m0(duty("X", Z2G + 1, 60) + mid)
    ops += [Op(o.text, at=50 + k, tag="TBY") for k, o in enumerate(decode("Y", 0, 0)[-2:])]
    ops += [Bar("Z1", Z1G + 0.1)] + duty("Y", Z1G + 1, 93)
    if kr: ops += kreads(p, Z1G + 1.2, 90)
    ops += post
    ops += decode("X", 66, 91.5)
    if kr: ops += [Wait("K0", 93.5)]
    ops += step_inc(93.6)
    return ops

def diag2():
    p = 0
    ops = frame(p, kr=False)
    tiles = [(0, 2), (0, 3), (1, 3)]
    ops += qk(p, tiles, lin(0, 44, 18)) + pv(p, range(4), list(range(48, 96)))
    ops += [Wait([f"V{d}" for d in range(5)], 45.5)]
    ops += softmax(1, KT1, 0.2, 40, ()) + check(p, 47)
    ops += masks(p, [(0, 2), (1, 3)], [(1, 2)], [22, 50, 30])
    ops += softmax(0, tiles, 48.2, 88, (2, 3))
    ops += [Op(f"v_mov_b32 {vr(PB[0]+8+2+k)}, 0", at=49 + k) for k in range(2)]
    ops += [Op(f"v_mov_b32 {vr(LS+k)}, 0", at=51 + k) for k in range(2)]
    ops += [Op(f"v_mbcnt_lo_u32_b32 {vr(T0)}, -1, 0", at=47.3), Op(f"v_mbcnt_hi_u32_b32 {vr(T0)}, -1, {vr(T0)}", at=47.4),
            Op(f"v_lshlrev_b32 {vr(T0)}, 4, {vr(T0)}", at=47.5)]
    at = lin(50, 94, 24)
    for j in range(4):
        for h in range(2):
            k0 = 6 * j + 3 * h
            ops.append(Op(f"s_add_u32 {sr(sA)}, {sr(sB_)}, {((j^2)*6+3*h)*1024}", at=at[k0] - 1.2))
            for s in range(3):
                ops.append(Op(f"buffer_load_dwordx4 {Qreg(j,3*h+s)}, {vr(T0)}, {sr(sWS,4)}, {sr(sA)} offen offset:{s*1024}",
                              at=at[k0+s], tag="QL"))
    return finish(ops, "DIAG2")

def sw1():
    p = 1
    pre = check(p, 2, qbs=(2, 3))
    for o in pre: o.at = max(o.at, 0)
    pre += lreduce(range(4), 3)
    for j in range(4):
        pre += [Op(f"v_rcp_f32 {vr(FF+j)}, {vr(LR+j)}", at=4 + 0.1 * j), Op(f"v_mul_f32 {vr(FF+j)}, {sr(sOMG)}, {vr(FF+j)}", at=4.5 + 0.1 * j)]
    BV = SB[1]
    pre += [Op(f"s_lshl_b32 {sr(sA)}, {sr(sW)}, 9", at=2.5), Op(f"s_lshl_b32 {sr(sC)}, {sr(sU)}, 6", at=2.5), Op(f"s_sub_u32 {sr(sA)}, {sr(sA)}, {sr(sC)}", at=2.5),
            Op(f"v_add_u32 {vr(T0+2)}, {sr(sA)}, {vr(LTB)}", at=2.6),
            Op(f"s_mov_b64 {sr(sG,2)}, {sr(bMV,2)}", at=2.6)]
    for j in range(4):
        for nb in range(2):
            pre.append(Op(f"ds_read_b64 {vr(BV+4*j+2*nb,2)}, {vr(T0+2)} offset:{j*128+nb*64}", at=2.7))
    mid = vreads(p, 7, 30)
    mid += pv(p, (2, 3), lin(14, 50, 24))
    at = lin(8, 62, 48); k = 0
    bulk = []
    for j in range(4):
        for nb in range(2):
            for rg in range(2):
                r = BV + 4 * j + 2 * nb + rg
                bulk.append(Op(f"v_add_u32 {vr(r)}, {vr(PAT)}, {vr(r)}", at=7))
    for j in (3, 2, 0, 1):
        for nb in range(2):
            for a in range(3):
                bulk.append(Op(f"s_mov_b32 m0, {(8+j)*TILE + nb*6144 + 896*a}", at=at[k] - 0.5))
                for rg in range(2):
                    bulk.append(Op(f"buffer_load_dwordx4 {vr(BV+4*j+2*nb+rg)}, {sr(sG,4)}, 0 offen offset:{rg*3072+a*128} {NTMOD} lds",
                                   at=at[k], tag=f"VS{j}", meta=dict(dma=lambda c, j=j: (8 + j, ("MV", 4 * c.w + j))))); k += 1
    mid += bulk
    post = []
    for j in range(2):
        for r in range(0, 48, 2): post.append(Op(pkmul(OV + 48*j + r, OV + 48*j + r, FF + j), at=52))
    post += [Op(f"v_add_u32 {vr(KA+k)}, {4*TILE}, {vr(KA+k)}", at=60) for k in range(6)]
    post += [Op(f"s_mov_b32 {sr(sRING)}, {4*TILE}", at=60)]
    for r in range(0, 96, 2):
        post += [Op(f"v_accvgpr_read_b32 {vr(MV+r)}, {ar(r)}", at=66), Op(f"v_accvgpr_read_b32 {vr(MV+r+1)}, {ar(r+1)}", at=66),
                 Op(pkmul(MV + r, MV + r, FF + 2 + r // 48), at=66)]
    ops = listframe(p, pre, mid, post)
    return finish(ops, "SW1", order="list")

ACC = [OV, OV + 48, MV, MV + 48]
def sw2():
    p = 0
    pre = [Op(f"s_lshl_b32 {sr(sA)}, {sr(sW)}, 8", at=0), Op(f"s_add_u32 {sr(sA)}, {sr(sA)}, {WB}", at=0)]
    pre += pbuild_pre(sA, 0)
    for j in range(4): pre += pbuild(j, MN + 4 * j, sA, 64 * j, 0.5 + 0.1 * j, TMP + 4 * (j & 1))
    for o in pre:
        if o.kind == "R": o.meta["wsrc"] = True
    pre += [Op(f"v_add_u32 {vr(T0+k)}, {2*TILE}, {vr(VA+k)}", at=1) for k in range(4)]
    mid = []; post = []
    order = [3, 2, 0, 1]
    for n_, j in enumerate(order):
        dst = mid if n_ < 2 else post
        a0 = 20 + 18 * n_
        dst.append(WaitVM(f"VS{j}", at=a0 - 1))
        dst += pvmem(ACC[j], MN + 4 * j, T0, j * TILE, 0, 24, a0, a0 + 16, (lambda c, j=j: (8 + j, ("MV", 4 * c.w + j))), needvm=f"VS{j}", k0=12 * n_)
    post += [Op(f"s_add_u32 {sr(sA)}, {sr(sROW)}, {3*6144}", at=60)] + outstore(ACC[3], sA, 60, 90)
    ops = listframe(p, pre, mid, post, kr=True)
    return finish(ops, "SW2", order="list")

def sw3_fin():
    ops = []
    for n_, j in enumerate([2, 0, 1]):
        s = [sC, sD, sA][n_]
        ops += [Op(f"s_add_u32 {sr(s)}, {sr(sROW)}, {j*6144}", at=0)] + outstore(ACC[j], s, 0.1 + 20 * n_, 15 + 20 * n_)
    return ops
def sw3():
    p = 1
    fin = sw3_fin()
    n1 = 1 + 7 * 6
    pre = fin[:n1]
    tiles = [(0, 0), (0, 1), (1, 1)]
    mid = [WaitVM("QL", at=10)]
    q = qk(p, tiles, lin(14, 34, 18), czero=(0, 1))
    for o in q: o.after.append(mid[0])
    mid += q + masks(p, [(0, 0), (1, 1)], [(1, 0)], [24, 38, 16])
    mid += initmax(p, 0, 40, T0, T0 + 1) + initmax(p, 1, 40.5, T0 + 2, T0 + 3)
    mid += fin[n1:]
    post = softmax(p, tiles, 56, 88, (0, 1), acc=LR)
    post += [Op(f"v_mov_b32 {vr(PB[1]+r)}, 0", at=60) for r in (2, 3, 8, 9, 10, 11, 12, 13, 14, 15)]
    post += [Op(f"v_mov_b32 {vr(LR+2+k)}, 0", at=60) for k in range(2)]
    ops = listframe(p, pre, mid, post, kr=True)
    return finish(ops, "SW3", order="list")

def sw4():
    p = 0
    ops = frame(p)
    tiles = [(0, 2), (0, 3), (0, 0), (0, 1), (1, 3), (1, 0), (1, 1)]
    ops += qk(p, tiles, list(range(42)), czero=(2, 3)) + pv(p, range(4), list(range(48, 96)), czero=True)
    ops += [Wait([f"V{d}" for d in range(5)], 45.5)]
    ops += masks(p, [(0, 2), (1, 3)], [(1, 2)], [9, 33, 2])
    ops += initmax(p, 2, 11, T0, T0 + 1) + initmax(p, 3, 34, T0 + 2, T0 + 3)
    ops += softmax(p, KT0, 48.2, 91, range(4))
    return finish(ops, "SW4")

def xch_write(at):
    T = [f"v_mbcnt_lo_u32_b32 {vr(T0+2)}, -1, 0", f"v_mbcnt_hi_u32_b32 {vr(T0+2)}, -1, {vr(T0+2)}",
         f"v_and_b32 {vr(T0+2)}, 15, {vr(T0+2)}", f"v_lshlrev_b32 {vr(T0+2)}, 2, {vr(T0+2)}",
         f"s_lshl_b32 {sr(sA)}, {sr(sW)}, 8", f"s_add_u32 {sr(sC)}, {sr(sA)}, {XCH}", f"s_sub_u32 {sr(sD)}, {XCH+768}, {sr(sA)}",
         f"v_add_u32 {vr(T0+3)}, {sr(sC)}, {vr(T0+2)}", f"v_add_u32 {vr(T0+2)}, {sr(sD)}, {vr(T0+2)}",
         f"ds_write_b32 {vr(T0+3)}, {vr(MN+8)}", f"ds_write_b32 {vr(T0+3)}, {vr(MN+12)} offset:64",
         f"ds_write_b32 {vr(T0+3)}, {vr(LR+2)} offset:128", f"ds_write_b32 {vr(T0+3)}, {vr(LR+3)} offset:192"]
    return [Op(s, at=at + 0.001 * k) for k, s in enumerate(T)]
def xch_read(at):
    t = TMP
    T = [f"ds_read_b32 {vr(t)}, {vr(T0+2)}", f"ds_read_b32 {vr(t+1)}, {vr(T0+2)} offset:64",
         f"ds_read_b32 {vr(t+2)}, {vr(T0+2)} offset:128", f"ds_read_b32 {vr(t+3)}, {vr(T0+2)} offset:192"]
    for j in range(2):
        m = t + 4 + 2 * j
        T += [f"v_min_f32 {vr(m)}, {vr(MN+4*j)}, {vr(t+j)}",
              f"v_sub_f32 {vr(FF+j)}, {vr(m)}, {vr(MN+4*j)}", f"v_sub_f32 {vr(FF+2+j)}, {vr(m)}, {vr(t+j)}",
              f"v_exp_f32 {vr(FF+j)}, {vr(FF+j)}", f"v_exp_f32 {vr(FF+2+j)}, {vr(FF+2+j)}",
              f"v_mul_f32 {vr(m)}, {vr(FF+j)}, {vr(LR+j)}", f"v_fma_f32 {vr(m)}, {vr(FF+2+j)}, {vr(t+2+j)}, {vr(m)}",
              f"v_rcp_f32 {vr(m)}, {vr(m)}", f"v_mul_f32 {vr(m)}, {sr(sOMG)}, {vr(m)}",
              f"v_mul_f32 {vr(FF+j)}, {vr(FF+j)}, {vr(m)}", f"v_mul_f32 {vr(FF+2+j)}, {vr(FF+2+j)}, {vr(m)}"]
    return [Op(s, at=at + 0.001 * k) for k, s in enumerate(T)]
PM = SB[1]
def last_post(at):
    ops = xch_read(at) + pbuild_pre(sWE, at + 1)
    for j in range(2): ops += pbuild(j, PM + 4 * j, sWE, 64 * j, at + 2 + j, PM + 8 + 4 * j)
    for o in ops:
        if o.kind == "R" and o.at >= at + 1: o.meta["wsrc"] = True
    return ops
def last():
    p = 1
    ops = softmax(0, KT1[:1], 0, 3, ()) + [Bar("Z2", 4)] + duty("X", 5, 18) + vreads(p, 5, 24)
    ops += softmax(0, KT1[1:], 4, 20, ())
    ops += check(p, 22)
    ops += lreduce(range(4), 23) + xch_write(24)
    m = pv(p, range(4), list(range(24, 72)))
    ops += m[:16] + [Bar("Z1", 40)] + m[16:] + last_post(41)
    return finish(ops, "LAST", order="list")
def lastx():
    fin = sw3_fin()
    ops = fin[:15] + [Bar("Z2", 4)] + duty("X", 5, 18) + fin[15:]
    ops += [Op(f"v_mov_b32 {vr(MN+r)}, {f32(1e30)}", at=5) for r in (0, 4, 8, 12)]
    ops += [Op(f"v_mov_b32 {vr(LR+r)}, 0", at=5) for r in range(4)]
    ops += xch_write(6) + [Bar("Z1", 40)]
    ops += [Op(f"v_mov_b32 {vr(OV+r)}, 0", at=41) for r in range(96)]
    ops += [Op(f"v_accvgpr_write_b32 {ar(r)}, 0", at=41) for r in range(96)]
    ops += last_post(41)
    return finish(ops, "LASTX", order="list")
def final():
    ops = []
    for j in range(2):
        for r in range(0, 48, 2): ops.append(Op(pkmul(OV + 48*j + r, OV + 48*j + r, FF + j), at=0))
    A = TMP
    for j, s in enumerate((sV0, sV1)):
        ops += [Op(f"s_sub_u32 {sr(sA)}, {sr(s)}, {sr(sRING)}", at=0), Op(f"s_sub_u32 {sr(sA)}, {sr(sA)}, {2*TILE}", at=0)]
        ops += [Op(f"v_add_u32 {vr(A+4*j+k)}, {sr(sA)}, {vr(VA+k)}", at=0) for k in range(4)]
    ops += [Op(f"v_mbcnt_lo_u32_b32 {vr(T0)}, -1, 0", at=0), Op(f"v_mbcnt_hi_u32_b32 {vr(T0)}, -1, {vr(T0)}", at=0),
            Op(f"v_lshlrev_b32 {vr(T0)}, 4, {vr(T0)}", at=0)]
    for k, s in enumerate((sV0, sV1, sPV0, sPV1)): ops.append(Op(f"v_add_u32 {vr(T0+1+k)}, {sr(s)}, {vr(T0)}", at=0))
    ops.append(Bar("Z3", 1))
    for j in range(2):
        pm = pvmem(OV + 48 * j, PM + 4 * j, A + 4 * j, 0, QA, 24, 4 + 14 * j, 16 + 14 * j, (lambda c, j=j: c.plan.vl(c.w, j)), k0=12 * j)
        for o in pm:
            if o.kind == "R": o.tag = f"PM{j}"
        ops += pm
    for j in range(2):
        ops.append(Wait(f"PM{j}", 18 + 14 * j)); w = ops[-1]
        for dt in range(12):
            ops.append(Op(f"ds_write_b128 {vr(T0+1+j)}, {ar(48*j+4*dt,4)} offset:{1024*dt}", at=18 + 14 * j, after=[w],
                          meta=dict(hw=lambda c, j=j: (c.plan.vl(c.w, j)[0], ("XO", c.w, j)))))
    ops.append(Bar("Z4", 40))
    LB = MV + 48
    land = [96 + 4 * k for k in range(8)] + [144 + 4 * k for k in range(12)]
    k = 0
    for j in range(2):
        for dt in range(12):
            r = land[k % len(land)]; k += 1
            ops.append(Op(f"ds_read_b128 {vr(r,4)}, {vr(T0+3+j)} offset:{1024*dt}", at=41,
                          meta=dict(src=lambda c, j=j: (c.plan.vl(3 - c.w, j)[0], ("XO", 3 - c.w, j)))))
            o = OV + 48 * j + 4 * dt
            ops += [Op(pkfma(o, r, FF + 2 + j, o), at=42 + k * 0.01), Op(pkfma(o + 2, r + 2, FF + 2 + j, o + 2), at=42 + k * 0.01)]
        ops += [Op(f"s_add_u32 {sr([sA,sC][j])}, {sr(sB_)}, {j*6144}", at=41)] + outstore(OV + 48 * j, [sA, sC][j], 42.1 + 0.12 * j, 42.2 + 0.12 * j)
    return finish(ops, "FINAL", order="list")

def routine(p):
    so, sn = 1 - p, p
    L = [f"L_rt{p}:", "s_nop 7"]
    x, t, al = T0, T0 + 1, T0 + 2
    for qb in range(4):
        a, b = St(so, 0, qb), St(so, 1, qb)
        L += [f"v_cmp_lt_f32 vcc, {sr(sTHR)}, {vr(LS+qb)}", "s_nop 1", f"s_cbranch_vccz L_rs{p}_{qb}"]
        L += [f"v_max3_f32 {vr(x)}, {vr(a)}, {vr(a+1)}, {vr(a+2)}", f"v_max3_f32 {vr(t)}, {vr(a+3)}, {vr(b)}, {vr(b+1)}",
              f"v_max3_f32 {vr(x)}, {vr(x)}, {vr(b+2)}, {vr(b+3)}", f"v_max3_f32 {vr(x)}, {vr(x)}, {vr(t)}, 0"]
        L += xlane("v_max_f32", x, t, 0)
        L += [f"v_exp_f32 {vr(al)}, -{vr(x)}"]
        for base in (a, b, St(sn, 0, qb), St(sn, 1, qb), MN + 4 * qb):
            L += [f"v_sub_f32 {vr(base+r)}, {vr(base+r)}, {vr(x)}" for r in range(4)]
        L += [f"v_mul_f32 {vr(LR+qb)}, {vr(LR+qb)}, {vr(al)}"]
        for r in range(48):
            if qb < 2: L += [f"v_mul_f32 {vr(OV+48*qb+r)}, {vr(OV+48*qb+r)}, {vr(al)}"]
            else:
                q = 48 * (qb - 2) + r
                L += [f"v_accvgpr_read_b32 {vr(t)}, {ar(q)}", f"v_mul_f32 {vr(t)}, {vr(t)}, {vr(al)}", f"v_accvgpr_write_b32 {ar(q)}, {vr(t)}"]
        L += sorted(softmax(so, [(0, qb), (1, qb)], 0, 7, (qb,)), key=lambda o: o.at)
        L += [f"L_rs{p}_{qb}:"]
    rare = rawfin(L)
    H = [f"L_ev{p}:", f"s_cmp_eq_u32 {sr(sT)}, {sr(sNEV)}", f"s_cbranch_scc0 L_ret{p}",
         f"s_and_b32 {sr(sA)}, {sr(sREC)}, 0xff000", f"s_bfe_u32 {sr(sC)}, {sr(sREC)}, 0x40014",
         f"s_bitcmp1_b32 {sr(sREC)}, 10", f"s_cbranch_scc1 L_ld{p}",
         f"s_bitcmp1_b32 {sr(sREC)}, 11", f"s_cbranch_scc0 L_nw{p}", "s_waitcnt vmcnt(0)", f"L_nw{p}:",
         f"s_sub_u32 {sr(sA)}, {sr(sA)}, {sr(sRING)}",
         f"v_add_u32 {vr(T0)}, {sr(sA)}, {vr(KA)}", f"v_add_u32 {vr(T0+1)}, {sr(sA)}, {vr(KA+1)}"]
    land = [SB[so] + 4 * k for k in range(8)] + [PB[sn] + 4 * k for k in range(4)]
    RD = []
    for n in range(12):
        kt, s = n // 6, n % 6
        RD.append(Op(f"ds_read_b128 {vr(land[n],4)}, {vr(T0+(s&1))} offset:{kt*6144+(s>>1)*1024}", meta=dict(src=lambda c: (c.ev[3], ("MK", c.ev[4])))))
    H2 = [f"v_mbcnt_lo_u32_b32 {vr(T0+2)}, -1, 0", f"v_mbcnt_hi_u32_b32 {vr(T0+2)}, -1, {vr(T0+2)}",
          f"v_and_b32 {vr(T0+2)}, 15, {vr(T0+2)}", f"v_lshlrev_b32 {vr(T0+2)}, 2, {vr(T0+2)}",
          f"s_lshl_b32 {sr(sC)}, {sr(sC)}, 6", f"s_add_u32 {sr(sC)}, {sr(sC)}, {WB}", f"v_add_u32 {vr(T0+2)}, {sr(sC)}, {vr(T0+2)}",
          f"s_bfe_u32 {sr(sD)}, {sr(sREC)}, 0x20008"]
    for qb in range(1, 4): H2 += [f"s_cmp_eq_u32 {sr(sD)}, {qb}", f"s_cbranch_scc1 L_e{p}_{qb}"]
    head = raw(H) + RD + raw(H2)
    E = []
    for qb in range(4):
        B = [f"L_e{p}_{qb}:"]
        for n in range(12):
            kt, s = n // 6, n % 6
            d = vr(TMP + 4 * kt, 4)
            B += [f"s_waitcnt lgkmcnt({11-n})", f"v_mfma_f32_16x16x32_bf16 {d}, {vr(land[n],4)}, {Qreg(qb,s)}, {d if s else '0'}"]
        if qb < 3: B += [f"s_branch L_ex{p}"]
        E.append(raw(B))
    X = [f"L_ex{p}:", "s_nop 7"]
    for r in range(4): X += [f"v_sub_f32 {vr(TMP+r)}, {vr(TMP+r)}, {vr(TMP+4+r)}"]
    for r in range(1, 4): X += [f"v_cndmask_b32 {vr(TMP)}, {vr(TMP)}, {vr(TMP+r)}, {sr(sRM+2*(r-1),2)}"]
    X += [f"s_mov_b64 exec, {sr(sDL,2)}", Op(f"ds_write_b32 {vr(T0+2)}, {vr(TMP)}", meta=dict(wdst=True)), "s_mov_b64 exec, -1",
          f"L_nx{p}:", "s_waitcnt lgkmcnt(0)", f"s_add_u32 {sr(sEI)}, {sr(sEI)}, 1", "s_nop 0",
          f"v_readlane_b32 {sr(sREC)}, {vr(EV)}, {sr(sEI)}", "s_nop 1", f"s_and_b32 {sr(sNEV)}, {sr(sREC)}, 0xff", f"s_sub_u32 {sr(sNEV)}, {sr(sNEV)}, 1",
          f"s_branch L_ev{p}"]
    LD = [f"L_ld{p}:", f"s_mov_b32 {sr(sM0)}, m0", f"s_lshl_b32 {sr(sC)}, {sr(sC)}, 7", f"s_lshl_b32 {sr(sD)}, {sr(sU)}, 6",
          f"s_sub_u32 {sr(sC)}, {sr(sC)}, {sr(sD)}", f"v_add_u32 {vr(T0)}, {sr(sC)}, {vr(LTB)}",
          f"ds_read_b64 {vr(TMP,2)}, {vr(T0)}", f"ds_read_b64 {vr(TMP+2,2)}, {vr(T0)} offset:64", f"s_mov_b64 {sr(sG,2)}, {sr(bMK,2)}",
          "s_waitcnt lgkmcnt(0)"]
    LD += [f"v_add_u32 {vr(TMP+k)}, {vr(PAT)}, {vr(TMP+k)}" for k in range(4)]
    for nb in range(2):
        for a in range(3):
            LD += [f"s_add_u32 m0, {sr(sA)}, {nb*6144+896*a}", "s_nop 0"]
            for rg in range(2):
                LD.append(Op(f"buffer_load_dwordx4 {vr(TMP+2*nb+rg)}, {sr(sG,4)}, 0 offen offset:{rg*3072+a*128} {NTMOD} lds",
                             meta=dict(dma=lambda c: (c.ev[3], ("MK", c.ev[4])))))
    LD += [f"s_mov_b32 m0, {sr(sM0)}", f"s_branch L_nx{p}"]
    RET = [f"L_ret{p}:", "s_nop 1", f"s_setpc_b64 {sr(sRET,2)}"]
    return dict(rare=rare, head=head, E=E, X=rawfin(X), LD=raw(LD), RET=raw(RET))

def lanemask(fn):
    m = 0
    for l in range(64):
        if fn(l & 15, l >> 4): m |= 1 << l
    return m
def smov64(r, m): return [f"s_mov_b32 {sr(r)}, 0x{m & 0xffffffff:08x}", f"s_mov_b32 {sr(r+1)}, 0x{m >> 32:08x}"]
def desc_word(d):
    if d is None: return 16 * 128 | (15 * 3) << 12 | 255 << 20
    kind, src, dest = d
    if kind in ("K", "V"): return 16 * 128 | (dest * 3) << 12 | (src * 3) << 20
    return src * 128 | (dest * 3) << 12 | (1 << 29) | ((1 << 28) if kind == "MV" else 0)
def rec_word(e):
    t, typ, qb, slot, entry, wv = e
    return (t + 1) | qb << 8 | typ << 10 | wv << 11 | (slot * 3) << 12 | entry << 20

def interleave(A, B):
    out = []; n = len(A)
    for k, g in enumerate(A):
        out += g; out += B[len(B) * k // n: len(B) * (k + 1) // n]
    return out

def prologue(plans):
    KB = 84
    l, c_, g_ = T0, T0 + 1, T0 + 2
    t1, t2, t3, t4 = T0 + 3, T0 + 4, T0 + 5, T0 + 6
    H = ["s_cmp_ge_u32 s2, 256", "s_cbranch_scc1 L_end",
         f"s_load_dwordx16 s[{KB}:{KB+15}], s[0:1], 0", "s_load_dwordx2 s[100:101], s[0:1], 72"]
    if STAMP: H += ["s_memtime s[60:61]", "s_memrealtime s[62:63]"]
    H += [f"v_lshrrev_b32 {vr(t1)}, 6, v0", f"v_and_b32 {vr(l)}, 63, v0", f"v_readfirstlane_b32 {sr(sW)}, {vr(t1)}",
          "s_and_b32 s3, s2, 7", "s_lshl_b32 s3, s3, 2", f"s_bfe_u32 {sr(sI)}, s2, 0x20003", f"s_add_u32 s3, s3, {sr(sI)}",
          f"s_lshr_b32 {sr(sI)}, s2, 5", f"s_and_b32 {sr(sU)}, {sr(sW)}, 1",
          f"v_lshrrev_b32 {vr(t2)}, 3, {vr(l)}", f"v_and_b32 {vr(t3)}, 6, {vr(t2)}", f"v_and_b32 {vr(t4)}, 7, {vr(l)}",
          f"v_xor_b32 {vr(t3)}, {vr(t3)}, {vr(t4)}", f"v_lshlrev_b32 {vr(PAT)}, 4, {vr(t3)}",
          f"v_mul_u32_u24 {vr(XV)}, 384, {vr(t2)}", f"v_add3_u32 {vr(XV)}, {vr(XV)}, {vr(PAT)}, 0", f"v_add_u32 {vr(XV)}, 3072, {vr(XV)}",
          f"s_sub_u32 {sr(sT)}, 15, {sr(sI)}", f"s_cmp_lt_u32 {sr(sW)}, 2", f"s_cselect_b32 {sr(sT)}, {sr(sT)}, {sr(sI)}",
          f"s_lshl_b32 {sr(sT)}, {sr(sT)}, 1", f"s_add_u32 {sr(sT)}, {sr(sT)}, {sr(sU)}",
          f"s_mul_i32 {sr(sEXIT)}, s3, 786432",
          f"s_mul_i32 {sr(sUA)}, {sr(sW)}, 3072",
          "s_waitcnt lgkmcnt(0)"]
    if STAMP: H += [f"v_mov_b32 {vr(STV)}, 0", f"v_mov_b32 {vr(STV+1)}, 0", f"v_writelane_b32 {vr(STV)}, s60, 0", f"v_writelane_b32 {vr(STV+1)}, s62, 0", f"s_mov_b32 {sr(sST)}, 1"]
    for b, ka in ((bK, KB + 2), (bQ, KB), (bV, KB + 4), (bMK, KB + 6), (bMV, KB + 8)):
        H += [f"s_add_u32 {sr(b)}, {sr(ka)}, {sr(sEXIT)}", f"s_addc_u32 {sr(b+1)}, {sr(ka+1)}, 0",
              f"s_sub_u32 {sr(b)}, {sr(b)}, 3072", f"s_subb_u32 {sr(b+1)}, {sr(b+1)}, 0"]
    for s, b in ((sX, bK), (sY, bV), (sG, bQ)):
        H += [f"s_mov_b64 {sr(s,2)}, {sr(b,2)}", f"s_mov_b32 {sr(s+2)}, {786432+3072}", f"s_mov_b32 {sr(s+3)}, 0x20000"]
    H += [f"s_lshl_b32 {sr(sN)}, s3, 14", f"s_lshl_b32 {sr(sSOX)}, {sr(sT)}, 9", f"s_add_u32 {sr(sN)}, {sr(sN)}, {sr(sSOX)}",
          f"v_lshl_add_u32 {vr(t1)}, {vr(l)}, 3, {sr(sN)}", f"s_lshl_b32 {sr(sN)}, s3, 1", f"v_mov_b32 {vr(t2)}, {sr(sN)}",
          f"s_mul_i32 {sr(sSOY)}, {sr(sT)}, 24576"]
    def tile4(srd, blk, slot, kind):
        G = []
        for a in range(3):
            G.append([f"s_add_u32 m0, {sr(sUA)}, {slot*TILE+896*a}", f"s_add_u32 {sr(sSOX)}, {sr(sUA)}, {blk*TILE}",
                      Op(f"buffer_load_dwordx4 {vr(XV)}, {sr(srd,4)}, {sr(sSOX)} offen offset:{128*a} {NTMOD} lds", meta=dict(dma=lambda c: (slot, (kind, blk))))])
        return G
    def qblk(j):
        G = []
        for a in range(3):
            for rg in range(2):
                pre = [f"s_add_u32 m0, {sr(sMY)}, {j*6144+896*a}", f"s_add_u32 {sr(sSOX)}, {sr(sSOY)}, {j*6144}"] if rg == 0 else []
                G.append(pre + [Op(f"buffer_load_dwordx4 {vr(XV)}, {sr(sG,4)}, {sr(sSOX)} offen offset:{rg*3072+128*a} {NTMOD} lds", tag=f"Q{j}",
                                   meta=dict(dma=lambda c: (4 + 2 * c.w + (j >> 1), ("Q", c.w, j)), cnt=6))])
        return G
    H += [f"s_mul_i32 {sr(sMY)}, {sr(sW)}, {2*TILE}", f"s_add_u32 {sr(sMY)}, {sr(sMY)}, {4*TILE}"]
    for g in tile4(sX, 0, 12, "K") + qblk(0): H += g
    H += [f"global_load_dwordx2 {vr(YV,2)}, {vr(t1)}, {sr(KB+10,2)}", f"global_load_ushort {vr(CHK)}, {vr(t2)}, {sr(KB+12,2)}"]
    A = [f"s_add_u32 {sr(sOUT)}, {sr(KB+14)}, {sr(sEXIT)}", f"s_addc_u32 {sr(sOUT+1)}, {sr(KB+15)}, 0", f"s_mov_b32 {sr(sOUT+2)}, 786432", f"s_mov_b32 {sr(sOUT+3)}, 0x20000",
         f"s_mul_i32 {sr(sN)}, s2, 49152", f"s_add_u32 {sr(sN)}, {sr(sN)}, 0x1000000", f"s_add_u32 {sr(sWS)}, s100, {sr(sN)}", f"s_addc_u32 {sr(sWS+1)}, s101, 0",
         f"s_mov_b32 {sr(sWS+2)}, 49152", f"s_mov_b32 {sr(sWS+3)}, 0x20000"]
    Aend = len(A)
    A += [f"v_and_b32 {vr(c_)}, 15, {vr(l)}", f"v_lshrrev_b32 {vr(g_)}, 4, {vr(l)}",
          f"v_lshrrev_b32 {vr(t1)}, 3, {vr(c_)}", f"v_mul_u32_u24 {vr(t1)}, 3072, {vr(t1)}", f"v_and_b32 {vr(t2)}, 7, {vr(c_)}",
          f"v_lshl_add_u32 {vr(t1)}, {vr(t2)}, 7, {vr(t1)}", f"v_and_b32 {vr(t3)}, 6, {vr(c_)}"]
    for j in range(2): A += [f"v_or_b32 {vr(t2)}, {4*j}, {vr(g_)}", f"v_xor_b32 {vr(t2)}, {vr(t2)}, {vr(t3)}", f"v_lshl_add_u32 {vr(KA+j)}, {vr(t2)}, 4, {vr(t1)}"]
    A += [f"v_bfe_u32 {vr(t2)}, {vr(l)}, 2, 3", f"v_lshrrev_b32 {vr(t1)}, 5, {vr(l)}", f"v_mul_u32_u24 {vr(t1)}, 3072, {vr(t1)}",
          f"v_lshl_add_u32 {vr(t1)}, {vr(t2)}, 7, {vr(t1)}", f"v_and_b32 {vr(t3)}, 1, {vr(l)}", f"v_lshl_add_u32 {vr(t1)}, {vr(t3)}, 3, {vr(t1)}",
          f"v_add_u32 {vr(t1)}, {2*TILE}, {vr(t1)}", f"v_and_b32 {vr(t2)}, 6, {vr(t2)}", f"v_bfe_u32 {vr(t3)}, {vr(l)}, 1, 1"]
    for x in range(4): A += [f"v_or_b32 {vr(t4)}, {2*x}, {vr(t3)}", f"v_xor_b32 {vr(t4)}, {vr(t4)}, {vr(t2)}", f"v_lshl_add_u32 {vr(VA+x)}, {vr(t4)}, 4, {vr(t1)}"]
    A += [f"v_mul_u32_u24 {vr(OFF)}, 384, {vr(c_)}", f"v_and_b32 {vr(t1)}, 1, {vr(g_)}", f"v_lshl_add_u32 {vr(OFF)}, {vr(t1)}, 5, {vr(OFF)}",
          f"v_lshrrev_b32 {vr(t1)}, 1, {vr(g_)}", f"v_lshl_add_u32 {vr(OFF)}, {vr(t1)}, 4, {vr(OFF)}",
          f"v_lshrrev_b32 {vr(t1)}, 3, {vr(l)}", f"s_lshl_b32 {sr(sN)}, {sr(sU)}, 6", f"s_add_u32 {sr(sN)}, {sr(sN)}, {TB}", f"v_lshl_add_u32 {vr(LTB)}, {vr(t1)}, 3, {sr(sN)}"]
    for r in range(4): A += smov64(sDM + 2 * r, lanemask(lambda c, g: 4 * g + r > c))
    for r in range(1, 4): A += smov64(sRM + 2 * (r - 1), lanemask(lambda c, g: (c & 3) == r))
    A += smov64(sDL, lanemask(lambda c, g: g == c >> 2))
    for pp in range(2): A += smov64(sPM + 2 * pp, lanemask(lambda c, g: g == c >> 2 and ((c & 3) >> 1) == pp))
    A += [f"s_mov_b32 {sr(sTHR)}, {f32(THR)}"]
    A += [f"v_accvgpr_write_b32 {ar(r)}, 0" for r in range(96)]
    B = [f"s_lshl_b32 {sr(sN)}, {sr(sI)}, 2", f"s_add_u32 {sr(sNEV)}, {sr(sN)}, 2",
         f"s_lshl_b32 {sr(sN)}, {sr(sU)}, 1", f"s_add_u32 {sr(sN)}, {sr(sN)}, {sr(sNEV)}",
         f"s_mov_b32 {sr(sWX)}, {(-3<<20) & 0xffffffff}", f"s_mov_b32 {sr(sTX)}, {desc_word(('K',63,4))}", f"s_mov_b32 {sr(sTY)}, {desc_word(('V',65,6))}",
         f"s_cmp_lt_u32 {sr(sW)}, 2",
         f"s_cselect_b32 {sr(sWX)}, {3<<20}, {sr(sWX)}",
         f"s_cselect_b32 {sr(sTX)}, {desc_word(('K',4,0))}, {sr(sTX)}",
         f"s_cselect_b32 {sr(sTY)}, {desc_word(('V',2,2))}, {sr(sTY)}",
         f"s_cselect_b32 {sr(sWY)}, 0, {sr(sNEV)}"]
    B0 = B
    B = [
         f"v_mul_lo_u32 {vr(t1)}, {vr(l)}, {sr(sWX)}", f"v_and_b32 {vr(t2)}, 1, {vr(l)}", f"v_mul_u32_u24 {vr(t2)}, {3<<12}, {vr(t2)}",
         f"v_add_u32 {vr(t1)}, {vr(t1)}, {vr(t2)}", f"v_add_u32 {vr(DX)}, {sr(sTX)}, {vr(t1)}", f"v_add_u32 {vr(DY)}, {sr(sTY)}, {vr(t1)}",
         f"v_mov_b32 {vr(t3)}, {desc_word(None)}",
         f"v_cmp_gt_u32 vcc, {sr(sWY)}, {vr(l)}", f"v_cndmask_b32 {vr(DY)}, {vr(DY)}, {vr(t3)}, vcc",
         f"v_cmp_lt_u32 vcc, 31, {vr(l)}", f"v_cndmask_b32 {vr(DY)}, {vr(DY)}, {vr(t3)}, vcc",
         f"v_add_u32 {vr(t2)}, 2, {vr(l)}", f"v_cmp_gt_u32 vcc, {sr(sWY)}, {vr(t2)}", f"v_cndmask_b32 {vr(DX)}, {vr(DX)}, {vr(t3)}, vcc",
         f"v_cmp_lt_u32 vcc, 29, {vr(l)}", f"v_cndmask_b32 {vr(DX)}, {vr(DX)}, {vr(t3)}, vcc",
         f"v_mov_b32 {vr(EV)}, 0xff"]
    B += [f"v_mov_b32 {vr(OV+r)}, 0" for r in range(96)]
    B += [f"v_mov_b32 {vr(LR+r)}, 0" for r in range(4)]
    Tb = [f"v_mul_u32_u24 {vr(YV)}, 384, {vr(YV)}", f"v_mul_u32_u24 {vr(YV+1)}, 384, {vr(YV+1)}",
          f"v_bfe_u32 {vr(t1)}, {vr(l)}, 3, 1", f"v_xor_b32 {vr(t2)}, 1, {vr(t1)}", f"v_mul_u32_u24 {vr(t2)}, 3072, {vr(t2)}",
          f"v_add_u32 {vr(YV)}, {vr(YV)}, {vr(t2)}", f"v_add_u32 {vr(YV+1)}, {vr(YV+1)}, {vr(t2)}",
          f"v_and_b32 {vr(t2)}, 7, {vr(l)}", f"v_lshlrev_b32 {vr(t2)}, 3, {vr(t2)}", f"v_lshl_add_u32 {vr(t2)}, {vr(t1)}, 2, {vr(t2)}",
          f"v_lshl_add_u32 {vr(t2)}, {vr(g_)}, 7, {vr(t2)}", f"s_lshl_b32 {sr(sWX)}, {sr(sW)}, 9", f"s_add_u32 {sr(sWX)}, {sr(sWX)}, {TB}",
          f"v_add_u32 {vr(t2)}, {sr(sWX)}, {vr(t2)}", f"ds_write_b32 {vr(t2)}, {vr(YV)}", f"ds_write_b32 {vr(t2)}, {vr(YV+1)} offset:64",
          f"v_bfe_u32 {vr(t1)}, {vr(l)}, 4, 1", f"v_bfe_u32 {vr(t3)}, {vr(l)}, 1, 3", f"v_lshl_add_u32 {vr(t1)}, {vr(t1)}, 4, {vr(t3)}",
          f"v_mul_u32_u24 {vr(t1)}, 384, {vr(t1)}", f"v_add_u32 {vr(t1)}, 3072, {vr(t1)}",
          f"v_and_b32 {vr(t3)}, 31, {vr(l)}", f"v_lshlrev_b32 {vr(t3)}, 2, {vr(t3)}", f"v_add_u32 {vr(t3)}, {TB+2048}, {vr(t3)}", f"ds_write_b32 {vr(t3)}, {vr(t1)}",
          f"v_lshlrev_b32 {vr(CHK)}, 16, {vr(CHK)}", f"v_mul_f32 {vr(CHK)}, {f32(-1.4426950408889634)}, {vr(CHK)}", f"v_exp_f32 {vr(CHK)}, {vr(CHK)}",
          f"v_add_f32 {vr(CHK)}, 1.0, {vr(CHK)}", f"v_rcp_f32 {vr(CHK)}, {vr(CHK)}", f"v_cvt_pk_bf16_f32 {vr(CHK)}, {vr(CHK)}, {vr(CHK)}",
          f"v_and_b32 {vr(CHK)}, 0xffff0000, {vr(CHK)}", f"v_sub_f32 {vr(TA)}, 1.0, {vr(CHK)}", f"v_cvt_pk_bf16_f32 {vr(TA)}, {vr(TA)}, {vr(TA)}",
          f"v_and_b32 {vr(TA)}, 0xffff0000, {vr(TA)}", f"v_readfirstlane_b32 {sr(sG_)}, {vr(CHK)}", f"v_readfirstlane_b32 {sr(sOMG)}, {vr(TA)}"]
    if NOGATHER: Tb = [f"v_and_b32 {vr(YV)}, 7, {vr(YV)}", f"v_and_b32 {vr(YV+1)}, 7, {vr(YV+1)}"] + Tb
    if NOMEM: Tb += [f"s_mov_b32 {sr(sG_)}, 0"]
    seq = H + A[:Aend] + interleave(qblk(1), A[Aend:]) + B0 + interleave(qblk(2) + tile4(sX, 1, 1, "K"), B + Tb)
    cval = f32(192 ** -0.5 * 1.4426950408889634)
    seq += [f"s_mov_b32 {sr(sCP)}, {cval}", f"s_mov_b32 {sr(sCP+1)}, {cval}", f"s_mov_b32 {sr(sRING)}, 0", f"s_mov_b32 {sr(sROW)}, {sr(sSOY)}",
            f"v_add_u32 {vr(t1)}, {sr(sMY)}, {vr(KA)}", f"v_add_u32 {vr(t2)}, {sr(sMY)}, {vr(KA+1)}", f"v_lshlrev_b32 {vr(t3)}, 4, {vr(l)}",
            f"s_mul_i32 {sr(sB_)}, {sr(sW)}, 24576"]
    def presc(j):
        Z = SB[0] + 24 * (j & 1)
        G = [WaitVM(f"Q{j}", 0)]
        for s in range(6):
            G.append(Op(f"ds_read_b128 {vr(Z+4*s,4)}, {vr(t1+(s&1))} offset:{j*6144+(s>>1)*1024}",
                        meta=dict(src=lambda c: (4 + 2 * c.w + (j >> 1), ("Q", c.w, j)), needvm=f"Q{j}", cnt=6)))
        for r in range(0, 24, 2):
            for q in range(2):
                tt = TMP + 2 * q + 4 * ((r >> 1) & 1)
                G += [f"v_lshlrev_b32 {vr(tt)}, 16, {vr(Z+r+q)}", f"v_and_b32 {vr(tt+1)}, 0xffff0000, {vr(Z+r+q)}"]
            for q in range(2):
                tt = TMP + 2 * q + 4 * ((r >> 1) & 1)
                G += [f"v_pk_mul_f32 {vr(tt,2)}, {vr(tt,2)}, {sr(sCP,2)}"]
            for q in range(2):
                tt = TMP + 2 * q + 4 * ((r >> 1) & 1)
                G += [f"v_cvt_pk_bf16_f32 {vr(Z+r+q)}, {vr(tt)}, {vr(tt+1)}"]
            for q in range(2): G += [f"v_accvgpr_write_b32 {ar(QA+24*j+r+q)}, {vr(Z+r+q)}"]
            if r & 2:
                s = r >> 2
                if s % 3 == 0: G += [f"s_add_u32 {sr(sA)}, {sr(sB_)}, {(6*j+s)*1024}"]
                G += [Op(f"buffer_store_dwordx4 {vr(Z+4*s,4)}, {vr(t3)}, {sr(sWS,4)}, {sr(sA)} offen offset:{(s%3)*1024}", tag="QS")]
        return G
    p0, p1 = presc(0), presc(1)
    seq += p0[:7] + interleave(qblk(3), p0[7:])
    seq += p1[:7] + interleave(tile4(sY, 0, 2, "V") + tile4(sX, 2, 0, "K") + tile4(sY, 1, 3, "V"), p1[7:])
    seq += presc(2) + presc(3)
    seq += [f"s_mul_i32 {sr(sUA)}, {sr(sU)}, 6144", f"s_add_u32 {sr(sUA+1)}, {sr(sUA)}, 896", f"s_add_u32 {sr(sUA+2)}, {sr(sUA)}, 1792",
            f"s_sub_u32 {sr(sB_)}, 3, {sr(sW)}", f"s_mul_i32 {sr(sB_)}, {sr(sB_)}, 24576"]
    main = rawfin(seq)
    blocks = {}
    disp = [f"s_lshl_b32 {sr(sA)}, {sr(sI)}, 2", f"s_add_u32 {sr(sA)}, {sr(sA)}, {sr(sW)}"]
    for i in range(8):
        for w in range(4):
            pl = plans[i]; Bk = [f"L_cfg{i}_{w}:"]
            for ch, dv, sh in (("X", DX, -1), ("Y", DY, 0)):
                for t, d in sorted(pl.chan[w >> 1][ch].items()):
                    if d[0] in ("MK", "MV") or (ch == "X" and t == 0):
                        Bk += [f"s_mov_b32 {sr(sC)}, {desc_word(d)}", f"v_writelane_b32 {vr(dv)}, {sr(sC)}, {(t+sh) % 64}"]
            for k, e in enumerate(pl.events[w]):
                Bk += [f"s_mov_b32 {sr(sC)}, {rec_word(e)}", f"v_writelane_b32 {vr(EV)}, {sr(sC)}, {k}"]
            ex, xk = pl.exit1(w)
            Bk += [f"s_mov_b32 {sr(sEXIT)}, {ex}", f"s_mov_b32 {sr(sXK)}, {xk}",
                   f"s_mov_b32 {sr(sV0)}, {pl.vl(w,0)[0]*TILE}", f"s_mov_b32 {sr(sV1)}, {pl.vl(w,1)[0]*TILE}",
                   f"s_mov_b32 {sr(sPV0)}, {pl.vl(3-w,0)[0]*TILE}", f"s_mov_b32 {sr(sPV1)}, {pl.vl(3-w,1)[0]*TILE}",
                   f"s_mov_b32 {sr(sWE)}, {WB + pl.vl(w,0)[1][1]*64}", "s_branch L_cfgdone"]
            blocks[(i, w)] = raw(Bk)
            if (i, w) != (7, 3): disp += [f"s_cmp_eq_u32 {sr(sA)}, {4*i+w}", f"s_cbranch_scc1 L_cfg{i}_{w}"]
    disp += ["s_branch L_cfg7_3"]
    mid = ["L_cfgdone:", f"s_mov_b32 {sr(sEI)}, 0", f"s_mov_b32 {sr(sT)}, -1", "s_nop 0", f"v_readlane_b32 {sr(sREC)}, {vr(EV)}, 0", "s_nop 1",
           f"s_and_b32 {sr(sNEV)}, {sr(sREC)}, 0xff", f"s_sub_u32 {sr(sNEV)}, {sr(sNEV)}, 1", Bar("ZP", 0),
           Op(f"s_call_b64 {sr(sRET,2)}, L_ev1", meta=dict(evcall=1)), f"s_mov_b32 {sr(sT)}, 63"]
    p = 1
    ops = [Op(f"v_add_u32 {vr(T0+k)}, {12*TILE}, {vr(KA+k)}", at=0) for k in range(2)]
    for n in range(12):
        kt, s = n // 6, n % 6
        ops.append(Op(f"ds_read_b128 {ar(FR(24+n),4)}, {vr(T0+(s&1))} offset:{kt*6144+(s>>1)*1024}", at=0.1, meta=dict(src=lambda c: (12, ("K", 0)), gives=lambda c, kt=kt, s=s: ("K", 0, kt, s))))
    ops += decode("X", 1, 2)
    tl = [(kt, qb) for qb in range(4) for kt in range(2)]
    ops += qk(p, tl, [1] * 48, czero=range(4))
    q1 = finish(ops, "PRO_QK", order="list")
    mk = [f"s_cmp_lg_u32 {sr(sN)}, 2", "s_cbranch_scc1 L_nomask", f"s_cmp_lt_u32 {sr(sW)}, 2", "s_cbranch_scc1 L_nomask"]
    mk2 = masks(p, [(0, 0), (1, 1)], [(1, 0)], [1, 2, 3]) + [Op("L_nomask:")]
    ops = kreads(p, 0, 1)
    for qb in range(4): ops += initmax(p, qb, 0.5, T0 + 2 * (qb & 1), T0 + 1 + 2 * (qb & 1))
    ops += softmax(p, KT0, 1, 2, range(4)) + [Wait("K0", 2), Op(f"s_mov_b32 {sr(sT)}, 0", at=2)]
    q2 = [Op("s_nop 7")] + finish(ops, "PRO_SM", order="list")
    jump = raw([f"s_cmp_eq_u32 {sr(sXK)}, 2", "s_cbranch_scc1 L_diag2", f"s_cmp_lt_u32 {sr(sW)}, 2", "s_cbranch_scc0 L_loop0", Op("s_waitcnt vmcnt(0)", meta=dict(lonly=1))])
    return dict(main=main, disp=raw(disp), blocks=blocks, mid=raw(mid), q1=q1, mk=raw(mk), mk2=mk2, q2=q2, jump=jump)

def stamp_ops():
    if not STAMP: return []
    return raw(["s_memtime s[2:3]", "s_memrealtime s[0:1]", f"s_mov_b32 {sr(sM0)}, m0", "s_waitcnt lgkmcnt(0)", f"s_mov_b32 m0, {sr(sST)}",
                f"s_add_u32 {sr(sST)}, {sr(sST)}, 1", f"v_writelane_b32 {vr(STV)}, s2, m0", f"v_writelane_b32 {vr(STV+1)}, s0, m0", f"s_mov_b32 m0, {sr(sM0)}"])

def build():
    plans = [make_plan(i) for i in range(8)]
    Pc = {}
    Pc["pro"] = prologue(plans)
    Pc["loop0"] = normal(0, name="LOOP0", tail=[Op(f"s_cmp_eq_u32 {sr(sT)}, {sr(sEXIT)}", at=94), Op("s_cbranch_scc1 L_exit", at=95.2)])
    Pc["loop1"] = normal(1, name="LOOP1", tail=[Op("s_branch L_loop0", at=95.2)])
    Pc["exit"] = raw(["L_exit:", f"s_cmp_eq_u32 {sr(sT)}, 33", "s_cbranch_scc1 L_last"])
    Pc["diag1"] = normal(1, tiles=[t for t in ALLT if t != (1, 0)], diag=[(0, 0), (1, 1)], full=[(1, 0)], name="DIAG1",
                         tail=[Op(f"s_cmp_lt_u32 {sr(sW)}, 2", at=94), Op("s_cbranch_scc1 L_diag2f", at=95.2)])
    Pc["diag2"] = diag2(); Pc["sw1"] = sw1(); Pc["sw2"] = sw2()
    Pc["sw2x"] = raw([f"s_cmp_eq_u32 {sr(sT)}, 33", "s_cbranch_scc1 L_lastx"])
    Pc["sw3"] = sw3(); Pc["sw4"] = sw4()
    Pc["sw4x"] = raw([f"s_mov_b32 {sr(sEXIT)}, 33", f"s_cmp_eq_u32 {sr(sT)}, 33", "s_cbranch_scc1 L_last", "s_branch L_loop1"])
    Pc["diag2f"] = normal(0, tiles=[(0, 2), (0, 3), (1, 3)], diag=[(0, 2), (1, 3)], full=[(0, 0), (0, 1), (1, 0), (1, 1), (1, 2)], name="DIAG2F")
    Pc["last"] = last(); Pc["lastx"] = lastx()
    Pc["fpre"] = raw(["L_final:", f"s_sub_u32 {sr(sB_)}, 15, {sr(sI)}", f"s_mul_i32 {sr(sB_)}, {sr(sB_)}, 49152",
                      f"s_mov_b32 {sr(sC)}, -24576", f"s_cmp_lt_u32 {sr(sW)}, 2", f"s_cselect_b32 {sr(sA)}, 0, {3*24576+12288}", f"s_cselect_b32 {sr(sC)}, 24576, {sr(sC)}",
                      f"s_mul_i32 {sr(sC)}, {sr(sC)}, {sr(sW)}", f"s_add_u32 {sr(sB_)}, {sr(sB_)}, {sr(sA)}", f"s_add_u32 {sr(sB_)}, {sr(sB_)}, {sr(sC)}", "s_nop 7"])
    Pc["final"] = final()
    Pc["rt"] = [routine(0), routine(1)]
    return plans, Pc

def layout(Pc):
    pro = Pc["pro"]; S = stamp_ops
    seq = pro["main"] + pro["disp"] + pro["mid"] + pro["q1"] + pro["mk"] + pro["mk2"] + pro["q2"] + pro["jump"]
    seq += [Op(".p2align 6"), Op("L_loop0:")] + S() + Pc["loop0"] + [Op("L_loop1:")] + S() + Pc["loop1"]
    seq += Pc["exit"] + S() + Pc["diag1"] + [Op("L_diag2:")] + S() + Pc["diag2"] + S() + Pc["sw1"] + S() + Pc["sw2"] + Pc["sw2x"] + S() + Pc["sw3"] + S() + Pc["sw4"] + Pc["sw4x"]
    seq += [Op("L_lastx:")] + S() + Pc["lastx"] + [Op("s_branch L_final")]
    seq += [Op("L_diag2f:")] + S() + Pc["diag2f"] + [Op("L_last:")] + S() + Pc["last"] + Pc["fpre"] + S() + Pc["final"]
    if STAMP:
        seq += S() + raw(["s_waitcnt vmcnt(0)"]) + S()
        seq += raw([f"s_sub_u32 {sr(sA)}, {sr(sWS)}, s100", f"s_sub_u32 {sr(sA)}, {sr(sA)}, 0x1000000",
                    f"s_mul_hi_u32 {sr(sA)}, {sr(sA)}, {(1<<32)//49152+1}", f"s_lshl_b32 {sr(sA)}, {sr(sA)}, 2", f"s_add_u32 {sr(sA)}, {sr(sA)}, {sr(sW)}",
                    f"s_lshl_b32 {sr(sA)}, {sr(sA)}, 9", "v_mbcnt_lo_u32_b32 v0, -1, 0", "v_mbcnt_hi_u32_b32 v0, -1, v0", "v_lshlrev_b32 v0, 3, v0",
                    f"v_add_u32 v0, {sr(sA)}, v0", f"global_store_dwordx2 v0, {vr(STV,2)}, s[100:101]"])
    seq += raw(["L_end:", "s_endpgm"])
    for k, p in enumerate(sites):
        seq += raw([f"L_stub{k}:", f"s_call_b64 {sr(sRET,2)}, L_rt{p}", f"s_branch L_back{k}"])
    for p in range(2):
        r = Pc["rt"][p]
        seq += r["rare"] + r["head"] + r["E"][0] + r["E"][1] + r["E"][2] + r["E"][3] + r["X"] + r["LD"] + r["RET"]
    for k in sorted(pro["blocks"]): seq += pro["blocks"][k]
    return seq

HEADER = open("standalone__memory_aug_memorizing_tr__prompt.s.ref").read().split("; @launch")[0]
def text(seq):
    L = [HEADER.rstrip("\n"), "; @launch grid=(256,1,1) block=(256,1,1) lds=163840",
         '.amdgcn_target "amdgcn-amd-amdhsa--gfx950"', ".text", f".globl {KN}", ".p2align 8", f".type {KN},@function", f"{KN}:"]
    L += emit(seq)
    L += ['.section .rodata,"a"', ".p2align 6", f".amdhsa_kernel {KN}", "  .amdhsa_next_free_vgpr 512", "  .amdhsa_next_free_sgpr 102",
          "  .amdhsa_accum_offset 256", "  .amdhsa_group_segment_fixed_size 0", "  .amdhsa_kernarg_size 80", "  .amdhsa_user_sgpr_count 2",
          "  .amdhsa_user_sgpr_kernarg_segment_ptr 1", "  .amdhsa_system_sgpr_workgroup_id_x 1", ".end_amdhsa_kernel"]
    return "\n".join(L) + "\n"

NOGATHER = False; VERB = True; STAMP = False; NOMEM = False; THR = 2.0 ** 24; STV = 224
if __name__ == "__main__":
    import argparse
    ap = argparse.ArgumentParser()
    ap.add_argument("-o", default="k.s"); ap.add_argument("--stamp", action="store_true"); ap.add_argument("--nomem", action="store_true")
    ap.add_argument("--thr", type=float, default=2.0 ** 24); ap.add_argument("-q", action="store_true")
    ap.add_argument("--nt", default="nt"); ap.add_argument("--st", default=""); ap.add_argument("--nogather", action="store_true")
    a = ap.parse_args()
    NTMOD = a.nt; STMOD = a.st; NOGATHER = a.nogather
    STAMP = a.stamp; NOMEM = a.nomem; THR = a.thr; VERB = not a.q
    plans, Pc = build()
    import trace
    trace.analyse(plans, Pc, sites, VERB)
    open(a.o, "w").write(text(layout(Pc)))
```

```python
from core import *
class Ctx:
    def __init__(s, plan, w, t, ev=None): s.plan = plan; s.i = plan.i; s.w = w; s.t = t; s.n = plan.n(w); s.ev = ev

def wave_trace(plan, w, Pc, sites):
    tr = []; evs = list(plan.events[w]); pro = Pc["pro"]; n = plan.n(w); i = plan.i
    def events(p, t):
        r = Pc["rt"][p]
        while evs and evs[0][0] == t:
            e = evs.pop(0); c = Ctx(plan, w, t, e)
            if e[1] == 1:
                body = r["head"][:7] + r["LD"] + [o for k, o in enumerate(r["X"]) if k >= [x.text for x in r["X"]].index(f"L_nx{p}:")]
            else:
                body = [o for o in r["head"] if not (o.text == "s_waitcnt vmcnt(0)" and not e[5])] + r["E"][e[2]] + r["X"]
            tr.extend((o, c) for o in body)
        tr.extend((o, Ctx(plan, w, t)) for o in r["RET"])
    def add(seq, t):
        c = Ctx(plan, w, t)
        for o in seq:
            if "lonly" in o.meta and w >= 2: continue
            tr.append((o, c))
            if "site" in o.meta and evs and evs[0][0] == t:
                tr.append((Op("s_nop 7"), c)); events(sites[o.meta["site"]], t)
            if "evcall" in o.meta: events(1, t)
    add(pro["main"] + pro["disp"] + pro["blocks"][(i, w)] + pro["mid"] + pro["q1"] + pro["mk"] + (pro["mk2"] if (w >= 2 and n == 2) else []) + pro["q2"] + pro["jump"], -1)
    names = []
    for t in range(34):
        if t == 33: nm = "lastx" if (w >= 2 and n == 32) else "last"
        elif w >= 2 and n - 3 <= t <= n + 2: nm = ["diag1", "diag2", "sw1", "sw2", "sw3", "sw4"][t - n + 3]
        elif w == 0 and i == 7 and t >= 31: nm = ["diag1", "diag2f"][t - 31]
        else: nm = f"loop{t & 1}"
        names.append(nm); add(Pc[nm], t)
    add(Pc["fpre"] + Pc["final"], 34)
    assert not evs, ("unprocessed events", i, w, evs)
    return tr

def analyse(plans, Pc, sites, verb):
    allw = []
    cons = {}
    sop = {}
    def constrain(op, n):
        sop[id(op)] = op; cons[id(op)] = min(cons.get(id(op), 63), n)
    for plan in plans:
        W = []; DONE = []
        for w in range(4):
            tr = wave_trace(plan, w, Pc, sites)
            ep = 0; nvm = 0; rec = []; bars = []
            for pos, (o, c) in enumerate(tr):
                rec.append((o, c, ep, nvm))
                if o.kind in "DGT": nvm += 1
                if o.kind == "Z": bars.append(pos); ep += 1
            done = {}; cur = 0
            for pos, (o, c, e_, n_) in enumerate(rec):
                if o.kind == "W" and not hasattr(o, "vmtag"):
                    vm = parse_wait(o)[0]
                    if vm is not None:
                        while cur < n_ - vm: done[cur] = pos; cur += 1
            DONE.append(done)
            W.append((rec, bars))
        nb = {len(b) for _, b in W}; assert len(nb) == 1, ("barrier mismatch", plan.i, [len(b) for _, b in W])
        D = []; R = []; Wd = {};
        for w, (rec, bars) in enumerate(W):
            for pos, (o, c, ep, nvm) in enumerate(rec):
                for key in ("dma", "hw"):
                    if key in o.meta:
                        x = o.meta[key](c)
                        if x: D.append(dict(slot=x[0], tile=x[1], w=w, pos=pos, ep=ep, vm=nvm, h=(key == "hw")))
                if "src" in o.meta:
                    x = o.meta["src"](c)
                    if x: R.append(dict(slot=x[0], tile=x[1], w=w, pos=pos, ep=ep, op=o))
                if "wdst" in o.meta: Wd[c.ev[4]] = (w, ep, pos)
        assert sorted(Wd) == list(range(16)), ("W entries", plan.i, sorted(Wd))
        for w, (rec, bars) in enumerate(W):
            k = 0
            for pos, (o, c, ep, nvm) in enumerate(rec):
                if "wsrc" in o.meta:
                    j = int(o.text.split("offset:")[1]) // 64
                    e = (4 * w + j) if c.t < 33 else plan.vl(w, j)[1][1]
                    ww, wep, wpos = Wd[e]
                    assert (ww == w and wpos < pos) or wep < ep, ("W visibility", plan.i, w, e)
        bytile = {}
        for d in D: bytile.setdefault((d["slot"], d["tile"]), []).append(d)
        def lgkm_done(w, rpos, pos):
            rec = W[w][0]; cnt = 0
            for k in range(rpos + 1, pos):
                o = rec[k][0]
                if o.kind == "Z": return True
                if o.kind == "W" and not hasattr(o, "vmtag"):
                    lg = parse_wait(o)[1]
                    if lg is not None and lg <= cnt: return True
                if o.kind in "RHK": cnt += 1
            return False
        grp = {}
        for r in R: grp.setdefault((r["slot"], r["tile"], r["w"], r["ep"]), []).append(r)
        R2 = []
        for g in grp.values(): R2 += [g[0]] if len(g) == 1 else [g[0], g[-1]]
        byslot = {}
        for d in D: byslot.setdefault(d["slot"], []).append(d)
        for r in R2:
            key = (r["slot"], r["tile"]); ds = bytile.get(key, [])
            want = r["op"].meta.get("cnt", 12)
            assert len(ds) == want, ("tile incomplete", plan.i, r["w"], key, len(ds), W[r["w"]][0][r["pos"]][1].t)
            for d in ds:
                rec, bars = W[d["w"]]
                if d["w"] == r["w"]:
                    assert d["pos"] < r["pos"], ("read before load", key)
                    if d["h"]: continue
                    site = None
                    if DONE[d["w"]].get(d["vm"], 1 << 30) < r["pos"]: continue
                    for k in range(r["pos"] - 1, d["pos"], -1):
                        o = rec[k][0]
                        if (hasattr(o, "vmtag") and o.vmtag == r["op"].meta.get("needvm")) or (o.kind == "Z" and not r["op"].meta.get("needvm")): site = k; break
                    assert site is not None, ("no wait site", plan.i, r["w"], key)
                else:
                    assert d["ep"] < r["ep"], ("cross-wave read too early", plan.i, r["w"], key, d["ep"], r["ep"])
                    site = bars[r["ep"] - 1]
                    if d["h"]: continue
                    if DONE[d["w"]].get(d["vm"], 1 << 30) < site: continue
                constrain(rec[site][0], rec[site][3] - d["vm"] - 1)
            sig = (key, r["w"], r["ep"], r["pos"])
            first = min(d["ep"] for d in ds)
            for d2 in byslot[r["slot"]]:
                if d2["tile"] == r["tile"]: continue
                if r["tile"][0] == "Q" and d2["tile"][0] == "Q": continue
                if d2["ep"] > r["ep"]: continue
                if d2["ep"] == r["ep"] and d2["w"] == r["w"] and d2["pos"] > r["pos"]:
                    assert lgkm_done(r["w"], r["pos"], d2["pos"]), ("WAR own", plan.i, key, d2); continue
                ok = d2["ep"] < first or (d2["ep"] == first and all(d["w"] == d2["w"] and d["pos"] > d2["pos"] for d in ds if d["ep"] == first))
                assert ok, ("slot clobbered", plan.i, r["w"], key, r["ep"], d2)
        read = {(r["slot"], r["tile"]) for r in R}
        for key in bytile:
            assert key in read, ("tile never read", plan.i, key)
        for w in (2, 3):
            rec, bars = W[w]
            epq = min(ep for (o, c, ep, nvm) in rec if o.tag == "QL")
            prec, pbars = W[3 - w]
            lastq = max(nvm for (o, c, ep, nvm) in prec if o.tag == "QS")
            site = pbars[epq - 1]
            if not any("lonly" in o.meta for (o, c, ep, nvm) in prec[:site]): constrain(prec[site][0], prec[site][3] - lastq - 1)
            for k, (o, c, ep, nvm) in enumerate(rec):
                if getattr(o, "vmtag", None) == "QL":
                    lq = max(n2 for (o2, c2, e2, n2) in rec if o2.tag == "QL")
                    constrain(o, nvm - lq - 1)
        allw.append(W)
    for W in allw:
        for rec, bars in W:
            for (o, c, ep, nvm) in rec:
                if hasattr(o, "vm"):
                    o.vm = cons.get(id(o), 63 if o.kind != "Z" else 30)
                    assert o.vm >= 0
    if verb:
        for nm in ("loop0", "loop1", "diag1", "diag2", "sw1", "sw2", "sw3", "sw4", "diag2f", "last", "lastx", "final"):
            print(nm, [(getattr(o, "name", getattr(o, "vmtag", "")), o.vm) for o in Pc[nm] if hasattr(o, "vm")])
        print("pro", [(getattr(o, "name", getattr(o, "vmtag", "")), o.vm) for o in Pc["pro"]["main"] + Pc["pro"]["mid"] if hasattr(o, "vm")])
    for W in allw:
        for rec, bars in W:
            lq = []; vq = []; prov = {}
            for (o, c, ep, nvm) in rec:
                touch = o.rd | o.wr
                for p in lq:
                    assert not (p.kind in "RK" and p.wr & touch), ("missing lgkm wait", c.i, c.w, c.t, p.text, o.text)
                for p in vq:
                    assert not (p.kind == "G" and p.wr & touch), ("missing vm wait", c.i, c.w, c.t, p.text, o.text)
                vm = lg = None
                if hasattr(o, "vm"): vm = o.vm; lg = 0 if o.kind == "Z" else None
                elif o.kind == "W": vm, lg = parse_wait(o)
                if vm is not None and len(vq) > vm: vq = vq[len(vq) - vm:] if vm else []
                if lg is not None and len(lq) > lg: lq = lq[len(lq) - lg:] if lg else []
                if o.kind in "RHK": lq.append(o)
                if o.kind in "DGT": vq.append(o)
                if o.kind == "M" and "frag" in o.meta:
                    want = o.meta["frag"](c)
                    for r in o.A: assert prov.get(r) == want, ("frag provenance", c.i, c.w, c.t, o.text, prov.get(r), want)
                for r in o.wr: prov[r] = o.meta["gives"](c) if "gives" in o.meta else None
            fix_hazards([x[0] for x in rec], insert=False, name=f"i{rec[0][1].i} w{rec[0][1].w}")
    if verb: print("trace analysis OK")
```

```python
import sys, struct, math
from core import *
from plan import make_plan, NONE

KN = "standalone__memory_aug_memorizing_tr__prompt_kernel"
OV = 0; SB = [96, 128]; PB = [160, 176]; MN = 192; LR = 208; LS = 212; TMP = 216; NT = 8
KA = 226; VA = 228; PAT = 232; LTB = 233; XV = 234; YV = 236; DX = 238; DY = 239; CHK = 240; TA = 241; EV = 242
NEG = 243; FF = 244; OFF = 248; T0 = 249
QA = 96; FRB = 192
sX, sY, sG, sOUT, sWS = 4, 8, 12, 16, 20
bK, bV, bMK, bMV, bQ = 24, 26, 28, 30, 32
sT, sEXIT, sW, sI, sN, sU = 34, 35, 36, 37, 38, 39
sUA = 40
sSOX, sMX, sSOY, sMY, sWX, sWY, sTX, sTY = 43, 44, 45, 46, 47, 48, 49, 79
sTP = 50
sTHR, sG_, sOMG = 52, 54, 55
sDM = 56
sRM = 64
sDL = 70
sPM = 72
sEF = 76
sNEV = 78
sRET = 80
sEI, sREC = 82, 83
sRING, sROW, sA, sB_, sC, sD = 84, 85, 86, 87, 88, 89
sCP = 90
sV0, sV1, sWE, sXK, sM0 = 92, 93, 94, 95, 96
sPV0, sPV1 = 97, 98
sST = 53
TILE = 12288
TB = 159744; WB = TB + 2176; XCH = TB
Z2G, Z1G = 6, 64
NTMOD = "nt"

def f32(x): return "0x%08x" % struct.unpack("<I", struct.pack("<f", x))[0]
def vr(a, n=1): return f"v{a}" if n == 1 else f"v[{a}:{a+n-1}]"
def ar(a, n=1): return f"a{a}" if n == 1 else f"a[{a}:{a+n-1}]"
def sr(a, n=1): return f"s{a}" if n == 1 else f"s[{a}:{a+n-1}]"
def FR(n): return FRB + 4 * (n % 16)
def Oreg(qb, dt): return vr(OV + 48 * qb + 4 * dt, 4) if qb < 2 else ar(48 * (qb - 2) + 4 * dt, 4)
def Qreg(qb, s): return ar(QA + 24 * qb + 4 * s, 4)
def St(p, kt, qb): return SB[p] + 16 * kt + 4 * qb
def lin(a, b, n): return [a + (b - a) * k / max(n - 1, 1) for k in range(n)]
def bc(f):
    return (vr(f, 2), (0, 0)) if f % 2 == 0 else (vr(f - 1, 2), (1, 1))
def pkmul(d, a, f):
    r, (lo, hi) = bc(f); return f"v_pk_mul_f32 {vr(d,2)}, {vr(a,2)}, {r} op_sel:[0,{lo}] op_sel_hi:[1,{hi}]"
def pkfma(d, a, f, c):
    r, (lo, hi) = bc(f); return f"v_pk_fma_f32 {vr(d,2)}, {vr(a,2)}, {r}, {vr(c,2)} op_sel:[0,{lo},0] op_sel_hi:[1,{hi},1]"

def cur_ring(c, t):
    return 4 if (c.w >= 2 and t >= c.n + 2) else 0
def ktile(c, j):
    if j > 33: return None
    if c.w >= 2 and c.n <= j < c.n + 2: return None
    r = cur_ring(c, j); return (r + (j & 1), ("K", 67 - j if r else j))
def vtile(c, j):
    r = cur_ring(c, j); return (r + 2 + (j & 1), ("V", 67 - j if r else j))
def chan(c, ch, t):
    d = c.plan.chan[c.w >> 1][ch].get(t)
    if d is None: return None
    kind, src, dest = d
    return (dest, (kind, src))

def qk(p, tiles, ats, czero=()):
    ops = []; k = 0
    for (kt, qb) in tiles:
        d = vr(St(p, kt, qb), 4)
        for s in range(6):
            c = d if s else ("0" if qb in czero else vr(MN + 4 * qb, 4))
            ops.append(Op(f"v_mfma_f32_16x16x32_bf16 {d}, {ar(FR(24*p+6*kt+s),4)}, {Qreg(qb,s)}, {c}", at=ats[k],
                          meta=dict(kt=kt, frag=lambda c, kt=kt, s=s: ("K", c.t + 1, kt, s)))); k += 1
    return ops
def pv(p, qbs, ats, czero=False):
    ops = []; k = 0
    for dt in range(12):
        for qb in qbs:
            o = Oreg(qb, dt)
            ops.append(Op(f"v_mfma_f32_16x16x32_bf16 {o}, {ar(FR(24*p+12+dt),4)}, {vr(PB[1-p]+4*qb,4)}, {'0' if czero else o}", at=ats[k],
                          meta=dict(frag=lambda c, dt=dt: ("V", c.t, dt)))); k += 1
    return ops
def vreads(p, g0, g1):
    ops = []; at = lin(g0, g1, 24)
    for dt in range(12):
        a = FR(24 * p + 12 + dt)
        for eh in range(2):
            ops.append(Op(f"ds_read_b64_tr_b16 {ar(a+2*eh,2)}, {vr(VA+(dt&3))} offset:{p*TILE + eh*6144 + (dt>>2)*1024}",
                          at=at[2*dt+eh], tag=f"V{dt}", meta=dict(src=lambda c: vtile(c, c.t), gives=lambda c, dt=dt: ("V", c.t, dt))))
    return ops
def kreads(p, g0, g1):
    ops = []; at = lin(g0, g1, 12)
    for n in range(12):
        kt, s = n // 6, n % 6
        ops.append(Op(f"ds_read_b128 {ar(FR(24*p+24+n),4)}, {vr(KA+(s&1))} offset:{p*TILE + kt*6144 + (s>>1)*1024}",
                      at=at[n], tag=f"K{kt}", meta=dict(src=lambda c: ktile(c, c.t + 2), gives=lambda c, kt=kt, s=s: ("K", c.t + 2, kt, s))))
    return ops
def softmax(sp, tiles, g0, g1, fresh, acc=LS):
    ops = []; n = 4 * len(tiles); at = lin(g0, g1, n); k = 0; fresh = set(fresh)
    for (kt, qb) in tiles:
        for r in range(4):
            t = TMP + (k % NT)
            ops.append(Op(f"v_exp_f32 {vr(t)}, {vr(St(sp,kt,qb)+r)}", at=at[k]))
            a = at[k] + 1.5
            if qb in fresh:
                if r == 1: ops.append(Op(f"v_add_f32 {vr(acc+qb)}, {vr(t-1)}, {vr(t)}", at=a)); fresh.discard(qb)
            else: ops.append(Op(f"v_add_f32 {vr(acc+qb)}, {vr(acc+qb)}, {vr(t)}", at=a))
            if r & 1: ops.append(Op(f"v_cvt_pk_bf16_f32 {vr(PB[sp]+4*qb+2*kt+(r>>1))}, {vr(t-1)}, {vr(t)}", at=a + 0.01))
            k += 1
    return ops
def duty(ch, g0, g1):
    vo, srd, so, m0 = (XV, sX, sSOX, sMX) if ch == "X" else (YV, sY, sSOY, sMY)
    ops = [Op(f"v_add_u32 {vr(vo)}, {vr(PAT)}, {vr(vo)}", at=g0), Op(f"v_add_u32 {vr(vo+1)}, {vr(PAT)}, {vr(vo+1)}", at=g0 + 0.01)]
    at = lin(g0 + 2, g1, 6)
    for a in range(3):
        ops.append(Op(f"s_add_u32 m0, {sr(m0)}, {sr(sUA+a)}", at=at[2*a] - 1.5))
        for rg in range(2):
            ops.append(Op(f"buffer_load_dwordx4 {vr(vo+rg)}, {sr(srd,4)}, {sr(so)} offen offset:{rg*3072+a*128} {NTMOD} lds",
                          at=at[2*a+rg], meta=dict(dma=lambda c, ch=ch: chan(c, ch, c.t))))
    return ops
def decode(ch, g0, g1):
    vo, srd, so, m0, w, tb, dv, bs = (XV, sX, sSOX, sMX, sWX, sTX, DX, bK) if ch == "X" else (YV, sY, sSOY, sMY, sWY, sTY, DY, bV)
    T = [f"v_readlane_b32 {sr(w)}, {vr(dv)}, {sr(sT)}",
         f"s_and_b32 {sr(tb)}, {sr(w)}, 0xfff",
         f"s_and_b32 {sr(m0)}, {sr(w)}, 0xff000",
         f"s_lshr_b32 {sr(so)}, {sr(w)}, 8",
         f"s_and_b32 {sr(so)}, {sr(so)}, 0xff000",
         f"s_bitcmp1_b32 {sr(w)}, 28",
         f"s_cselect_b64 {sr(sTP,2)}, {sr(bMV,2)}, {sr(bMK,2)}",
         f"s_bitcmp1_b32 {sr(w)}, 29",
         f"s_cselect_b64 {sr(srd,2)}, {sr(sTP,2)}, {sr(bs,2)}",
         f"v_add_u32 {vr(TA)}, {sr(tb)}, {vr(LTB)}",
         f"ds_read_b64 {vr(vo,2)}, {vr(TA)}"]
    at = lin(g0, g1, len(T))
    at[6] = at[5] + 0.001; at[8] = at[7] + 0.001
    return [Op(x, at=a, tag="TB" + ch) for x, a in zip(T, at)]
sites = []
def check(p, g, qbs=(0, 1, 2, 3)):
    k = len(sites); sites.append(p)
    ops = []
    if len(qbs) == 4:
        ops.append(Op(f"v_max3_f32 {vr(CHK)}, {vr(LS)}, {vr(LS+1)}, {vr(LS+2)}", at=g - 3))
        ops.append(Op(f"v_max_f32 {vr(CHK)}, {vr(CHK)}, {vr(LS+3)}", at=g - 2))
    else:
        ops.append(Op(f"v_max_f32 {vr(CHK)}, {vr(LS+qbs[0])}, {vr(LS+qbs[1])}", at=g - 2))
    ops.append(Op(f"s_cmp_eq_u32 {sr(sT)}, {sr(sNEV)}", at=g - 9))
    ops.append(Op(f"s_cselect_b64 {sr(sEF,2)}, -1, 0", at=g - 8.999))
    ops.append(Op(f"v_cmp_lt_f32 vcc, {sr(sTHR)}, {vr(CHK)}", at=g - 1.5))
    ops.append(Op(f"s_or_b64 vcc, vcc, {sr(sEF,2)}", at=g - 1))
    b = Op(f"s_cbranch_vccnz L_stub{k}", at=g + 0.1, meta=dict(site=k)); ops.append(b)
    for j, qb in enumerate(qbs):
        ops.append(Op(f"v_add_f32 {vr(LR+qb)}, {vr(LR+qb)}, {vr(LS+qb)}", at=g + 0.2 + 0.01 * j))
    return ops
def masks(p, diag, full, at):
    ops = [Op(f"v_mov_b32 {vr(NEG)}, 0xff800000", at=0.5)]
    for (kt, qb), a in zip(full, at[len(diag):]):
        for r in range(4): ops.append(Op(f"v_mov_b32 {vr(St(p,kt,qb)+r)}, 0xff800000", at=a + 0.01 * r))
    for (kt, qb), a in zip(diag, at):
        for r in range(4):
            x = vr(St(p, kt, qb) + r)
            ops.append(Op(f"v_cndmask_b32 {x}, {x}, {vr(NEG)}, {sr(sDM+2*r,2)}", at=a + 0.01 * r))
    return ops
def xlane(op, x, t, at):
    T = [f"v_mov_b32 {vr(t)}, {vr(x)}", f"v_permlane16_swap_b32 {vr(x)}, {vr(t)}", f"{op} {vr(x)}, {vr(x)}, {vr(t)}",
         f"v_mov_b32 {vr(t)}, {vr(x)}", f"v_permlane32_swap_b32 {vr(x)}, {vr(t)}", f"{op} {vr(x)}, {vr(x)}, {vr(t)}"]
    return [Op(s, at=at + 0.001 * k) for k, s in enumerate(T)]
def initmax(sp, qb, at, x, t):
    a, b = St(sp, 0, qb), St(sp, 1, qb)
    T = [f"v_max3_f32 {vr(x)}, {vr(a)}, {vr(a+1)}, {vr(a+2)}", f"v_max3_f32 {vr(t)}, {vr(a+3)}, {vr(b)}, {vr(b+1)}",
         f"v_max3_f32 {vr(x)}, {vr(x)}, {vr(b+2)}, {vr(b+3)}", f"v_max_f32 {vr(x)}, {vr(x)}, {vr(t)}"]
    ops = [Op(s, at=at + 0.001 * k) for k, s in enumerate(T)]
    ops += xlane("v_max_f32", x, t, at + 0.01)
    for k, r in enumerate([a, a+1, a+2, a+3, b, b+1, b+2, b+3]):
        ops.append(Op(f"v_sub_f32 {vr(r)}, {vr(r)}, {vr(x)}", at=at + 0.02 + 0.001 * k))
    for r in range(4): ops.append(Op(f"v_sub_f32 {vr(MN+4*qb+r)}, 0, {vr(x)}", at=at + 0.03 + 0.001 * r))
    return ops
def step_inc(at): return [Op(f"s_add_u32 {sr(sT)}, {sr(sT)}, 1", at=at)]
ALLT = [(kt, qb) for kt in range(2) for qb in range(4)]
KT0 = [(0, qb) for qb in range(4)]; KT1 = [(1, qb) for qb in range(4)]

def frame(p, kr=True, vr_=True, v0=7, v1=55):
    ops = [Bar("Z2", Z2G + 0.1), Bar("Z1", Z1G + 0.1)]
    ops += duty("X", Z2G + 1, 60) + duty("Y", Z1G + 1, 93)
    ops += decode("Y", 0.3, 53.5) + decode("X", 62, 91.5)
    if vr_: ops += vreads(p, v0 + 0.2, v1)
    if kr: ops += kreads(p, Z1G + 1.2, 92.2) + [Wait("K0", 93.5)]
    ops += step_inc(93.6)
    return ops

def normal(p, tiles=ALLT, diag=(), full=(), name="", tail=None):
    ops = frame(p)
    ats = []
    for (kt, qb) in tiles: ats += [24 * kt + 6 * qb + s for s in range(6)]
    ops += qk(p, tiles, ats) + pv(p, range(4), list(range(48, 96)))
    ops += [Wait([f"V{d}" for d in range(5)], 45.5)]
    ops += softmax(1 - p, KT1, 0.2, 40, ()) + check(p, 47) + softmax(p, KT0, 48.2, 91, range(4))
    if diag or full:
        ops += masks(p, diag, full, [24 * kt + 6 * qb + 9 for kt, qb in diag] + [24 * kt + 6 * qb for kt, qb in full])
    if tail: ops += tail
    return finish(ops, name)

def finish(ops, name, order="at"):
    z2 = [o for o in ops if getattr(o, "name", "") == "Z2"]
    if z2:
        for o in ops:
            if o.meta.get("kt") == 1 or (o.kind == "V" and o.wr & {f"v{XV}", f"v{XV+1}"}): o.after.append(z2[0])
    seq, tot = schedule(ops, verbose=VERB, name=name, order=order)
    seq = auto_waits(seq)
    seq, nn = fix_hazards(seq)
    if VERB and nn: print(f"   {name}: {nn} nops inserted")
    out = []
    for o in seq:
        out.append(o)
        if "site" in o.meta: out.append(Op(f"L_back{o.meta['site']}:"))
    return out

def raw(lines):
    return [x if isinstance(x, Op) else Op(x) for x in lines]
def rawfin(lines):
    seq = auto_waits(raw(lines)); seq, _ = fix_hazards(seq); return seq

def lreduce(qbs, at):
    ops = []
    for j, qb in enumerate(qbs): ops += xlane("v_add_f32", LR + qb, T0 + (j & 1), at + 0.1 * j)
    return ops
def pbuild(j, dst, woff_sgpr, imm, at, t):
    T = [f"ds_read_b32 {vr(t)}, {vr(TA)} offset:{imm}",
         f"v_exp_f32 {vr(t+1)}, -|{vr(t)}|",
         f"v_add_f32 {vr(t+2)}, 1.0, {vr(t+1)}",
         f"v_rcp_f32 {vr(t+2)}, {vr(t+2)}",
         f"v_cmp_le_f32 vcc, 0, {vr(t)}",
         f"v_mul_f32 {vr(t+2)}, {sr(sG_)}, {vr(t+2)}",
         f"v_mul_f32 {vr(t+1)}, {vr(t+1)}, {vr(t+2)}",
         f"v_cndmask_b32 {vr(t)}, {vr(t+1)}, {vr(t+2)}, vcc",
         f"v_cndmask_b32 {vr(t+3)}, {vr(t+2)}, {vr(t+1)}, vcc",
         f"v_cvt_pk_bf16_f32 {vr(t)}, {vr(t)}, {vr(t)}",
         f"v_cvt_pk_bf16_f32 {vr(t+3)}, {vr(t+3)}, {vr(t+3)}",
         f"v_and_b32 {vr(t)}, {vr(CHK)}, {vr(t)}",
         f"v_and_b32 {vr(t+3)}, {vr(CHK)}, {vr(t+3)}",
         f"v_cndmask_b32 {vr(dst)}, 0, {vr(t)}, {sr(sPM,2)}", f"v_cndmask_b32 {vr(dst+1)}, 0, {vr(t)}, {sr(sPM+2,2)}",
         f"v_cndmask_b32 {vr(dst+2)}, 0, {vr(t+3)}, {sr(sPM,2)}", f"v_cndmask_b32 {vr(dst+3)}, 0, {vr(t+3)}, {sr(sPM+2,2)}"]
    ops = [Op(s, at=at + 0.001 * k) for k, s in enumerate(T)]
    return ops
def pbuild_pre(woff_sgpr, at):
    T = [f"v_mbcnt_lo_u32_b32 {vr(TA)}, -1, 0", f"v_mbcnt_hi_u32_b32 {vr(TA)}, -1, {vr(TA)}",
         f"v_and_b32 {vr(CHK)}, 1, {vr(TA)}", f"v_lshlrev_b32 {vr(CHK)}, 4, {vr(CHK)}", f"v_mov_b32 {vr(NEG)}, 0xffff",
         f"v_lshlrev_b32 {vr(CHK)}, {vr(CHK)}, {vr(NEG)}",
         f"v_and_b32 {vr(TA)}, 15, {vr(TA)}", f"v_lshlrev_b32 {vr(TA)}, 2, {vr(TA)}", f"v_add_u32 {vr(TA)}, {sr(woff_sgpr)}, {vr(TA)}"]
    return [Op(s, at=at + 0.001 * k) for k, s in enumerate(T)]
def pvmem(acc, preg, addr, imm0, fr0, nfr, at0, at1, src, needvm=None, k0=0):
    ops = []; at = lin(at0, at1, 12)
    for dt in range(12):
        a = fr0 + 4 * ((k0 + dt) % nfr)
        for eh in range(2):
            ops.append(Op(f"ds_read_b64_tr_b16 {ar(a+2*eh,2)}, {vr(addr+(dt&3))} offset:{imm0 + eh*6144 + (dt>>2)*1024}",
                          at=at[dt] + 0.01 * eh, meta=dict(src=src, needvm=needvm)))
        o = vr(acc + 4 * dt, 4)
        ops.append(Op(f"v_mfma_f32_16x16x32_bf16 {o}, {ar(a,4)}, {vr(preg,4)}, {o}", at=at[dt] + 0.02))
    return ops
def outstore(acc, soff, at0, at1):
    ops = []; at = lin(at0, at1, 6)
    for u in range(6):
        x = acc + 8 * u; a = at[u]
        T = [f"v_cvt_pk_bf16_f32 {vr(x)}, {vr(x)}, {vr(x+1)}", f"v_cvt_pk_bf16_f32 {vr(x+1)}, {vr(x+2)}, {vr(x+3)}",
             f"v_cvt_pk_bf16_f32 {vr(x+2)}, {vr(x+4)}, {vr(x+5)}", f"v_cvt_pk_bf16_f32 {vr(x+3)}, {vr(x+6)}, {vr(x+7)}",
             f"v_permlane16_swap_b32 {vr(x)}, {vr(x+2)}", f"v_permlane16_swap_b32 {vr(x+1)}, {vr(x+3)}",
             f"buffer_store_dwordx4 {vr(x,4)}, {vr(OFF)}, {sr(sOUT,4)}, {sr(soff)} offen offset:{64*u} {STMOD}"]
        ops += [Op(s, at=a + 0.001 * k) for k, s in enumerate(T)]
    return ops
STMOD = ""
MV = 96

def merge_m0(ops):
    rest, groups = [], []
    for o in ops:
        if "m0" in o.wr: groups.append([o])
        elif o.kind == "D": groups[-1].append(o)
        else: rest.append(o)
    groups.sort(key=lambda g: g[1].at)
    for g in groups:
        for o in g[2:]: o.at = min(o.at, g[1].at + 1)
    return rest + [o for g in groups for o in g]

def listframe(p, pre, mid, post, kr=False, vrd=None):
    ops = decode("Y", 0.3, 5)[:-2] + pre + [Bar("Z2", Z2G + 0.1)]
    ops += merge_m0(duty("X", Z2G + 1, 60) + mid)
    ops += [Op(o.text, at=50 + k, tag="TBY") for k, o in enumerate(decode("Y", 0, 0)[-2:])]
    ops += [Bar("Z1", Z1G + 0.1)] + duty("Y", Z1G + 1, 93)
    if kr: ops += kreads(p, Z1G + 1.2, 90)
    ops += post
    ops += decode("X", 66, 91.5)
    if kr: ops += [Wait("K0", 93.5)]
    ops += step_inc(93.6)
    return ops

def diag2():
    p = 0
    ops = frame(p, kr=False)
    tiles = [(0, 2), (0, 3), (1, 3)]
    ops += qk(p, tiles, lin(0, 44, 18)) + pv(p, range(4), list(range(48, 96)))
    ops += [Wait([f"V{d}" for d in range(5)], 45.5)]
    ops += softmax(1, KT1, 0.2, 40, ()) + check(p, 47)
    ops += masks(p, [(0, 2), (1, 3)], [(1, 2)], [22, 50, 30])
    ops += softmax(0, tiles, 48.2, 88, (2, 3))
    ops += [Op(f"v_mov_b32 {vr(PB[0]+8+2+k)}, 0", at=49 + k) for k in range(2)]
    ops += [Op(f"v_mov_b32 {vr(LS+k)}, 0", at=51 + k) for k in range(2)]
    ops += [Op(f"v_mbcnt_lo_u32_b32 {vr(T0)}, -1, 0", at=47.3), Op(f"v_mbcnt_hi_u32_b32 {vr(T0)}, -1, {vr(T0)}", at=47.4),
            Op(f"v_lshlrev_b32 {vr(T0)}, 4, {vr(T0)}", at=47.5)]
    at = lin(50, 94, 24)
    for j in range(4):
        for h in range(2):
            k0 = 6 * j + 3 * h
            ops.append(Op(f"s_add_u32 {sr(sA)}, {sr(sB_)}, {((j^2)*6+3*h)*1024}", at=at[k0] - 1.2))
            for s in range(3):
                ops.append(Op(f"buffer_load_dwordx4 {Qreg(j,3*h+s)}, {vr(T0)}, {sr(sWS,4)}, {sr(sA)} offen offset:{s*1024}",
                              at=at[k0+s], tag="QL"))
    return finish(ops, "DIAG2")

def sw1():
    p = 1
    pre = check(p, 2, qbs=(2, 3))
    for o in pre: o.at = max(o.at, 0)
    pre += lreduce(range(4), 3)
    for j in range(4):
        pre += [Op(f"v_rcp_f32 {vr(FF+j)}, {vr(LR+j)}", at=4 + 0.1 * j), Op(f"v_mul_f32 {vr(FF+j)}, {sr(sOMG)}, {vr(FF+j)}", at=4.5 + 0.1 * j)]
    BV = SB[1]
    pre += [Op(f"s_lshl_b32 {sr(sA)}, {sr(sW)}, 9", at=2.5), Op(f"s_lshl_b32 {sr(sC)}, {sr(sU)}, 6", at=2.5), Op(f"s_sub_u32 {sr(sA)}, {sr(sA)}, {sr(sC)}", at=2.5),
            Op(f"v_add_u32 {vr(T0+2)}, {sr(sA)}, {vr(LTB)}", at=2.6),
            Op(f"s_mov_b64 {sr(sG,2)}, {sr(bMV,2)}", at=2.6)]
    for j in range(4):
        for nb in range(2):
            pre.append(Op(f"ds_read_b64 {vr(BV+4*j+2*nb,2)}, {vr(T0+2)} offset:{j*128+nb*64}", at=2.7))
    mid = vreads(p, 7, 30)
    mid += pv(p, (2, 3), lin(14, 50, 24))
    at = lin(8, 62, 48); k = 0
    bulk = []
    for j in range(4):
        for nb in range(2):
            for rg in range(2):
                r = BV + 4 * j + 2 * nb + rg
                bulk.append(Op(f"v_add_u32 {vr(r)}, {vr(PAT)}, {vr(r)}", at=7))
    for j in (3, 2, 0, 1):
        for nb in range(2):
            for a in range(3):
                bulk.append(Op(f"s_mov_b32 m0, {(8+j)*TILE + nb*6144 + 896*a}", at=at[k] - 0.5))
                for rg in range(2):
                    bulk.append(Op(f"buffer_load_dwordx4 {vr(BV+4*j+2*nb+rg)}, {sr(sG,4)}, 0 offen offset:{rg*3072+a*128} {NTMOD} lds",
                                   at=at[k], tag=f"VS{j}", meta=dict(dma=lambda c, j=j: (8 + j, ("MV", 4 * c.w + j))))); k += 1
    mid += bulk
    post = []
    for j in range(2):
        for r in range(0, 48, 2): post.append(Op(pkmul(OV + 48*j + r, OV + 48*j + r, FF + j), at=52))
    post += [Op(f"v_add_u32 {vr(KA+k)}, {4*TILE}, {vr(KA+k)}", at=60) for k in range(6)]
    post += [Op(f"s_mov_b32 {sr(sRING)}, {4*TILE}", at=60)]
    for r in range(0, 96, 2):
        post += [Op(f"v_accvgpr_read_b32 {vr(MV+r)}, {ar(r)}", at=66), Op(f"v_accvgpr_read_b32 {vr(MV+r+1)}, {ar(r+1)}", at=66),
                 Op(pkmul(MV + r, MV + r, FF + 2 + r // 48), at=66)]
    ops = listframe(p, pre, mid, post)
    return finish(ops, "SW1", order="list")

ACC = [OV, OV + 48, MV, MV + 48]
def sw2():
    p = 0
    pre = [Op(f"s_lshl_b32 {sr(sA)}, {sr(sW)}, 8", at=0), Op(f"s_add_u32 {sr(sA)}, {sr(sA)}, {WB}", at=0)]
    pre += pbuild_pre(sA, 0)
    for j in range(4): pre += pbuild(j, MN + 4 * j, sA, 64 * j, 0.5 + 0.1 * j, TMP + 4 * (j & 1))
    for o in pre:
        if o.kind == "R": o.meta["wsrc"] = True
    pre += [Op(f"v_add_u32 {vr(T0+k)}, {2*TILE}, {vr(VA+k)}", at=1) for k in range(4)]
    mid = []; post = []
    order = [3, 2, 0, 1]
    for n_, j in enumerate(order):
        dst = mid if n_ < 2 else post
        a0 = 20 + 18 * n_
        dst.append(WaitVM(f"VS{j}", at=a0 - 1))
        dst += pvmem(ACC[j], MN + 4 * j, T0, j * TILE, 0, 24, a0, a0 + 16, (lambda c, j=j: (8 + j, ("MV", 4 * c.w + j))), needvm=f"VS{j}", k0=12 * n_)
    post += [Op(f"s_add_u32 {sr(sA)}, {sr(sROW)}, {3*6144}", at=60)] + outstore(ACC[3], sA, 60, 90)
    ops = listframe(p, pre, mid, post, kr=True)
    return finish(ops, "SW2", order="list")

def sw3_fin():
    ops = []
    for n_, j in enumerate([2, 0, 1]):
        s = [sC, sD, sA][n_]
        ops += [Op(f"s_add_u32 {sr(s)}, {sr(sROW)}, {j*6144}", at=0)] + outstore(ACC[j], s, 0.1 + 20 * n_, 15 + 20 * n_)
    return ops
def sw3():
    p = 1
    fin = sw3_fin()
    n1 = 1 + 7 * 6
    pre = fin[:n1]
    tiles = [(0, 0), (0, 1), (1, 1)]
    mid = [WaitVM("QL", at=10)]
    q = qk(p, tiles, lin(14, 34, 18), czero=(0, 1))
    for o in q: o.after.append(mid[0])
    mid += q + masks(p, [(0, 0), (1, 1)], [(1, 0)], [24, 38, 16])
    mid += initmax(p, 0, 40, T0, T0 + 1) + initmax(p, 1, 40.5, T0 + 2, T0 + 3)
    mid += fin[n1:]
    post = softmax(p, tiles, 56, 88, (0, 1), acc=LR)
    post += [Op(f"v_mov_b32 {vr(PB[1]+r)}, 0", at=60) for r in (2, 3, 8, 9, 10, 11, 12, 13, 14, 15)]
    post += [Op(f"v_mov_b32 {vr(LR+2+k)}, 0", at=60) for k in range(2)]
    ops = listframe(p, pre, mid, post, kr=True)
    return finish(ops, "SW3", order="list")

def sw4():
    p = 0
    ops = frame(p)
    tiles = [(0, 2), (0, 3), (0, 0), (0, 1), (1, 3), (1, 0), (1, 1)]
    ops += qk(p, tiles, list(range(42)), czero=(2, 3)) + pv(p, range(4), list(range(48, 96)), czero=True)
    ops += [Wait([f"V{d}" for d in range(5)], 45.5)]
    ops += masks(p, [(0, 2), (1, 3)], [(1, 2)], [9, 33, 2])
    ops += initmax(p, 2, 11, T0, T0 + 1) + initmax(p, 3, 34, T0 + 2, T0 + 3)
    ops += softmax(p, KT0, 48.2, 91, range(4))
    return finish(ops, "SW4")

def xch_write(at):
    T = [f"v_mbcnt_lo_u32_b32 {vr(T0+2)}, -1, 0", f"v_mbcnt_hi_u32_b32 {vr(T0+2)}, -1, {vr(T0+2)}",
         f"v_and_b32 {vr(T0+2)}, 15, {vr(T0+2)}", f"v_lshlrev_b32 {vr(T0+2)}, 2, {vr(T0+2)}",
         f"s_lshl_b32 {sr(sA)}, {sr(sW)}, 8", f"s_add_u32 {sr(sC)}, {sr(sA)}, {XCH}", f"s_sub_u32 {sr(sD)}, {XCH+768}, {sr(sA)}",
         f"v_add_u32 {vr(T0+3)}, {sr(sC)}, {vr(T0+2)}", f"v_add_u32 {vr(T0+2)}, {sr(sD)}, {vr(T0+2)}",
         f"ds_write_b32 {vr(T0+3)}, {vr(MN+8)}", f"ds_write_b32 {vr(T0+3)}, {vr(MN+12)} offset:64",
         f"ds_write_b32 {vr(T0+3)}, {vr(LR+2)} offset:128", f"ds_write_b32 {vr(T0+3)}, {vr(LR+3)} offset:192"]
    return [Op(s, at=at + 0.001 * k) for k, s in enumerate(T)]
def xch_read(at):
    t = TMP
    T = [f"ds_read_b32 {vr(t)}, {vr(T0+2)}", f"ds_read_b32 {vr(t+1)}, {vr(T0+2)} offset:64",
         f"ds_read_b32 {vr(t+2)}, {vr(T0+2)} offset:128", f"ds_read_b32 {vr(t+3)}, {vr(T0+2)} offset:192"]
    for j in range(2):
        m = t + 4 + 2 * j
        T += [f"v_min_f32 {vr(m)}, {vr(MN+4*j)}, {vr(t+j)}",
              f"v_sub_f32 {vr(FF+j)}, {vr(m)}, {vr(MN+4*j)}", f"v_sub_f32 {vr(FF+2+j)}, {vr(m)}, {vr(t+j)}",
              f"v_exp_f32 {vr(FF+j)}, {vr(FF+j)}", f"v_exp_f32 {vr(FF+2+j)}, {vr(FF+2+j)}",
              f"v_mul_f32 {vr(m)}, {vr(FF+j)}, {vr(LR+j)}", f"v_fma_f32 {vr(m)}, {vr(FF+2+j)}, {vr(t+2+j)}, {vr(m)}",
              f"v_rcp_f32 {vr(m)}, {vr(m)}", f"v_mul_f32 {vr(m)}, {sr(sOMG)}, {vr(m)}",
              f"v_mul_f32 {vr(FF+j)}, {vr(FF+j)}, {vr(m)}", f"v_mul_f32 {vr(FF+2+j)}, {vr(FF+2+j)}, {vr(m)}"]
    return [Op(s, at=at + 0.001 * k) for k, s in enumerate(T)]
PM = SB[1]
def last_post(at):
    ops = xch_read(at) + pbuild_pre(sWE, at + 1)
    for j in range(2): ops += pbuild(j, PM + 4 * j, sWE, 64 * j, at + 2 + j, PM + 8 + 4 * j)
    for o in ops:
        if o.kind == "R" and o.at >= at + 1: o.meta["wsrc"] = True
    return ops
def last():
    p = 1
    ops = softmax(0, KT1[:1], 0, 3, ()) + [Bar("Z2", 4)] + duty("X", 5, 18) + vreads(p, 5, 24)
    ops += softmax(0, KT1[1:], 4, 20, ())
    ops += check(p, 22)
    ops += lreduce(range(4), 23) + xch_write(24)
    m = pv(p, range(4), list(range(24, 72)))
    ops += m[:16] + [Bar("Z1", 40)] + m[16:] + last_post(41)
    return finish(ops, "LAST", order="list")
def lastx():
    fin = sw3_fin()
    ops = fin[:15] + [Bar("Z2", 4)] + duty("X", 5, 18) + fin[15:]
    ops += [Op(f"v_mov_b32 {vr(MN+r)}, {f32(1e30)}", at=5) for r in (0, 4, 8, 12)]
    ops += [Op(f"v_mov_b32 {vr(LR+r)}, 0", at=5) for r in range(4)]
    ops += xch_write(6) + [Bar("Z1", 40)]
    ops += [Op(f"v_mov_b32 {vr(OV+r)}, 0", at=41) for r in range(96)]
    ops += [Op(f"v_accvgpr_write_b32 {ar(r)}, 0", at=41) for r in range(96)]
    ops += last_post(41)
    return finish(ops, "LASTX", order="list")
def final():
    ops = []
    for j in range(2):
        for r in range(0, 48, 2): ops.append(Op(pkmul(OV + 48*j + r, OV + 48*j + r, FF + j), at=0))
    A = TMP
    for j, s in enumerate((sV0, sV1)):
        ops += [Op(f"s_sub_u32 {sr(sA)}, {sr(s)}, {sr(sRING)}", at=0), Op(f"s_sub_u32 {sr(sA)}, {sr(sA)}, {2*TILE}", at=0)]
        ops += [Op(f"v_add_u32 {vr(A+4*j+k)}, {sr(sA)}, {vr(VA+k)}", at=0) for k in range(4)]
    ops += [Op(f"v_mbcnt_lo_u32_b32 {vr(T0)}, -1, 0", at=0), Op(f"v_mbcnt_hi_u32_b32 {vr(T0)}, -1, {vr(T0)}", at=0),
            Op(f"v_lshlrev_b32 {vr(T0)}, 4, {vr(T0)}", at=0)]
    for k, s in enumerate((sV0, sV1, sPV0, sPV1)): ops.append(Op(f"v_add_u32 {vr(T0+1+k)}, {sr(s)}, {vr(T0)}", at=0))
    ops.append(Bar("Z3", 1))
    for j in range(2):
        pm = pvmem(OV + 48 * j, PM + 4 * j, A + 4 * j, 0, QA, 24, 4 + 14 * j, 16 + 14 * j, (lambda c, j=j: c.plan.vl(c.w, j)), k0=12 * j)
        for o in pm:
            if o.kind == "R": o.tag = f"PM{j}"
        ops += pm
    for j in range(2):
        ops.append(Wait(f"PM{j}", 18 + 14 * j)); w = ops[-1]
        for dt in range(12):
            ops.append(Op(f"ds_write_b128 {vr(T0+1+j)}, {ar(48*j+4*dt,4)} offset:{1024*dt}", at=18 + 14 * j, after=[w],
                          meta=dict(hw=lambda c, j=j: (c.plan.vl(c.w, j)[0], ("XO", c.w, j)))))
    ops.append(Bar("Z4", 40))
    LB = MV + 48
    land = [96 + 4 * k for k in range(8)] + [144 + 4 * k for k in range(12)]
    k = 0
    for j in range(2):
        for dt in range(12):
            r = land[k % len(land)]; k += 1
            ops.append(Op(f"ds_read_b128 {vr(r,4)}, {vr(T0+3+j)} offset:{1024*dt}", at=41,
                          meta=dict(src=lambda c, j=j: (c.plan.vl(3 - c.w, j)[0], ("XO", 3 - c.w, j)))))
            o = OV + 48 * j + 4 * dt
            ops += [Op(pkfma(o, r, FF + 2 + j, o), at=42 + k * 0.01), Op(pkfma(o + 2, r + 2, FF + 2 + j, o + 2), at=42 + k * 0.01)]
        ops += [Op(f"s_add_u32 {sr([sA,sC][j])}, {sr(sB_)}, {j*6144}", at=41)] + outstore(OV + 48 * j, [sA, sC][j], 42.1 + 0.12 * j, 42.2 + 0.12 * j)
    return finish(ops, "FINAL", order="list")

def routine(p):
    so, sn = 1 - p, p
    L = [f"L_rt{p}:", "s_nop 7"]
    x, t, al = T0, T0 + 1, T0 + 2
    for qb in range(4):
        a, b = St(so, 0, qb), St(so, 1, qb)
        L += [f"v_cmp_lt_f32 vcc, {sr(sTHR)}, {vr(LS+qb)}", "s_nop 1", f"s_cbranch_vccz L_rs{p}_{qb}"]
        L += [f"v_max3_f32 {vr(x)}, {vr(a)}, {vr(a+1)}, {vr(a+2)}", f"v_max3_f32 {vr(t)}, {vr(a+3)}, {vr(b)}, {vr(b+1)}",
              f"v_max3_f32 {vr(x)}, {vr(x)}, {vr(b+2)}, {vr(b+3)}", f"v_max3_f32 {vr(x)}, {vr(x)}, {vr(t)}, 0"]
        L += xlane("v_max_f32", x, t, 0)
        L += [f"v_exp_f32 {vr(al)}, -{vr(x)}"]
        for base in (a, b, St(sn, 0, qb), St(sn, 1, qb), MN + 4 * qb):
            L += [f"v_sub_f32 {vr(base+r)}, {vr(base+r)}, {vr(x)}" for r in range(4)]
        L += [f"v_mul_f32 {vr(LR+qb)}, {vr(LR+qb)}, {vr(al)}"]
        for r in range(48):
            if qb < 2: L += [f"v_mul_f32 {vr(OV+48*qb+r)}, {vr(OV+48*qb+r)}, {vr(al)}"]
            else:
                q = 48 * (qb - 2) + r
                L += [f"v_accvgpr_read_b32 {vr(t)}, {ar(q)}", f"v_mul_f32 {vr(t)}, {vr(t)}, {vr(al)}", f"v_accvgpr_write_b32 {ar(q)}, {vr(t)}"]
        L += sorted(softmax(so, [(0, qb), (1, qb)], 0, 7, (qb,)), key=lambda o: o.at)
        L += [f"L_rs{p}_{qb}:"]
    rare = rawfin(L)
    H = [f"L_ev{p}:", f"s_cmp_eq_u32 {sr(sT)}, {sr(sNEV)}", f"s_cbranch_scc0 L_ret{p}",
         f"s_and_b32 {sr(sA)}, {sr(sREC)}, 0xff000", f"s_bfe_u32 {sr(sC)}, {sr(sREC)}, 0x40014",
         f"s_bitcmp1_b32 {sr(sREC)}, 10", f"s_cbranch_scc1 L_ld{p}",
         f"s_bitcmp1_b32 {sr(sREC)}, 11", f"s_cbranch_scc0 L_nw{p}", "s_waitcnt vmcnt(0)", f"L_nw{p}:",
         f"s_sub_u32 {sr(sA)}, {sr(sA)}, {sr(sRING)}",
         f"v_add_u32 {vr(T0)}, {sr(sA)}, {vr(KA)}", f"v_add_u32 {vr(T0+1)}, {sr(sA)}, {vr(KA+1)}"]
    land = [SB[so] + 4 * k for k in range(8)] + [PB[sn] + 4 * k for k in range(4)]
    RD = []
    for n in range(12):
        kt, s = n // 6, n % 6
        RD.append(Op(f"ds_read_b128 {vr(land[n],4)}, {vr(T0+(s&1))} offset:{kt*6144+(s>>1)*1024}", meta=dict(src=lambda c: (c.ev[3], ("MK", c.ev[4])))))
    H2 = [f"v_mbcnt_lo_u32_b32 {vr(T0+2)}, -1, 0", f"v_mbcnt_hi_u32_b32 {vr(T0+2)}, -1, {vr(T0+2)}",
          f"v_and_b32 {vr(T0+2)}, 15, {vr(T0+2)}", f"v_lshlrev_b32 {vr(T0+2)}, 2, {vr(T0+2)}",
          f"s_lshl_b32 {sr(sC)}, {sr(sC)}, 6", f"s_add_u32 {sr(sC)}, {sr(sC)}, {WB}", f"v_add_u32 {vr(T0+2)}, {sr(sC)}, {vr(T0+2)}",
          f"s_bfe_u32 {sr(sD)}, {sr(sREC)}, 0x20008"]
    for qb in range(1, 4): H2 += [f"s_cmp_eq_u32 {sr(sD)}, {qb}", f"s_cbranch_scc1 L_e{p}_{qb}"]
    head = raw(H) + RD + raw(H2)
    E = []
    for qb in range(4):
        B = [f"L_e{p}_{qb}:"]
        for n in range(12):
            kt, s = n // 6, n % 6
            d = vr(TMP + 4 * kt, 4)
            B += [f"s_waitcnt lgkmcnt({11-n})", f"v_mfma_f32_16x16x32_bf16 {d}, {vr(land[n],4)}, {Qreg(qb,s)}, {d if s else '0'}"]
        if qb < 3: B += [f"s_branch L_ex{p}"]
        E.append(raw(B))
    X = [f"L_ex{p}:", "s_nop 7"]
    for r in range(4): X += [f"v_sub_f32 {vr(TMP+r)}, {vr(TMP+r)}, {vr(TMP+4+r)}"]
    for r in range(1, 4): X += [f"v_cndmask_b32 {vr(TMP)}, {vr(TMP)}, {vr(TMP+r)}, {sr(sRM+2*(r-1),2)}"]
    X += [f"s_mov_b64 exec, {sr(sDL,2)}", Op(f"ds_write_b32 {vr(T0+2)}, {vr(TMP)}", meta=dict(wdst=True)), "s_mov_b64 exec, -1",
          f"L_nx{p}:", "s_waitcnt lgkmcnt(0)", f"s_add_u32 {sr(sEI)}, {sr(sEI)}, 1", "s_nop 0",
          f"v_readlane_b32 {sr(sREC)}, {vr(EV)}, {sr(sEI)}", "s_nop 1", f"s_and_b32 {sr(sNEV)}, {sr(sREC)}, 0xff", f"s_sub_u32 {sr(sNEV)}, {sr(sNEV)}, 1",
          f"s_branch L_ev{p}"]
    LD = [f"L_ld{p}:", f"s_mov_b32 {sr(sM0)}, m0", f"s_lshl_b32 {sr(sC)}, {sr(sC)}, 7", f"s_lshl_b32 {sr(sD)}, {sr(sU)}, 6",
          f"s_sub_u32 {sr(sC)}, {sr(sC)}, {sr(sD)}", f"v_add_u32 {vr(T0)}, {sr(sC)}, {vr(LTB)}",
          f"ds_read_b64 {vr(TMP,2)}, {vr(T0)}", f"ds_read_b64 {vr(TMP+2,2)}, {vr(T0)} offset:64", f"s_mov_b64 {sr(sG,2)}, {sr(bMK,2)}",
          "s_waitcnt lgkmcnt(0)"]
    LD += [f"v_add_u32 {vr(TMP+k)}, {vr(PAT)}, {vr(TMP+k)}" for k in range(4)]
    for nb in range(2):
        for a in range(3):
            LD += [f"s_add_u32 m0, {sr(sA)}, {nb*6144+896*a}", "s_nop 0"]
            for rg in range(2):
                LD.append(Op(f"buffer_load_dwordx4 {vr(TMP+2*nb+rg)}, {sr(sG,4)}, 0 offen offset:{rg*3072+a*128} {NTMOD} lds",
                             meta=dict(dma=lambda c: (c.ev[3], ("MK", c.ev[4])))))
    LD += [f"s_mov_b32 m0, {sr(sM0)}", f"s_branch L_nx{p}"]
    RET = [f"L_ret{p}:", "s_nop 1", f"s_setpc_b64 {sr(sRET,2)}"]
    return dict(rare=rare, head=head, E=E, X=rawfin(X), LD=raw(LD), RET=raw(RET))

def lanemask(fn):
    m = 0
    for l in range(64):
        if fn(l & 15, l >> 4): m |= 1 << l
    return m
def smov64(r, m): return [f"s_mov_b32 {sr(r)}, 0x{m & 0xffffffff:08x}", f"s_mov_b32 {sr(r+1)}, 0x{m >> 32:08x}"]
def desc_word(d):
    if d is None: return 16 * 128 | (15 * 3) << 12 | 255 << 20
    kind, src, dest = d
    if kind in ("K", "V"): return 16 * 128 | (dest * 3) << 12 | (src * 3) << 20
    return src * 128 | (dest * 3) << 12 | (1 << 29) | ((1 << 28) if kind == "MV" else 0)
def rec_word(e):
    t, typ, qb, slot, entry, wv = e
    return (t + 1) | qb << 8 | typ << 10 | wv << 11 | (slot * 3) << 12 | entry << 20

def interleave(A, B):
    out = []; n = len(A)
    for k, g in enumerate(A):
        out += g; out += B[len(B) * k // n: len(B) * (k + 1) // n]
    return out

def prologue(plans):
    KB = 84
    l, c_, g_ = T0, T0 + 1, T0 + 2
    t1, t2, t3, t4 = T0 + 3, T0 + 4, T0 + 5, T0 + 6
    H = ["s_cmp_ge_u32 s2, 256", "s_cbranch_scc1 L_end",
         f"s_load_dwordx16 s[{KB}:{KB+15}], s[0:1], 0", "s_load_dwordx2 s[100:101], s[0:1], 72"]
    if STAMP: H += ["s_memtime s[60:61]", "s_memrealtime s[62:63]"]
    if PREF:
        H += ["s_getpc_b64 s[4:5]", "L_pc:", "s_bfe_u32 s6, s2, 0x40003", "s_lshl_b32 s6, s6, 12",
              f"v_lshrrev_b32 {vr(t1)}, 6, v0", f"v_and_b32 {vr(t2)}, 15, v0", f"v_lshlrev_b32 {vr(t2)}, 6, {vr(t2)}",
              f"v_lshl_add_u32 {vr(t1)}, {vr(t1)}, 10, {vr(t2)}", f"v_add_u32 {vr(t1)}, s6, {vr(t1)}",
              f"v_min_u32 {vr(t1)}, L_codeend-L_pc-4, {vr(t1)}",
              f"v_mov_b32 {vr(t4)}, s5", f"v_add_co_u32 {vr(t3)}, vcc, s4, {vr(t1)}", "s_nop 1", f"v_addc_co_u32 {vr(t4)}, vcc, 0, {vr(t4)}, vcc",
              f"global_load_dword a255, {vr(t3,2)}, off"]
    H += [f"v_lshrrev_b32 {vr(t1)}, 6, v0", f"v_and_b32 {vr(l)}, 63, v0", f"v_readfirstlane_b32 {sr(sW)}, {vr(t1)}",
          "s_and_b32 s3, s2, 7", "s_lshl_b32 s3, s3, 2", f"s_bfe_u32 {sr(sI)}, s2, 0x20003", f"s_add_u32 s3, s3, {sr(sI)}",
          f"s_lshr_b32 {sr(sI)}, s2, 5", f"s_and_b32 {sr(sU)}, {sr(sW)}, 1",
          f"v_lshrrev_b32 {vr(t2)}, 3, {vr(l)}", f"v_and_b32 {vr(t3)}, 6, {vr(t2)}", f"v_and_b32 {vr(t4)}, 7, {vr(l)}",
          f"v_xor_b32 {vr(t3)}, {vr(t3)}, {vr(t4)}", f"v_lshlrev_b32 {vr(PAT)}, 4, {vr(t3)}",
          f"v_mul_u32_u24 {vr(XV)}, 384, {vr(t2)}", f"v_add3_u32 {vr(XV)}, {vr(XV)}, {vr(PAT)}, 0", f"v_add_u32 {vr(XV)}, 3072, {vr(XV)}",
          f"s_sub_u32 {sr(sT)}, 15, {sr(sI)}", f"s_cmp_lt_u32 {sr(sW)}, 2", f"s_cselect_b32 {sr(sT)}, {sr(sT)}, {sr(sI)}",
          f"s_lshl_b32 {sr(sT)}, {sr(sT)}, 1", f"s_add_u32 {sr(sT)}, {sr(sT)}, {sr(sU)}",
          f"s_mul_i32 {sr(sEXIT)}, s3, 786432",
          f"s_mul_i32 {sr(sUA)}, {sr(sW)}, 3072",
          "s_waitcnt lgkmcnt(0)"]
    if STAMP: H += [f"v_mov_b32 {vr(STV)}, 0", f"v_mov_b32 {vr(STV+1)}, 0", f"v_writelane_b32 {vr(STV)}, s60, 0", f"v_writelane_b32 {vr(STV+1)}, s62, 0", f"s_mov_b32 {sr(sST)}, 1"]
    for b, ka in ((bK, KB + 2), (bQ, KB), (bV, KB + 4), (bMK, KB + 6), (bMV, KB + 8)):
        H += [f"s_add_u32 {sr(b)}, {sr(ka)}, {sr(sEXIT)}", f"s_addc_u32 {sr(b+1)}, {sr(ka+1)}, 0",
              f"s_sub_u32 {sr(b)}, {sr(b)}, 3072", f"s_subb_u32 {sr(b+1)}, {sr(b+1)}, 0"]
    for s, b in ((sX, bK), (sY, bV), (sG, bQ)):
        H += [f"s_mov_b64 {sr(s,2)}, {sr(b,2)}", f"s_mov_b32 {sr(s+2)}, {786432+3072}", f"s_mov_b32 {sr(s+3)}, 0x20000"]
    H += [f"s_lshl_b32 {sr(sN)}, s3, 14", f"s_lshl_b32 {sr(sSOX)}, {sr(sT)}, 9", f"s_add_u32 {sr(sN)}, {sr(sN)}, {sr(sSOX)}",
          f"v_lshl_add_u32 {vr(t1)}, {vr(l)}, 3, {sr(sN)}", f"s_lshl_b32 {sr(sN)}, s3, 1", f"v_mov_b32 {vr(t2)}, {sr(sN)}",
          f"s_mul_i32 {sr(sSOY)}, {sr(sT)}, 24576"]
    def tile4(srd, blk, slot, kind):
        G = []
        for a in range(3):
            G.append([f"s_add_u32 m0, {sr(sUA)}, {slot*TILE+896*a}", f"s_add_u32 {sr(sSOX)}, {sr(sUA)}, {blk*TILE}",
                      Op(f"buffer_load_dwordx4 {vr(XV)}, {sr(srd,4)}, {sr(sSOX)} offen offset:{128*a} {NTMOD} lds", meta=dict(dma=lambda c: (slot, (kind, blk))))])
        return G
    def qblk(j):
        G = []
        for a in range(3):
            for rg in range(2):
                pre = [f"s_add_u32 m0, {sr(sMY)}, {j*6144+896*a}", f"s_add_u32 {sr(sSOX)}, {sr(sSOY)}, {j*6144}"] if rg == 0 else []
                G.append(pre + [Op(f"buffer_load_dwordx4 {vr(XV)}, {sr(sG,4)}, {sr(sSOX)} offen offset:{rg*3072+128*a} {NTQ} lds", tag=f"Q{j}",
                                   meta=dict(dma=lambda c: (4 + 2 * c.w + (j >> 1), ("Q", c.w, j)), cnt=6))])
        return G
    H += [f"s_mul_i32 {sr(sMY)}, {sr(sW)}, {2*TILE}", f"s_add_u32 {sr(sMY)}, {sr(sMY)}, {4*TILE}"]
    for g in tile4(sX, 0, 12, "K") + qblk(0): H += g
    H += [f"global_load_dwordx2 {vr(YV,2)}, {vr(t1)}, {sr(KB+10,2)}", f"global_load_ushort {vr(CHK)}, {vr(t2)}, {sr(KB+12,2)}"]
    A = [f"s_add_u32 {sr(sOUT)}, {sr(KB+14)}, {sr(sEXIT)}", f"s_addc_u32 {sr(sOUT+1)}, {sr(KB+15)}, 0", f"s_mov_b32 {sr(sOUT+2)}, 786432", f"s_mov_b32 {sr(sOUT+3)}, 0x20000",
         f"s_mul_i32 {sr(sN)}, s2, 49152", f"s_add_u32 {sr(sN)}, {sr(sN)}, 0x1000000", f"s_add_u32 {sr(sWS)}, s100, {sr(sN)}", f"s_addc_u32 {sr(sWS+1)}, s101, 0",
         f"s_mov_b32 {sr(sWS+2)}, 49152", f"s_mov_b32 {sr(sWS+3)}, 0x20000"]
    Aend = len(A)
    A += [f"v_and_b32 {vr(c_)}, 15, {vr(l)}", f"v_lshrrev_b32 {vr(g_)}, 4, {vr(l)}",
          f"v_lshrrev_b32 {vr(t1)}, 3, {vr(c_)}", f"v_mul_u32_u24 {vr(t1)}, 3072, {vr(t1)}", f"v_and_b32 {vr(t2)}, 7, {vr(c_)}",
          f"v_lshl_add_u32 {vr(t1)}, {vr(t2)}, 7, {vr(t1)}", f"v_and_b32 {vr(t3)}, 6, {vr(c_)}"]
    for j in range(2): A += [f"v_or_b32 {vr(t2)}, {4*j}, {vr(g_)}", f"v_xor_b32 {vr(t2)}, {vr(t2)}, {vr(t3)}", f"v_lshl_add_u32 {vr(KA+j)}, {vr(t2)}, 4, {vr(t1)}"]
    A += [f"v_bfe_u32 {vr(t2)}, {vr(l)}, 2, 3", f"v_lshrrev_b32 {vr(t1)}, 5, {vr(l)}", f"v_mul_u32_u24 {vr(t1)}, 3072, {vr(t1)}",
          f"v_lshl_add_u32 {vr(t1)}, {vr(t2)}, 7, {vr(t1)}", f"v_and_b32 {vr(t3)}, 1, {vr(l)}", f"v_lshl_add_u32 {vr(t1)}, {vr(t3)}, 3, {vr(t1)}",
          f"v_add_u32 {vr(t1)}, {2*TILE}, {vr(t1)}", f"v_and_b32 {vr(t2)}, 6, {vr(t2)}", f"v_bfe_u32 {vr(t3)}, {vr(l)}, 1, 1"]
    for x in range(4): A += [f"v_or_b32 {vr(t4)}, {2*x}, {vr(t3)}", f"v_xor_b32 {vr(t4)}, {vr(t4)}, {vr(t2)}", f"v_lshl_add_u32 {vr(VA+x)}, {vr(t4)}, 4, {vr(t1)}"]
    A += [f"v_mul_u32_u24 {vr(OFF)}, 384, {vr(c_)}", f"v_and_b32 {vr(t1)}, 1, {vr(g_)}", f"v_lshl_add_u32 {vr(OFF)}, {vr(t1)}, 5, {vr(OFF)}",
          f"v_lshrrev_b32 {vr(t1)}, 1, {vr(g_)}", f"v_lshl_add_u32 {vr(OFF)}, {vr(t1)}, 4, {vr(OFF)}",
          f"v_lshrrev_b32 {vr(t1)}, 3, {vr(l)}", f"s_lshl_b32 {sr(sN)}, {sr(sU)}, 6", f"s_add_u32 {sr(sN)}, {sr(sN)}, {TB}", f"v_lshl_add_u32 {vr(LTB)}, {vr(t1)}, 3, {sr(sN)}"]
    for r in range(4): A += smov64(sDM + 2 * r, lanemask(lambda c, g: 4 * g + r > c))
    for r in range(1, 4): A += smov64(sRM + 2 * (r - 1), lanemask(lambda c, g: (c & 3) == r))
    A += smov64(sDL, lanemask(lambda c, g: g == c >> 2))
    for pp in range(2): A += smov64(sPM + 2 * pp, lanemask(lambda c, g: g == c >> 2 and ((c & 3) >> 1) == pp))
    A += [f"s_mov_b32 {sr(sTHR)}, {f32(THR)}"]
    A += [f"v_accvgpr_write_b32 {ar(r)}, 0" for r in range(96)]
    B = [f"s_lshl_b32 {sr(sN)}, {sr(sI)}, 2", f"s_add_u32 {sr(sNEV)}, {sr(sN)}, 2",
         f"s_lshl_b32 {sr(sN)}, {sr(sU)}, 1", f"s_add_u32 {sr(sN)}, {sr(sN)}, {sr(sNEV)}",
         f"s_mov_b32 {sr(sWX)}, {(-3<<20) & 0xffffffff}", f"s_mov_b32 {sr(sTX)}, {desc_word(('K',63,4))}", f"s_mov_b32 {sr(sTY)}, {desc_word(('V',65,6))}",
         f"s_cmp_lt_u32 {sr(sW)}, 2",
         f"s_cselect_b32 {sr(sWX)}, {3<<20}, {sr(sWX)}",
         f"s_cselect_b32 {sr(sTX)}, {desc_word(('K',4,0))}, {sr(sTX)}",
         f"s_cselect_b32 {sr(sTY)}, {desc_word(('V',2,2))}, {sr(sTY)}",
         f"s_cselect_b32 {sr(sWY)}, 0, {sr(sNEV)}"]
    B0 = B
    B = [
         f"v_mul_lo_u32 {vr(t1)}, {vr(l)}, {sr(sWX)}", f"v_and_b32 {vr(t2)}, 1, {vr(l)}", f"v_mul_u32_u24 {vr(t2)}, {3<<12}, {vr(t2)}",
         f"v_add_u32 {vr(t1)}, {vr(t1)}, {vr(t2)}", f"v_add_u32 {vr(DX)}, {sr(sTX)}, {vr(t1)}", f"v_add_u32 {vr(DY)}, {sr(sTY)}, {vr(t1)}",
         f"v_mov_b32 {vr(t3)}, {desc_word(None)}",
         f"v_cmp_gt_u32 vcc, {sr(sWY)}, {vr(l)}", f"v_cndmask_b32 {vr(DY)}, {vr(DY)}, {vr(t3)}, vcc",
         f"v_cmp_lt_u32 vcc, 31, {vr(l)}", f"v_cndmask_b32 {vr(DY)}, {vr(DY)}, {vr(t3)}, vcc",
         f"v_add_u32 {vr(t2)}, 2, {vr(l)}", f"v_cmp_gt_u32 vcc, {sr(sWY)}, {vr(t2)}", f"v_cndmask_b32 {vr(DX)}, {vr(DX)}, {vr(t3)}, vcc",
         f"v_cmp_lt_u32 vcc, 29, {vr(l)}", f"v_cndmask_b32 {vr(DX)}, {vr(DX)}, {vr(t3)}, vcc",
         f"v_mov_b32 {vr(EV)}, 0xff"]
    B += [f"v_mov_b32 {vr(OV+r)}, 0" for r in range(96)]
    B += [f"v_mov_b32 {vr(LR+r)}, 0" for r in range(4)]
    Tb = [f"v_mul_u32_u24 {vr(YV)}, 384, {vr(YV)}", f"v_mul_u32_u24 {vr(YV+1)}, 384, {vr(YV+1)}",
          f"v_bfe_u32 {vr(t1)}, {vr(l)}, 3, 1", f"v_xor_b32 {vr(t2)}, 1, {vr(t1)}", f"v_mul_u32_u24 {vr(t2)}, 3072, {vr(t2)}",
          f"v_add_u32 {vr(YV)}, {vr(YV)}, {vr(t2)}", f"v_add_u32 {vr(YV+1)}, {vr(YV+1)}, {vr(t2)}",
          f"v_and_b32 {vr(t2)}, 7, {vr(l)}", f"v_lshlrev_b32 {vr(t2)}, 3, {vr(t2)}", f"v_lshl_add_u32 {vr(t2)}, {vr(t1)}, 2, {vr(t2)}",
          f"v_lshl_add_u32 {vr(t2)}, {vr(g_)}, 7, {vr(t2)}", f"s_lshl_b32 {sr(sWX)}, {sr(sW)}, 9", f"s_add_u32 {sr(sWX)}, {sr(sWX)}, {TB}",
          f"v_add_u32 {vr(t2)}, {sr(sWX)}, {vr(t2)}", f"ds_write_b32 {vr(t2)}, {vr(YV)}", f"ds_write_b32 {vr(t2)}, {vr(YV+1)} offset:64",
          f"v_bfe_u32 {vr(t1)}, {vr(l)}, 4, 1", f"v_bfe_u32 {vr(t3)}, {vr(l)}, 1, 3", f"v_lshl_add_u32 {vr(t1)}, {vr(t1)}, 4, {vr(t3)}",
          f"v_mul_u32_u24 {vr(t1)}, 384, {vr(t1)}", f"v_add_u32 {vr(t1)}, 3072, {vr(t1)}",
          f"v_and_b32 {vr(t3)}, 31, {vr(l)}", f"v_lshlrev_b32 {vr(t3)}, 2, {vr(t3)}", f"v_add_u32 {vr(t3)}, {TB+2048}, {vr(t3)}", f"ds_write_b32 {vr(t3)}, {vr(t1)}",
          f"v_lshlrev_b32 {vr(CHK)}, 16, {vr(CHK)}", f"v_mul_f32 {vr(CHK)}, {f32(-1.4426950408889634)}, {vr(CHK)}", f"v_exp_f32 {vr(CHK)}, {vr(CHK)}",
          f"v_add_f32 {vr(CHK)}, 1.0, {vr(CHK)}", f"v_rcp_f32 {vr(CHK)}, {vr(CHK)}", f"v_cvt_pk_bf16_f32 {vr(CHK)}, {vr(CHK)}, {vr(CHK)}",
          f"v_and_b32 {vr(CHK)}, 0xffff0000, {vr(CHK)}", f"v_sub_f32 {vr(TA)}, 1.0, {vr(CHK)}", f"v_cvt_pk_bf16_f32 {vr(TA)}, {vr(TA)}, {vr(TA)}",
          f"v_and_b32 {vr(TA)}, 0xffff0000, {vr(TA)}", f"v_readfirstlane_b32 {sr(sG_)}, {vr(CHK)}", f"v_readfirstlane_b32 {sr(sOMG)}, {vr(TA)}"]
    if NOGATHER: Tb = [f"v_and_b32 {vr(YV)}, 7, {vr(YV)}", f"v_and_b32 {vr(YV+1)}, 7, {vr(YV+1)}"] + Tb
    if NOMEM: Tb += [f"s_mov_b32 {sr(sG_)}, 0"]
    seq = H + A[:Aend] + interleave(qblk(1), A[Aend:]) + B0 + interleave(qblk(2) + tile4(sX, 1, 1, "K"), B + Tb)
    cval = f32(192 ** -0.5 * 1.4426950408889634)
    seq += [f"s_mov_b32 {sr(sCP)}, {cval}", f"s_mov_b32 {sr(sCP+1)}, {cval}", f"s_mov_b32 {sr(sRING)}, 0", f"s_mov_b32 {sr(sROW)}, {sr(sSOY)}",
            f"v_add_u32 {vr(t1)}, {sr(sMY)}, {vr(KA)}", f"v_add_u32 {vr(t2)}, {sr(sMY)}, {vr(KA+1)}", f"v_lshlrev_b32 {vr(t3)}, 4, {vr(l)}",
            f"s_mul_i32 {sr(sB_)}, {sr(sW)}, 24576"]
    def presc(j):
        Z = SB[0] + 24 * (j & 1)
        G = [WaitVM(f"Q{j}", 0)]
        for s in range(6):
            G.append(Op(f"ds_read_b128 {vr(Z+4*s,4)}, {vr(t1+(s&1))} offset:{j*6144+(s>>1)*1024}",
                        meta=dict(src=lambda c: (4 + 2 * c.w + (j >> 1), ("Q", c.w, j)), needvm=f"Q{j}", cnt=6)))
        for r in range(0, 24, 2):
            for q in range(2):
                tt = TMP + 2 * q + 4 * ((r >> 1) & 1)
                G += [f"v_lshlrev_b32 {vr(tt)}, 16, {vr(Z+r+q)}", f"v_and_b32 {vr(tt+1)}, 0xffff0000, {vr(Z+r+q)}"]
            for q in range(2):
                tt = TMP + 2 * q + 4 * ((r >> 1) & 1)
                G += [f"v_pk_mul_f32 {vr(tt,2)}, {vr(tt,2)}, {sr(sCP,2)}"]
            for q in range(2):
                tt = TMP + 2 * q + 4 * ((r >> 1) & 1)
                G += [f"v_cvt_pk_bf16_f32 {vr(Z+r+q)}, {vr(tt)}, {vr(tt+1)}"]
            for q in range(2): G += [f"v_accvgpr_write_b32 {ar(QA+24*j+r+q)}, {vr(Z+r+q)}"]
            if r & 2:
                s = r >> 2
                if s % 3 == 0: G += [f"s_add_u32 {sr(sA)}, {sr(sB_)}, {(6*j+s)*1024}"]
                G += [Op(f"buffer_store_dwordx4 {vr(Z+4*s,4)}, {vr(t3)}, {sr(sWS,4)}, {sr(sA)} offen offset:{(s%3)*1024}", tag="QS")]
        return G
    p0, p1 = presc(0), presc(1)
    seq += p0[:7] + interleave(qblk(3), p0[7:])
    seq += p1[:7] + interleave(tile4(sY, 0, 2, "V") + tile4(sX, 2, 0, "K") + tile4(sY, 1, 3, "V"), p1[7:])
    seq += presc(2) + presc(3)
    seq += [f"s_mul_i32 {sr(sUA)}, {sr(sU)}, 6144", f"s_add_u32 {sr(sUA+1)}, {sr(sUA)}, 896", f"s_add_u32 {sr(sUA+2)}, {sr(sUA)}, 1792",
            f"s_sub_u32 {sr(sB_)}, 3, {sr(sW)}", f"s_mul_i32 {sr(sB_)}, {sr(sB_)}, 24576"]
    main = rawfin(seq)
    blocks = {}
    disp = [f"s_lshl_b32 {sr(sA)}, {sr(sI)}, 2", f"s_add_u32 {sr(sA)}, {sr(sA)}, {sr(sW)}"]
    for i in range(8):
        for w in range(4):
            pl = plans[i]; Bk = [f"L_cfg{i}_{w}:"]
            for ch, dv, sh in (("X", DX, -1), ("Y", DY, 0)):
                for t, d in sorted(pl.chan[w >> 1][ch].items()):
                    if d[0] in ("MK", "MV") or (ch == "X" and t == 0):
                        Bk += [f"s_mov_b32 {sr(sC)}, {desc_word(d)}", f"v_writelane_b32 {vr(dv)}, {sr(sC)}, {(t+sh) % 64}"]
            for k, e in enumerate(pl.events[w]):
                Bk += [f"s_mov_b32 {sr(sC)}, {rec_word(e)}", f"v_writelane_b32 {vr(EV)}, {sr(sC)}, {k}"]
            ex, xk = pl.exit1(w)
            Bk += [f"s_mov_b32 {sr(sEXIT)}, {ex}", f"s_mov_b32 {sr(sXK)}, {xk}",
                   f"s_mov_b32 {sr(sV0)}, {pl.vl(w,0)[0]*TILE}", f"s_mov_b32 {sr(sV1)}, {pl.vl(w,1)[0]*TILE}",
                   f"s_mov_b32 {sr(sPV0)}, {pl.vl(3-w,0)[0]*TILE}", f"s_mov_b32 {sr(sPV1)}, {pl.vl(3-w,1)[0]*TILE}",
                   f"s_mov_b32 {sr(sWE)}, {WB + pl.vl(w,0)[1][1]*64}", "s_branch L_cfgdone"]
            blocks[(i, w)] = raw(Bk)
            if (i, w) != (7, 3): disp += [f"s_cmp_eq_u32 {sr(sA)}, {4*i+w}", f"s_cbranch_scc1 L_cfg{i}_{w}"]
    disp += ["s_branch L_cfg7_3"]
    mid = ["L_cfgdone:", f"s_mov_b32 {sr(sEI)}, 0", f"s_mov_b32 {sr(sT)}, -1", "s_nop 0", f"v_readlane_b32 {sr(sREC)}, {vr(EV)}, 0", "s_nop 1",
           f"s_and_b32 {sr(sNEV)}, {sr(sREC)}, 0xff", f"s_sub_u32 {sr(sNEV)}, {sr(sNEV)}, 1", Bar("ZP", 0),
           Op(f"s_call_b64 {sr(sRET,2)}, L_ev1", meta=dict(evcall=1)), f"s_mov_b32 {sr(sT)}, 63"]
    p = 1
    ops = [Op(f"v_add_u32 {vr(T0+k)}, {12*TILE}, {vr(KA+k)}", at=0) for k in range(2)]
    for n in range(12):
        kt, s = n // 6, n % 6
        ops.append(Op(f"ds_read_b128 {ar(FR(24+n),4)}, {vr(T0+(s&1))} offset:{kt*6144+(s>>1)*1024}", at=0.1, meta=dict(src=lambda c: (12, ("K", 0)), gives=lambda c, kt=kt, s=s: ("K", 0, kt, s))))
    ops += decode("X", 1, 2)
    tl = [(kt, qb) for qb in range(4) for kt in range(2)]
    ops += qk(p, tl, [1] * 48, czero=range(4))
    q1 = finish(ops, "PRO_QK", order="list")
    mk = [f"s_cmp_lg_u32 {sr(sN)}, 2", "s_cbranch_scc1 L_nomask", f"s_cmp_lt_u32 {sr(sW)}, 2", "s_cbranch_scc1 L_nomask"]
    mk2 = masks(p, [(0, 0), (1, 1)], [(1, 0)], [1, 2, 3]) + [Op("L_nomask:")]
    ops = kreads(p, 0, 1)
    for qb in range(4): ops += initmax(p, qb, 0.5, T0 + 2 * (qb & 1), T0 + 1 + 2 * (qb & 1))
    ops += softmax(p, KT0, 1, 2, range(4)) + [Wait("K0", 2), Op(f"s_mov_b32 {sr(sT)}, 0", at=2)]
    q2 = [Op("s_nop 7")] + finish(ops, "PRO_SM", order="list")
    jump = raw([f"s_cmp_eq_u32 {sr(sXK)}, 2", "s_cbranch_scc1 L_diag2", f"s_cmp_lt_u32 {sr(sW)}, 2", "s_cbranch_scc0 L_loop0", Op("s_waitcnt vmcnt(0)", meta=dict(lonly=1))])
    return dict(main=main, disp=raw(disp), blocks=blocks, mid=raw(mid), q1=q1, mk=raw(mk), mk2=mk2, q2=q2, jump=jump)

def stamp_ops():
    if not STAMP: return []
    return raw(["s_memtime s[2:3]", "s_memrealtime s[0:1]", f"s_mov_b32 {sr(sM0)}, m0", "s_waitcnt lgkmcnt(0)", f"s_mov_b32 m0, {sr(sST)}",
                f"s_add_u32 {sr(sST)}, {sr(sST)}, 1", f"v_writelane_b32 {vr(STV)}, s2, m0", f"v_writelane_b32 {vr(STV+1)}, s0, m0", f"s_mov_b32 m0, {sr(sM0)}"])

def build():
    plans = [make_plan(i) for i in range(8)]
    Pc = {}
    Pc["pro"] = prologue(plans)
    Pc["loop0"] = normal(0, name="LOOP0", tail=[Op(f"s_cmp_eq_u32 {sr(sT)}, {sr(sEXIT)}", at=94), Op("s_cbranch_scc1 L_exit", at=95.2)])
    Pc["loop1"] = normal(1, name="LOOP1", tail=[Op("s_branch L_loop0", at=95.2)])
    Pc["exit"] = raw(["L_exit:", f"s_cmp_eq_u32 {sr(sT)}, 33", "s_cbranch_scc1 L_last"])
    Pc["diag1"] = normal(1, tiles=[t for t in ALLT if t != (1, 0)], diag=[(0, 0), (1, 1)], full=[(1, 0)], name="DIAG1",
                         tail=[Op(f"s_cmp_lt_u32 {sr(sW)}, 2", at=94), Op("s_cbranch_scc1 L_diag2f", at=95.2)])
    Pc["diag2"] = diag2(); Pc["sw1"] = sw1(); Pc["sw2"] = sw2()
    Pc["sw2x"] = raw([f"s_cmp_eq_u32 {sr(sT)}, 33", "s_cbranch_scc1 L_lastx"])
    Pc["sw3"] = sw3(); Pc["sw4"] = sw4()
    Pc["sw4x"] = raw([f"s_mov_b32 {sr(sEXIT)}, 33", f"s_cmp_eq_u32 {sr(sT)}, 33", "s_cbranch_scc1 L_last", "s_branch L_loop1"])
    Pc["diag2f"] = normal(0, tiles=[(0, 2), (0, 3), (1, 3)], diag=[(0, 2), (1, 3)], full=[(0, 0), (0, 1), (1, 0), (1, 1), (1, 2)], name="DIAG2F")
    Pc["last"] = last(); Pc["lastx"] = lastx()
    Pc["fpre"] = raw(["L_final:", f"s_sub_u32 {sr(sB_)}, 15, {sr(sI)}", f"s_mul_i32 {sr(sB_)}, {sr(sB_)}, 49152",
                      f"s_mov_b32 {sr(sC)}, -24576", f"s_cmp_lt_u32 {sr(sW)}, 2", f"s_cselect_b32 {sr(sA)}, 0, {3*24576+12288}", f"s_cselect_b32 {sr(sC)}, 24576, {sr(sC)}",
                      f"s_mul_i32 {sr(sC)}, {sr(sC)}, {sr(sW)}", f"s_add_u32 {sr(sB_)}, {sr(sB_)}, {sr(sA)}", f"s_add_u32 {sr(sB_)}, {sr(sB_)}, {sr(sC)}", "s_nop 7"])
    Pc["final"] = final()
    Pc["rt"] = [routine(0), routine(1)]
    return plans, Pc

def layout(Pc):
    pro = Pc["pro"]; S = stamp_ops
    seq = pro["main"] + pro["disp"] + pro["mid"] + pro["q1"] + pro["mk"] + pro["mk2"] + pro["q2"] + pro["jump"]
    seq += [Op(".p2align 6"), Op("L_loop0:")] + S() + Pc["loop0"] + [Op("L_loop1:")] + S() + Pc["loop1"]
    seq += Pc["exit"] + S() + Pc["diag1"] + [Op("L_diag2:")] + S() + Pc["diag2"] + S() + Pc["sw1"] + S() + Pc["sw2"] + Pc["sw2x"] + S() + Pc["sw3"] + S() + Pc["sw4"] + Pc["sw4x"]
    seq += [Op("L_lastx:")] + S() + Pc["lastx"] + [Op("s_branch L_final")]
    seq += [Op("L_diag2f:")] + S() + Pc["diag2f"] + [Op("L_last:")] + S() + Pc["last"] + Pc["fpre"] + S() + Pc["final"]
    if STAMP:
        seq += S() + raw(["s_waitcnt vmcnt(0)"]) + S()
        seq += raw([f"s_sub_u32 {sr(sA)}, {sr(sWS)}, s100", f"s_sub_u32 {sr(sA)}, {sr(sA)}, 0x1000000",
                    f"s_mul_hi_u32 {sr(sA)}, {sr(sA)}, {(1<<32)//49152+1}", f"s_lshl_b32 {sr(sA)}, {sr(sA)}, 2", f"s_add_u32 {sr(sA)}, {sr(sA)}, {sr(sW)}",
                    f"s_lshl_b32 {sr(sA)}, {sr(sA)}, 9", "v_mbcnt_lo_u32_b32 v0, -1, 0", "v_mbcnt_hi_u32_b32 v0, -1, v0", "v_lshlrev_b32 v0, 3, v0",
                    f"v_add_u32 v0, {sr(sA)}, v0", f"global_store_dwordx2 v0, {vr(STV,2)}, s[100:101]"])
    seq += raw(["L_end:", "s_endpgm"])
    for k, p in enumerate(sites):
        seq += raw([f"L_stub{k}:", f"s_call_b64 {sr(sRET,2)}, L_rt{p}", f"s_branch L_back{k}"])
    for p in range(2):
        r = Pc["rt"][p]
        seq += r["rare"] + r["head"] + r["E"][0] + r["E"][1] + r["E"][2] + r["E"][3] + r["X"] + r["LD"] + r["RET"]
    for k in sorted(pro["blocks"]): seq += pro["blocks"][k]
    seq += [Op("L_codeend:")]
    return seq

HEADER = open("standalone__memory_aug_memorizing_tr__prompt.s.ref").read().split("; @launch")[0]
def text(seq):
    L = [HEADER.rstrip("\n"), "; @launch grid=(256,1,1) block=(256,1,1) lds=163840",
         '.amdgcn_target "amdgcn-amd-amdhsa--gfx950"', ".text", f".globl {KN}", ".p2align 8", f".type {KN},@function", f"{KN}:"]
    L += emit(seq)
    L += ['.section .rodata,"a"', ".p2align 6", f".amdhsa_kernel {KN}", "  .amdhsa_next_free_vgpr 512", "  .amdhsa_next_free_sgpr 102",
          "  .amdhsa_accum_offset 256", "  .amdhsa_group_segment_fixed_size 0", "  .amdhsa_kernarg_size 80", "  .amdhsa_user_sgpr_count 2",
          "  .amdhsa_user_sgpr_kernarg_segment_ptr 1", "  .amdhsa_system_sgpr_workgroup_id_x 1", ".end_amdhsa_kernel"]
    return "\n".join(L) + "\n"

PREF = True; NTQ = ''; NOGATHER = False; VERB = True; STAMP = False; NOMEM = False; THR = 2.0 ** 24; STV = 224
if __name__ == "__main__":
    import argparse
    ap = argparse.ArgumentParser()
    ap.add_argument("-o", default="k.s"); ap.add_argument("--stamp", action="store_true"); ap.add_argument("--nomem", action="store_true")
    ap.add_argument("--thr", type=float, default=2.0 ** 24); ap.add_argument("-q", action="store_true")
    ap.add_argument("--nt", default=""); ap.add_argument("--st", default=""); ap.add_argument("--nogather", action="store_true")
    ap.add_argument("--nopref", action="store_true"); ap.add_argument("--ntq", default=None)
    a = ap.parse_args()
    PREF = not a.nopref; NTQ = a.ntq if a.ntq is not None else a.nt
    NTMOD = a.nt; STMOD = a.st; NOGATHER = a.nogather
    STAMP = a.stamp; NOMEM = a.nomem; THR = a.thr; VERB = not a.q
    plans, Pc = build()
    import trace
    trace.analyse(plans, Pc, sites, VERB)
    open(a.o, "w").write(text(layout(Pc)))
```

```python
import re

REG_RE = re.compile(r'\b([vas])\[(\d+):(\d+)\]|\b([vas])(\d+)\b|\b(vcc|exec|m0|scc)\b')

def regs_of(tok):
    out = set()
    for m in REG_RE.finditer(tok):
        if m.group(1):
            for r in range(int(m.group(2)), int(m.group(3)) + 1): out.add(m.group(1) + str(r))
        elif m.group(4): out.add(m.group(4) + m.group(5))
        else: out.add(m.group(6))
    return out

def split_ops(s):
    parts, depth, cur = [], 0, ""
    for ch in s:
        if ch == '[': depth += 1
        if ch == ']': depth -= 1
        if ch == ',' and depth == 0: parts.append(cur.strip()); cur = ""
        else: cur += ch
    if cur.strip(): parts.append(cur.strip())
    return parts

TRANS = ("v_exp_f32", "v_log_f32", "v_rcp_f32", "v_rsq_f32", "v_sqrt_f32")
SCC_W = ("s_add_u32", "s_sub_u32", "s_addc_u32", "s_subb_u32", "s_and_b32", "s_and_b64", "s_or_b32", "s_or_b64", "s_xor_b32",
         "s_lshl_b32", "s_lshr_b32", "s_bfe_u32", "s_add_i32", "s_sub_i32", "s_andn2_b64", "s_min_u32", "s_max_u32", "s_lshl_b64",
         "s_and_saveexec_b64", "s_andn2_b32", "s_xor_b64", "s_lshr_b64", "s_addk_i32")

class Op:
    def __init__(self, text, at=0.0, kind=None, tag=None, meta=None, after=None, wait=None, prio=0):
        self.text = text; self.at = at; self.tag = tag; self.meta = meta or {}
        self.after = list(after or []); self.wait = wait; self.prio = prio
        self.parse(kind)
    def parse(self, kind):
        t = self.text.strip()
        self.rd, self.wr = set(), set()
        if t.endswith(":"): self.kind = "L"; self.mn = ""; return
        if t.startswith(";") or t.startswith("."): self.kind = "C"; self.mn = ""; return
        mn, _, rest = t.partition(" ")
        self.mn = mn
        ops = split_ops(rest)
        R = [regs_of(o) for o in ops]
        k = None
        if mn.startswith("v_mfma"):
            k = "M"; self.wr = R[0]; self.rd = R[1] | R[2] | R[3]
            self.A, self.B, self.C, self.D = R[1], R[2], R[3], R[0]
        elif mn.startswith("v_permlane") and "swap" in mn:
            k = "V"; self.wr = R[0] | R[1]; self.rd = R[0] | R[1]
        elif mn.startswith("v_"):
            k = "X" if mn in TRANS else ("P" if mn.startswith("v_pk_") or mn.startswith("v_dot") else "V")
            self.wr = set(R[0]); self.rd = set().union(*R[1:]) if len(R) > 1 else set()
            if mn in ("v_writelane_b32", "v_fmac_f32"): self.rd |= R[0]
            if mn.startswith("v_cmpx"): self.wr.add("exec")
            if "_co_" in mn: self.wr.add("vcc")
        elif mn.startswith("ds_read"):
            k = "R"; self.wr = R[0]; self.rd = R[1]
        elif mn.startswith("ds_write"):
            k = "H"; self.rd = set().union(*R)
        elif mn.startswith("buffer_load") or mn.startswith("global_load"):
            if re.search(r'\blds\b', rest):
                k = "D"; self.rd = set().union(*R) | {"m0"}
            else:
                k = "G"; self.wr = R[0]; self.rd = set().union(*R[1:])
        elif mn.startswith("buffer_store") or mn.startswith("global_store"):
            k = "T"; self.rd = set().union(*R)
            self.data = R[0] if mn.startswith("buffer") else R[1]
        elif mn == "s_waitcnt": k = "W"
        elif mn == "s_barrier": k = "Z"
        elif mn == "s_nop": k = "N"
        elif mn.startswith("s_cbranch") or mn in ("s_branch", "s_setpc_b64", "s_call_b64", "s_endpgm"):
            k = "B"
            if "scc" in mn: self.rd.add("scc")
            if "vcc" in mn: self.rd.add("vcc")
            if mn == "s_setpc_b64": self.rd |= R[0]
            if mn == "s_call_b64": self.wr |= R[0]
        elif mn.startswith("s_cmp") or mn.startswith("s_bitcmp"):
            k = "S"; self.rd = set().union(*R); self.wr = {"scc"}
        elif mn.startswith("s_load") or mn in ("s_memtime", "s_memrealtime"):
            k = "K"; self.wr = R[0]; self.rd = set().union(*R[1:]) if len(R) > 1 else set()
        elif mn.startswith("s_"):
            k = "S"
            if R:
                self.wr = set(R[0]); self.rd = set().union(*R[1:]) if len(R) > 1 else set()
            if mn in SCC_W: self.wr.add("scc")
            if mn.startswith("s_cselect") or mn in ("s_addc_u32", "s_subb_u32"): self.rd.add("scc")
            if mn == "s_addk_i32": self.rd |= R[0]
            if "saveexec" in mn: self.wr.add("exec"); self.rd.add("exec")
        else:
            raise ValueError("unknown instr " + t)
        if k in "MVXPRHDGT": self.rd.add("exec")
        self.kind = kind or k
    @property
    def cost(self):
        if self.kind == "H" and "b128" not in self.mn: return 3
        if self.mn.startswith("v_permlane"): return 2
        return COST[self.kind]
    toff = 0
    def __repr__(self): return f"<{self.kind} {self.text} @{self.at}>"

def Wait(tags, at, **kw):
    o = Op("s_waitcnt lgkmcnt(0)", at=at, **kw); o.wait = set(tags if isinstance(tags, (list, set, tuple)) else [tags]); return o

def Bar(name, at, **kw):
    o = Op("s_barrier", at=at, **kw); o.name = name; o.vm = None; o.lg = True; o.lgn = 0; return o

COST = dict(M=1, V=1, X=2, P=1, R=2, H=7, J=3, D=3, G=3, T=4, S=1, W=1, Z=3, B=2, N=1, K=1)
MEMK = "RHDGT"

def lat(p, c, kinddep):
    if kinddep == "order": return p.cost
    if kinddep == "war": return p.cost + (3 if (p.kind == "M" and c.kind in "VXP" and (c.wr & p.C)) else 0)
    if p.kind == "M":
        if c.kind == "M" and c.C == p.D and not ((c.A | c.B) & p.D): return 4
        return 10
    if p.kind == "X": return 5
    if p.kind in "VP":
        if c.kind == "M": return 3
        if c.mn.startswith("v_permlane") or c.mn.startswith("v_read"): return 3
        if any(r[0] == 's' or r == 'vcc' for r in p.wr & c.rd): return 3 if c.kind not in "DGT" else 6
        return 2
    if p.kind == "S": return 2 if c.kind in "DGT" else 1
    if p.kind == "R": return 30
    if p.kind == "G": return 150
    return p.cost

SLACK = 40; VLAG = 3.0
def WaitVM(tag, at, **kw):
    o = Op("s_waitcnt vmcnt(0)", at=at, **kw); o.vmtag = tag; o.vm = None; return o

def schedule(ops, verbose=False, name="", order="at"):
    if order == "at": ops = sorted(ops, key=lambda o: o.at)
    else: ops = list(ops)
    n = len(ops)
    idx = {id(o): i for i, o in enumerate(ops)}
    deps = [dict() for _ in range(n)]
    lastw, readers = {}, {}
    lastfence = None; mem_since = []
    lastlds = None; lastvm = None; lastB = None; since_B = []; ldsops = []; lastH = None
    def add(i, j, l):
        if j is not None and j != i: deps[i][j] = max(deps[i].get(j, 0), l)
    for i, o in enumerate(ops):
        for r in o.rd:
            if r in lastw: add(i, lastw[r], lat(ops[lastw[r]], o, "raw"))
        for r in o.wr:
            if r in lastw: add(i, lastw[r], lat(ops[lastw[r]], o, "raw"))
            for j in readers.get(r, []): add(i, j, lat(ops[j], o, "war"))
        for a in o.after:
            add(i, idx[id(a)], a.cost)
        if o.kind in MEMK:
            if not o.meta.get("nofence"):
                add(i, lastfence, 3); mem_since.append(i)
            if order == "at":
                if o.kind in "RH": add(i, lastlds, 1); lastlds = i
                else: add(i, lastvm, 1); lastvm = i
            else:
                if o.kind == "H":
                    for j in ldsops: add(i, j, 1)
                    lastH = i
                if o.kind == "R": add(i, lastH, 1)
                if o.kind in "RH": ldsops.append(i)
            if o.meta.get("needvm"):
                for j in range(i):
                    if getattr(ops[j], "vmtag", None) == o.meta["needvm"]: add(i, j, 1)
        if hasattr(o, "vmtag"):
            for j in range(i):
                if ops[j].tag == o.vmtag: add(i, j, 3)
        if o.kind == "Z":
            for j in mem_since: add(i, j, 30 if ops[j].kind in "RH" else 3)
            add(i, lastfence, 3); lastfence = i; mem_since = []
        if o.kind == "W" and o.wait:
            for j in range(i):
                if ops[j].tag in o.wait: add(i, j, 30)
        if o.kind == "M":
            pass
        if o.kind == "B":
            if o.meta.get("fence", True):
                for j in since_B: add(i, j, ops[j].cost)
            lastB = i; since_B = []
        else:
            if lastB is not None and ops[lastB].meta.get("fence", True): add(i, lastB, 2)
            since_B.append(i)
        for r in o.rd: readers.setdefault(r, []).append(i)
        for r in o.wr: lastw[r] = i; readers[r] = []
    for j, p in enumerate(ops):
        if p.kind == "R":
            cov = None
            for k in range(j + 1, n):
                q = ops[k]
                if (q.kind == "Z" and not p.meta.get("nofence")) or (q.kind == "W" and q.wait and p.tag in q.wait): cov = k; break
            if cov is not None:
                for k in range(cov + 1, n):
                    if j in deps[k] and (ops[k].rd | ops[k].wr) & p.wr: add(k, cov, ops[cov].cost)
    prevM = None
    for i, o in enumerate(ops):
        if o.kind == "M":
            add(i, prevM, 4); prevM = i
    done = [None] * n
    out = []; now = 0; lastM = -100; lastk = None; lastend = 0
    remaining = list(range(n))
    users = [[] for _ in range(n)]
    for i in range(n):
        for j in deps[i]: users[j].append(i)
    cnt = [len(deps[i]) for i in range(n)]
    rt = [None] * n
    def calc(i):
        t = ops[i].at * 4
        for j, l in deps[i].items(): t = max(t, done[j] + l)
        rt[i] = t
    avail = set()
    for i in range(n):
        if cnt[i] == 0: calc(i); avail.add(i)
    Ms = [i for i in range(n) if ops[i].kind == "M"]; mi = 0
    left = n
    BIG = "ZBDGTRHX"
    while left:
        nextM = Ms[mi] if mi < len(Ms) else None
        mdue = None
        if nextM is not None and nextM in avail: mdue = max(rt[nextM], lastM + 4)
        pick = None
        if mdue is not None and mdue <= now: pick = nextM; start = now; cost = 1
        else:
            cands = []
            for i in avail:
                o = ops[i]
                if o.kind == "M": continue
                st = now
                if o.kind in "VX" and st == lastM + 1: st += 1
                if o.kind == "P" and st < lastM + 4: st = lastM + 4
                if rt[i] > st: continue
                c = o.cost + (1 if (o.kind in MEMK and lastk in ("V", "X", "P") and lastend >= now) else 0)
                late = now - max(o.at * 4, rt[i])
                fits = mdue is None or st + c <= mdue
                if not fits and late < o.meta.get("slack", SLACK): continue
                cands.append((i, st, c, late, fits))
            dense = mdue is not None and mdue <= lastM + 4
            def best(pred, key=lambda x: (-ops[x[0]].prio, ops[x[0]].at)):
                L = [x for x in cands if pred(x)]
                return min(L, key=key) if L else None
            ch = None
            if dense and now == lastM + 1:
                b = best(lambda x: ops[x[0]].kind in BIG or ops[x[0]].cost == 2)
                v = best(lambda x: ops[x[0]].kind == "V" and ops[x[0]].cost == 1)
                if b is not None and v is not None and ops[v[0]].at + VLAG < ops[b[0]].at and ops[b[0]].kind not in "ZBR": b = None
                if b is not None and ops[b[0]].kind not in "XV": ch = b
                else:
                    ch = best(lambda x: ops[x[0]].kind in "SW") or b or v
                    force = b
            elif dense and now == lastM + 2:
                b = best(lambda x: ops[x[0]].kind in "XV" and ops[x[0]].cost == 2)
                v = best(lambda x: ops[x[0]].kind == "V" and ops[x[0]].cost == 1)
                if b is not None and v is not None and ops[v[0]].at + VLAG < ops[b[0]].at: b = None
                ch = b or v or best(lambda x: x[4])
            elif dense:
                ch = best(lambda x: ops[x[0]].kind == "V" and x[4]) or best(lambda x: x[4])
            if ch is None:
                ch = best(lambda x: True, key=lambda x: (x[1] - now, -ops[x[0]].prio, ops[x[0]].at))
            if ch is not None: pick, start, cost = ch[0], ch[1], ch[2]
        if pick is None:
            now += 1
            assert now < 100000, f"schedule stuck in {name}: {[ops[i] for i in range(n) if done[i] is None][:5]}"
            continue
        o = ops[pick]
        if o.kind == "M": lastM = start; mi += 1
        done[pick] = start; o.slot = start
        out.append(o); avail.discard(pick); left -= 1; now = start + cost; lastk = o.kind; lastend = now
        for u in users[pick]:
            cnt[u] -= 1
            if cnt[u] == 0: calc(u); avail.add(u)
    total = max(now, lastM + 4)
    if verbose:
        s = ""
        for o in out: s += ("|" if o.kind == "M" else o.kind)
        print(f"[{name}] slots {total} ({total/4:.1f} gaps) Z@{[round(o.slot/4) for o in out if o.kind == 'Z']}: {s}")
    resolve_waits(out)
    return out, total

def resolve_waits(seq):
    for i, o in enumerate(seq):
        if o.kind == "Z" and not o.lg:
            last = max((j for j in range(i) if seq[j].kind in "RH" and not seq[j].meta.get("nofence")), default=-1)
            o.lgn = min(15, sum(1 for j in range(last + 1, i) if seq[j].kind in "RH"))
        if o.kind == "W" and o.wait:
            last = max((j for j in range(i) if seq[j].tag in o.wait and seq[j].kind in "RH"), default=None)
            assert last is not None, o
            cnt = sum(1 for j in range(last + 1, i) if seq[j].kind in "RH")
            o.text = f"s_waitcnt lgkmcnt({min(cnt, 15)})"

def parse_wait(o):
    vm = lg = None
    m = re.search(r'vmcnt\((\d+)\)', o.text); vm = int(m.group(1)) if m else None
    m = re.search(r'lgkmcnt\((\d+)\)', o.text); lg = int(m.group(1)) if m else None
    return vm, lg

def auto_waits(seq):
    out = []; lq = []; vq = []
    for o in seq:
        touch = o.rd | o.wr
        need_l = max((k for k, p in enumerate(lq) if p.kind in "RK" and p.wr & touch), default=None)
        need_v = max((k for k, p in enumerate(vq) if p.kind == "G" and p.wr & touch), default=None)
        if need_l is not None or need_v is not None:
            t = "s_waitcnt"
            if need_v is not None:
                c = min(len(vq) - 1 - need_v, 63); t += f" vmcnt({c})"; vq = vq[len(vq) - c:] if c else []
            if need_l is not None:
                c = min(len(lq) - 1 - need_l, 15)
                if any(p.kind == "K" for p in lq): c = 0
                t += f" lgkmcnt({c})"; lq = lq[len(lq) - c:] if c else []
            out.append(Op(t))
        if o.kind == "W" and not hasattr(o, "vmtag"):
            vm, lg = parse_wait(o)
            if vm is not None: vq = vq[len(vq) - vm:] if vm and len(vq) > vm else ([] if vm == 0 else vq)
            if lg is not None: lq = lq[len(lq) - lg:] if lg and len(lq) > lg else ([] if lg == 0 else lq)
        if o.kind == "Z" and hasattr(o, "vm"): lq = lq[len(lq) - o.lgn:] if (o.lgn and len(lq) > o.lgn) else ([] if o.lgn == 0 else lq)
        if o.kind in "RHK": lq.append(o)
        if o.kind in "DGT": vq.append(o)
        out.append(o)
    return out

def states(o):
    if o.kind in "LC": return 0
    if o.kind == "N": return int(o.text.split()[1]) + 1
    if o.kind == "Z" and hasattr(o, "vm"): return 2
    return 1

def hazard_need(p, c):
    need = 0
    pv = p.kind in "VXP"; cv = c.kind in "VXP"
    if p.kind == "M":
        if c.kind == "M":
            if (c.A | c.B) & p.D: need = max(need, 8)
            if c.C & p.D and c.C != p.D: need = max(need, 6)
            if c.D & p.D and not (c.C & p.D): need = max(need, 6)
        elif cv or c.kind in MEMK:
            if (c.rd | c.wr) & p.D: need = max(need, 8)
            if cv and c.wr & p.C: need = max(need, 3)
    if pv:
        vw = {r for r in p.wr if r[0] in "va" and r != "vcc"}
        sw = {r for r in p.wr if r[0] == "s" or r == "vcc"}
        if c.kind == "M" and c.rd & vw: need = max(need, 2)
        if c.mn.startswith("v_permlane") and c.rd & vw: need = max(need, 2)
        if c.mn in ("v_readlane_b32", "v_readfirstlane_b32") and c.rd & vw: need = max(need, 1)
        if p.kind == "X" and cv and c.kind != "X" and c.rd & vw: need = max(need, 1)
        if p.kind == "X" and c.kind in MEMK and c.rd & vw: need = max(need, 1)
        if cv and c.rd & sw: need = max(need, 4 if c.mn in ("v_readlane_b32", "v_writelane_b32") else 2)
        if c.kind in "DGT" and c.rd & sw: need = max(need, 5)
        if "exec" in p.wr: need = max(need, 5)
        if c.kind == "B" and "vcc" in c.rd and "vcc" in p.wr: need = max(need, 1)
    if p.kind == "S" and "m0" in p.wr and c.kind == "D": need = max(need, 1)
    if p.kind == "T" and (cv or c.kind in "RG") and c.wr & p.data: need = max(need, 2)
    if p.kind == "H" and cv and c.wr & p.rd: need = max(need, 2)
    return need

def fix_hazards(seq, prev=None, insert=True, name=""):
    out = list(prev or []); base = len(out); added = 0
    for o in seq:
        short = 0; dist = 0
        for p in reversed(out[-40:]):
            if p.kind not in "LC":
                h = hazard_need(p, o)
                if h > dist: short = max(short, h - dist)
            dist += states(p)
            if dist >= 10: break
        if short:
            if not insert: raise AssertionError(f"hazard in {name}: {o.text} short {short}")
            out.append(Op(f"s_nop {short-1}")); added += 1
        out.append(o)
    return out[base:], added

def emit(seq):
    L = []
    for o in seq:
        if o.kind == "Z" and hasattr(o, "vm"):
            L.append(f"s_waitcnt vmcnt({o.vm if o.vm is not None else 0}) lgkmcnt({o.lgn})")
        if hasattr(o, "vmtag"):
            L.append(f"s_waitcnt vmcnt({o.vm if o.vm is not None else 0})"); continue
        L.append(o.text)
    return L
```

```python
NS = 35
E = 4
EV0, EV1, LD, DIAG = 0, 1, 2, 3
class Plan:
    def __init__(self, i):
        self.i = i; self.n2 = 4 * i + 2
        self.chan = [dict(X={}, Y={}), dict(X={}, Y={})]
        self.recs = [[], [], [], []]
        self.inl = 0
    def n(self, w): return self.n2 + 2 * (w & 1)
    def vl(self, w, j):
        pair, u = w >> 1, w & 1
        ring = 4 * pair
        slot = [[ring + 1, ring + 3], [ring + 0, 8 + pair]][u][j]
        entry = 4 * w + j if pair == 0 else 4 * (3 - w) + 2 + j
        return (slot, ("MV", entry))
    def xs(self, w, j):
        return [2, 12, 6, 11][w] if j == 0 else self.vl(w, 0)[0]
def make_plan(i):
    P = Plan(i); n2 = P.n2
    L, S = P.chan
    for t in range(0, NS - 3): L["X"][t] = ("K", t + 3, (t + 1) & 1)
    for t in range(0, NS - 2): L["Y"][t] = ("V", t + 2, 2 + (t & 1))
    for t in range(n2 + E - 3, NS - 3): S["X"][t] = ("K", 2 * NS - 1 - (t + 3), 4 + ((t + 1) & 1))
    for t in range(n2 + E - 2, NS - 2): S["Y"][t] = ("V", 2 * NS - 1 - (t + 2), 6 + (t & 1))
    for pair in range(2):
        C = P.chan[pair]
        for (ch, t, u, j) in (("X", NS - 3, 0, 0), ("X", NS - 2, 1, 0), ("Y", NS - 2, 0, 1), ("X", NS - 1, 1, 1)):
            slot, (k, e) = P.vl(2 * pair + u, j)
            C[ch][t] = ("MV", e, slot)
    def load(chs, tiles):
        assert len(chs) == len(tiles)
        for c, (e, slot) in zip(chs, tiles):
            assert c[1] not in S[c[0]]
            S[c[0]][c[1]] = ("MK", e, slot)
    XY = lambda a, b: [(c, t) for t in range(a, b) for c in "XY"]
    def rnd(chs, h, tev):
        load(chs, [(4 * w + 2 * h + q, 4 + 2 * w + q) for q in range(2) for w in range(4)])
        for w in range(4): P.recs[w].append((tev, EV1 if h else EV0, 4 + 2 * w, 5 + 2 * w, 4 * w + 2 * h))
    def late(t, ws):
        for k, w in enumerate(ws):
            e0 = 4 * w if w < 2 else 4 * (3 - w) + 2
            for q in range(2): P.recs[2 * k + q].append((t, LD, 8 + 2 * k + q, 0, e0 + q))
            P.recs[w].append((t + 2, EV0, 8 + 2 * k, 9 + 2 * k, e0))
    if i >= 4:
        s0 = {4: 2, 5: 4, 6: 8, 7: 12}[i]
        rnd(XY(s0, s0 + 4), 0, s0 + 5)
        rnd([("Y", s0 + 5)] + XY(s0 + 6, s0 + 9) + [("X", s0 + 9)], 1, s0 + 11)
    elif i >= 2:
        rnd(XY(0, 4), 0, 5)
        load([("Y", 5), ("X", 6), ("Y", 6), ("X", 7)], [(10, 6), (11, 7), (14, 10), (15, 11)])
        P.inl = 2
        late(23, (2, 3))
    else:
        P.inl = 3
        if i == 1: load(XY(0, 2), [(8 + q, 4 + q) for q in range(4)]); load(XY(2, 4), [(12 + q, 8 + q) for q in range(4)])
        else: load(XY(0, 2), [(12 + q, 8 + q) for q in range(4)])
        late(15, (0, 1)); late(21, (2, 3))
    for w in (2, 3):
        if P.n(w) > 2: P.recs[w].append((P.n(w) - 3, DIAG, 0, 0, 0))
    if i == 7: P.recs[0].append((31, DIAG, 0, 0, 0)); P.recs[1].append((33, DIAG, 0, 0, 0))
    for w in range(4):
        P.recs[w].sort()
        assert all(r[0] & 1 for r in P.recs[w]) and len({r[0] for r in P.recs[w]}) == len(P.recs[w])
    return P
```

```python
from core import *
from plan import NS, E, EV0, EV1, LD, DIAG
class Ctx:
    def __init__(s, plan, w, t, rec=None): s.plan = plan; s.i = plan.i; s.w = w; s.t = t; s.n = plan.n(w); s.rec = rec

def wave_trace(plan, w, Pc):
    tr = []; recs = list(plan.recs[w]); pro = Pc["pro"]; n = plan.n(w); i = plan.i
    def add(seq, t, rec=None):
        cs = {}
        for o in seq:
            c = cs.setdefault(o.toff, Ctx(plan, w, t + o.toff, rec))
            tr.append((o, c))
            if "inl" in o.meta and plan.inl >> o.meta["inl"] & 1:
                tr.extend((x, c) for x in Pc["inl"][o.meta["inl"]])
        return sum(1 for o in seq if "inc" in o.meta)
    add(pro["main"] + pro["disp"] + pro["disp2"][i] + pro["blocks"][(i, w)] + pro["mid"] + pro["q1"] + pro["j0"] + (pro["i0"] if i == 0 else []), -1)
    t = 0; names = []
    def run(nm, rec=None):
        nonlocal t
        names.append((t, nm)); t += add(Pc[nm], t, rec)
    def window():
        run("diag2"); run("wa")
        if t == NS - 1: run("lastx"); return True
        run("wb")
        if t == NS - 1: run("last2"); return True
        run("w6"); return False
    fin = False
    if w == 2 and i == 0: fin = window()
    while not fin:
        if t == NS - 1: run("last"); break
        if recs and recs[0][0] == t:
            assert names[-1][1] == "loop0", (i, w, t, names[-1])
            r = recs.pop(0)
            if r[1] == DIAG:
                run("diag1")
                if w >= 2: fin = window()
                elif t != NS - 1: run("diag2f"); run("maskall")
            else: run(["ev0", "ev1", "ld"][r[1]], r)
        else: run(f"loop{t & 1}")
    assert t == NS and not recs, (i, w, t, recs)
    add(Pc["final"], NS)
    return tr

def analyse(plans, Pc, sites, verb):
    allw = []; cons = {}
    def constrain(op, n): cons[id(op)] = min(cons.get(id(op), 63), n)
    INF = 1 << 30
    for plan in plans:
        W = []; DONE = []; LDONE = []
        for w in range(4):
            tr = wave_trace(plan, w, Pc)
            ep = 0; nvm = 0; rec = []; bars = []
            for pos, (o, c) in enumerate(tr):
                rec.append((o, c, ep, nvm))
                if o.kind in "DGT": nvm += 1
                if o.kind == "Z": bars.append(pos); ep += 1
            done = {}; cur = 0; ld = {}; lq = []
            for pos, (o, c, e_, n_) in enumerate(rec):
                lg = None
                if o.kind == "W" and not hasattr(o, "vmtag"):
                    vm, lg = parse_wait(o)
                    if vm is not None:
                        while cur < n_ - vm: done[cur] = pos; cur += 1
                if o.kind == "Z": lg = o.lgn
                if lg is not None:
                    while len(lq) > lg: ld[lq.pop(0)] = pos
                if o.kind in "RHK": lq.append(pos)
            DONE.append(done); LDONE.append(ld); W.append((rec, bars))
        nb = {len(b) for _, b in W}; assert len(nb) == 1, ("barrier mismatch", plan.i, [len(b) for _, b in W])
        def ldone_ep(w, pos):
            p = LDONE[w].get(pos); return INF if p is None else W[w][0][p][2]
        D = []; R = []; Wd = {}
        for w, (rec, bars) in enumerate(W):
            for pos, (o, c, ep, nvm) in enumerate(rec):
                for key in ("dma", "hw"):
                    if key in o.meta:
                        x = o.meta[key](c)
                        if x: D.append(dict(slot=x[0], tile=x[1], w=w, pos=pos, ep=ep, vm=nvm, h=(key == "hw")))
                if "src" in o.meta:
                    x = o.meta["src"](c)
                    if x: R.append(dict(slot=x[0], tile=x[1], w=w, pos=pos, ep=ep, op=o, t=c.t))
                if "wdst" in o.meta:
                    e = o.meta["wdst"](c); assert e not in Wd; Wd[e] = (w, pos)
        assert sorted(Wd) == list(range(16)), ("W entries", plan.i, sorted(Wd))
        for w, (rec, bars) in enumerate(W):
            for pos, (o, c, ep, nvm) in enumerate(rec):
                if "wsrc" in o.meta:
                    ww, wpos = Wd[o.meta["wsrc"](c)]
                    assert (ww == w and wpos < pos) or ldone_ep(ww, wpos) < ep, ("W visibility", plan.i, w)
        bytile = {}; byslot = {}; grp = {}
        for d in D: bytile.setdefault((d["slot"], d["tile"]), []).append(d); byslot.setdefault(d["slot"], []).append(d)
        for r in R: grp.setdefault((r["slot"], r["tile"], r["w"], r["ep"]), []).append(r)
        R2 = []
        for g in grp.values(): R2 += [g[0]] if len(g) == 1 else [g[0], g[-1]]
        for r in R2:
            key = (r["slot"], r["tile"]); ds = bytile.get(key, [])
            assert len(ds) == r["op"].meta.get("cnt", 12), ("tile incomplete", plan.i, r["w"], key, len(ds), r["t"])
            for d in ds:
                rec, bars = W[d["w"]]
                if d["w"] == r["w"]:
                    assert d["pos"] < r["pos"], ("read before load", key)
                    if d["h"] or DONE[d["w"]].get(d["vm"], INF) < r["pos"]: continue
                    site = None
                    for k in range(r["pos"] - 1, d["pos"], -1):
                        o = rec[k][0]
                        if (hasattr(o, "vmtag") and o.vmtag == r["op"].meta.get("needvm")) or (o.kind == "Z" and not r["op"].meta.get("needvm")): site = k; break
                    assert site is not None, ("no wait site", plan.i, r["w"], key)
                else:
                    assert d["ep"] < r["ep"], ("cross-wave read too early", plan.i, r["w"], key, d["ep"], r["ep"])
                    if d["h"]:
                        assert ldone_ep(d["w"], d["pos"]) < r["ep"], ("write not drained", key); continue
                    site = bars[r["ep"] - 1]
                    if DONE[d["w"]].get(d["vm"], INF) < site: continue
                constrain(rec[site][0], rec[site][3] - d["vm"] - 1)
            for d2 in byslot[r["slot"]]:
                if d2["tile"] == r["tile"] or (r["tile"][0] == "Q" and d2["tile"][0] == "Q"): continue
                before = all((d2["ep"] < d["ep"]) or (d2["w"] == d["w"] and d2["pos"] < d["pos"]) for d in ds)
                if before: continue
                if d2["w"] == r["w"]:
                    ok = d2["pos"] > r["pos"] and (d2["h"] or LDONE[r["w"]].get(r["pos"], INF) < d2["pos"])
                else: ok = d2["ep"] > ldone_ep(r["w"], r["pos"])
                assert ok, ("slot clobbered", plan.i, r["w"], key, r["ep"], r["t"], d2)
        read = {(r["slot"], r["tile"]) for r in R}
        for key in bytile: assert key in read, ("tile never read", plan.i, key)
        for w in (2, 3):
            rec, bars = W[w]
            epq = min(ep for (o, c, ep, nvm) in rec if o.tag == "QL")
            prec, pbars = W[3 - w]
            lastq = max(nvm for (o, c, ep, nvm) in prec if o.tag == "QS")
            site = pbars[epq - 1]
            constrain(prec[site][0], prec[site][3] - lastq - 1)
            lq = max(n2 for (o2, c2, e2, n2) in rec if o2.tag == "QL")
            for k, (o, c, ep, nvm) in enumerate(rec):
                if getattr(o, "vmtag", None) == "QL" or (getattr(o, "name", "") == "Z1" and c.t == NS - 1): constrain(o, nvm - lq - 1)
        allw.append(W)
    for W in allw:
        for rec, bars in W:
            for (o, c, ep, nvm) in rec:
                if hasattr(o, "vm"):
                    o.vm = cons.get(id(o), 63); assert o.vm >= 0
    if verb:
        for nm in Pc:
            if nm in ("pro", "rt", "inl"): continue
            print(nm, [(getattr(o, "name", getattr(o, "vmtag", "")), o.vm, getattr(o, "lgn", "")) for o in Pc[nm] if hasattr(o, "vm")])
        print("pro", [(getattr(o, "name", getattr(o, "vmtag", "")), o.vm) for o in Pc["pro"]["mid"] + Pc["pro"]["q1"] if hasattr(o, "vm")])
    for W in allw:
        for rec, bars in W:
            lq = []; vq = []; prov = {}
            for (o, c, ep, nvm) in rec:
                touch = o.rd | o.wr
                for p in lq: assert not (p.kind in "RK" and p.wr & touch), ("missing lgkm wait", c.i, c.w, c.t, p.text, o.text)
                for p in vq: assert not (p.kind == "G" and p.wr & touch), ("missing vm wait", c.i, c.w, c.t, p.text, o.text)
                vm = lg = None
                if hasattr(o, "vm"): vm = o.vm; lg = o.lgn if o.kind == "Z" else None
                elif o.kind == "W": vm, lg = parse_wait(o)
                if vm is not None and len(vq) > vm: vq = vq[len(vq) - vm:] if vm else []
                if lg is not None and len(lq) > lg: lq = lq[len(lq) - lg:] if lg else []
                if o.kind in "RHK": lq.append(o)
                if o.kind in "DGT": vq.append(o)
                if o.kind == "M" and "frag" in o.meta:
                    want = o.meta["frag"](c)
                    for r in o.A: assert prov.get(r) == want, ("frag provenance", c.i, c.w, c.t, o.text, prov.get(r), want)
                for r in o.wr: prov[r] = o.meta["gives"](c) if "gives" in o.meta else None
            fix_hazards([x[0] for x in rec], insert=False, name=f"i{rec[0][1].i} w{rec[0][1].w}")
    if verb: print("trace analysis OK")
```

```python
import sys, struct, math
from core import *
from plan import make_plan, NS, E, EV0, EV1, LD, DIAG
import core

KN = "standalone__memory_aug_memorizing_tr__prompt_kernel"
OV = 0; SB = [96, 128]; PB = [160, 176]; MN = 192; LR = 208; LS = 212; TMP = 216; NT = 8
KA = 226; VA = 228; PAT = 232; LTB = 233; XV = 234; YV = 236; DX = 238; DY = 239; CHK = 240; TA = 241; VW = 242
NEG = 243; FF = 244; OFF = 248; T0 = 249
QA = 96; FRB = 192
sX, sY, sG, sOUT, sWS = 4, 8, 12, 16, 20
bK, bV, bMK, bMV, bQ = 24, 26, 28, 30, 32
sT, sEXIT, sW, sI, sN, sU = 34, 35, 36, 37, 38, 39
sUA = 40
sSOX, sMX, sSOY, sMY, sWX, sWY, sTX, sTY = 43, 44, 45, 46, 47, 48, 49, 79
sTP = 50
sTHR, sG_, sOMG = 52, 54, 55
sDM = 56
sRM = 64
sFM = 70
sPM = 72
sX0, sPRV = 76, 77
sNEV = 78
sRET = 80
sEI, sREC = 82, 83
sRING, sROW, sA, sB_, sC, sD = 84, 85, 86, 87, 88, 89
sCP = 90
sV0, sV1, sWE, sXK, sM0 = 92, 93, 94, 95, 96
sPV0, sPV1 = 97, 98
sST = 53
TILE = 12288
TB = 159744; WB = TB + 2176; XCH = TB
Z2G, Z1G = 6, 64
NTMOD = ""; STMOD = ""; RL0 = 40

def f32(x): return "0x%08x" % struct.unpack("<I", struct.pack("<f", x))[0]
def vr(a, n=1): return f"v{a}" if n == 1 else f"v[{a}:{a+n-1}]"
def ar(a, n=1): return f"a{a}" if n == 1 else f"a[{a}:{a+n-1}]"
def sr(a, n=1): return f"s{a}" if n == 1 else f"s[{a}:{a+n-1}]"
def FR(n): return FRB + 4 * (n % 16)
def Oreg(qb, dt): return vr(OV + 48 * qb + 4 * dt, 4) if qb < 2 else ar(48 * (qb - 2) + 4 * dt, 4)
def Qreg(qb, s): return ar(QA + 24 * qb + 4 * s, 4)
def St(p, kt, qb): return SB[p] + 16 * kt + 4 * qb
def lin(a, b, n): return [a + (b - a) * k / max(n - 1, 1) for k in range(n)]
def bc(f):
    return (vr(f, 2), (0, 0)) if f % 2 == 0 else (vr(f - 1, 2), (1, 1))
def pkmul(d, a, f):
    r, (lo, hi) = bc(f); return f"v_pk_mul_f32 {vr(d,2)}, {vr(a,2)}, {r} op_sel:[0,{lo}] op_sel_hi:[1,{hi}]"
def pkfma(d, a, f, c):
    r, (lo, hi) = bc(f); return f"v_pk_fma_f32 {vr(d,2)}, {vr(a,2)}, {r}, {vr(c,2)} op_sel:[0,{lo},0] op_sel_hi:[1,{hi},1]"


def cur_ring(c, j): return 4 if (c.w >= 2 and j >= c.n + E) else 0
def ktile(c, j):
    if j > NS - 1: return None
    if c.w >= 2 and c.n <= j < c.n + E: return None
    r = cur_ring(c, j); return (r + (j & 1), ("K", 2 * NS - 1 - j if r else j))
def vtile(c, j):
    r = cur_ring(c, j); return (r + 2 + (j & 1), ("V", 2 * NS - 1 - j if r else j))
def chan(c, ch, t):
    d = c.plan.chan[c.w >> 1][ch].get(t)
    return None if d is None else (d[2], (d[0], d[1]))
def prv(c): return 4 + 4 * (c.w & 1)
def seq_ops(T, at, step=0.001, **kw): return [Op(s, at=at + step * k, **kw) for k, s in enumerate(T)]
MF = "v_mfma_f32_16x16x32_bf16"

def qk(p, tiles, ats, czero=(), frag=None):
    ops = []; k = 0
    for (kt, qb) in tiles:
        d = vr(St(p, kt, qb), 4)
        for s in range(6):
            c = d if s else ("0" if qb in czero else vr(MN + 4 * qb, 4))
            a = frag(6 * kt + s) if frag else ar(FR(24 * p + 6 * kt + s), 4)
            ops.append(Op(f"{MF} {d}, {a}, {Qreg(qb,s)}, {c}", at=ats[k],
                          meta=dict(kt=kt, frag=lambda c, kt=kt, s=s: ("K", c.t + 1, kt, s)))); k += 1
    return ops
def pv(p, qbs, ats, czero=False):
    ops = []; k = 0
    for dt in range(12):
        for qb in qbs:
            o = Oreg(qb, dt)
            ops.append(Op(f"{MF} {o}, {ar(FR(24*p+12+dt),4)}, {vr(PB[1-p]+4*qb,4)}, {'0' if czero else o}", at=ats[k],
                          meta=dict(frag=lambda c, dt=dt: ("V", c.t, dt)))); k += 1
    return ops
def vreads(p, g0, g1):
    ops = []; at = lin(g0, g1, 24)
    for dt in range(12):
        a = FR(24 * p + 12 + dt)
        for eh in range(2):
            ops.append(Op(f"ds_read_b64_tr_b16 {ar(a+2*eh,2)}, {vr(VA+(dt&3))} offset:{p*TILE + eh*6144 + (dt>>2)*1024}",
                          at=at[2*dt+eh], tag=f"V{dt}", meta=dict(src=lambda c: vtile(c, c.t), gives=lambda c, dt=dt: ("V", c.t, dt))))
    return ops
def kreads(p, g0, g1):
    ops = []; at = lin(g0, g1, 12)
    for n in range(12):
        kt, s = n // 6, n % 6
        ops.append(Op(f"ds_read_b128 {ar(FR(24*p+24+n),4)}, {vr(KA+(s&1))} offset:{p*TILE + kt*6144 + (s>>1)*1024}",
                      at=at[n], tag=f"K{kt}", meta=dict(src=lambda c: ktile(c, c.t + 2), gives=lambda c, kt=kt, s=s: ("K", c.t + 2, kt, s))))
    return ops
def softmax(sp, tiles, at, fresh, acc=LS):
    ops = []; k = 0; fresh = set(fresh)
    for (kt, qb) in tiles:
        for r in range(4):
            t = TMP + (k % NT)
            ops.append(Op(f"v_exp_f32 {vr(t)}, {vr(St(sp,kt,qb)+r)}", at=at[k]))
            a = at[k] + 0.9
            if qb in fresh:
                if r == 1: ops.append(Op(f"v_add_f32 {vr(acc+qb)}, {vr(t-1)}, {vr(t)}", at=a)); fresh.discard(qb)
            else: ops.append(Op(f"v_add_f32 {vr(acc+qb)}, {vr(acc+qb)}, {vr(t)}", at=a))
            if r & 1: ops.append(Op(f"v_cvt_pk_bf16_f32 {vr(PB[sp]+4*qb+2*kt+(r>>1))}, {vr(t-1)}, {vr(t)}", at=a + 0.01))
            k += 1
    return ops
def duty(ch, g0, g1):
    vo, srd, so, m0 = (XV, sX, sSOX, sMX) if ch == "X" else (YV, sY, sSOY, sMY)
    ops = [Op(f"v_add_u32 {vr(vo)}, {vr(PAT)}, {vr(vo)}", at=g0, meta=dict(xadd=ch)), Op(f"v_add_u32 {vr(vo+1)}, {vr(PAT)}, {vr(vo+1)}", at=g0 + 0.01, meta=dict(xadd=ch))]
    at = lin(g0 + 2, g1, 6)
    for a in range(3):
        for rg in range(2):
            ops.append(Op(f"buffer_load_dwordx4 {vr(vo+rg)}, {sr(srd,4)}, {sr(so)} offen offset:{rg*3072+a*128} {NTMOD} lds",
                          at=at[2*a+rg], meta=dict(dma=lambda c, ch=ch: chan(c, ch, c.t), m0=f"s_add_u32 m0, {sr(m0)}, {sr(sUA+a)}")))
    return ops
def decode(ch, g0, g1):
    vo, srd, so, m0, w, tb, dv, bs = (XV, sX, sSOX, sMX, sWX, sTX, DX, bK) if ch == "X" else (YV, sY, sSOY, sMY, sWY, sTY, DY, bV)
    T = [f"v_readlane_b32 {sr(w)}, {vr(dv)}, {sr(sT)}",
         f"s_and_b32 {sr(tb)}, {sr(w)}, 0xfff",
         f"s_and_b32 {sr(m0)}, {sr(w)}, 0xff000",
         f"s_lshr_b32 {sr(so)}, {sr(w)}, 8",
         f"s_and_b32 {sr(so)}, {sr(so)}, 0xff000",
         f"s_bitcmp1_b32 {sr(w)}, 28",
         f"s_cselect_b64 {sr(sTP,2)}, {sr(bMV,2)}, {sr(bMK,2)}",
         f"s_bitcmp1_b32 {sr(w)}, 29",
         f"s_cselect_b64 {sr(srd,2)}, {sr(sTP,2)}, {sr(bs,2)}",
         f"v_add_u32 {vr(TA)}, {sr(tb)}, {vr(LTB)}",
         f"ds_read_b64 {vr(vo,2)}, {vr(TA)}"]
    at = lin(g0, g1, len(T))
    at[6] = at[5] + 0.0001; at[8] = at[7] + 0.0001
    return [Op(x, at=a, tag="TB" + ch) for x, a in zip(T, at)]
sites = []
def check(p, g, qbs=(0, 1, 2, 3)):
    k = len(sites); sites.append(p)
    ops = []
    if len(qbs) == 4:
        ops.append(Op(f"v_max3_f32 {vr(CHK)}, {vr(LS)}, {vr(LS+1)}, {vr(LS+2)}", at=g - 3))
        ops.append(Op(f"v_max_f32 {vr(CHK)}, {vr(CHK)}, {vr(LS+3)}", at=g - 2))
    else:
        ops.append(Op(f"v_max_f32 {vr(CHK)}, {vr(LS+qbs[0])}, {vr(LS+qbs[1])}", at=g - 2))
    ops.append(Op(f"v_cmp_lt_f32 vcc, {sr(sTHR)}, {vr(CHK)}", at=g - 1.5))
    ops.append(Op(f"s_cbranch_vccnz L_stub{k}", at=g + 0.1, meta=dict(site=k)))
    for j, qb in enumerate(qbs):
        ops.append(Op(f"v_add_f32 {vr(LR+qb)}, {vr(LR+qb)}, {vr(LS+qb)}", at=g + 0.2 + 0.01 * j))
    return ops
def masks(p, diag, full, at, a0=0.5):
    ops = [Op(f"v_mov_b32 {vr(NEG)}, 0xff800000", at=a0)] if diag else []
    for (kt, qb), a in zip(full, at[len(diag):]):
        for r in range(4): ops.append(Op(f"v_mov_b32 {vr(St(p,kt,qb)+r)}, 0xff800000", at=a + 0.01 * r))
    for (kt, qb), a in zip(diag, at):
        for r in range(4):
            x = vr(St(p, kt, qb) + r)
            ops.append(Op(f"v_cndmask_b32 {x}, {x}, {vr(NEG)}, {sr(sDM+2*r,2)}", at=a + 0.01 * r))
    return ops
def xlane(op, x, t, at):
    return seq_ops([f"v_mov_b32 {vr(t)}, {vr(x)}", f"v_permlane16_swap_b32 {vr(x)}, {vr(t)}", f"{op} {vr(x)}, {vr(x)}, {vr(t)}",
                    f"v_mov_b32 {vr(t)}, {vr(x)}", f"v_permlane32_swap_b32 {vr(x)}, {vr(t)}", f"{op} {vr(x)}, {vr(x)}, {vr(t)}"], at)
def initmax(sp, qb, at, x, t):
    a, b = St(sp, 0, qb), St(sp, 1, qb)
    ops = seq_ops([f"v_max3_f32 {vr(x)}, {vr(a)}, {vr(a+1)}, {vr(a+2)}", f"v_max3_f32 {vr(t)}, {vr(a+3)}, {vr(b)}, {vr(b+1)}",
                   f"v_max3_f32 {vr(x)}, {vr(x)}, {vr(b+2)}, {vr(b+3)}", f"v_max_f32 {vr(x)}, {vr(x)}, {vr(t)}"], at)
    ops += xlane("v_max_f32", x, t, at + 0.01)
    ops += seq_ops([f"v_sub_f32 {vr(r)}, {vr(r)}, {vr(x)}" for r in [a, a+1, a+2, a+3, b, b+1, b+2, b+3]], at + 0.02)
    ops += seq_ops([f"v_sub_f32 {vr(MN+4*qb+r)}, 0, {vr(x)}" for r in range(4)], at + 0.03)
    return ops
def step_inc(at): return [Op(f"s_add_u32 {sr(sT)}, {sr(sT)}, 1", at=at, meta=dict(inc=1))]
def lane(r, at): return seq_ops([f"v_mbcnt_lo_u32_b32 {vr(r)}, -1, 0", f"v_mbcnt_hi_u32_b32 {vr(r)}, -1, {vr(r)}"], at)
def nextrec(at):
    return seq_ops([f"s_add_u32 {sr(sEI)}, {sr(sEI)}, 1", f"v_readlane_b32 {sr(sREC)}, {vr(DY)}, {sr(sEI)}", f"s_and_b32 {sr(sEXIT)}, {sr(sREC)}, 0xff"], at, step=1.5)
ALLT = [(kt, qb) for kt in range(2) for qb in range(4)]
KT0 = [(0, qb) for qb in range(4)]; KT1 = [(1, qb) for qb in range(4)]
XA2 = [0.1, 1.1, 2.6, 3.6, 5.1] + lin(8.5, 39.5, 11)
XA1 = lin(48.1, 56, 4) + lin(57.5, 63, 4) + lin(67, 90, 8)

def shift(ops, k, prio=0):
    for o in ops:
        o.at += 96 * k; o.toff = k
        if prio: o.prio = prio
    return ops
def frame(p, kr=True, vr_=True, ext=0):
    z1 = Z1G + ext
    ops = [Bar("Z2", Z2G + 0.1), Bar("Z1", z1 + 0.1)]
    ops += duty("X", Z2G + 1, 60 + ext) + duty("Y", z1 + 1, 92 + ext)
    ops += decode("Y", 0.3, 52.5) + decode("X", 62 + ext, 89.5 + ext)
    if vr_: ops += vreads(p, 7.2, 55)
    if kr: ops += kreads(p, z1 + 1.2, 91.2 + ext) + [Wait("K0", 92.5 + ext)]
    ops += step_inc(92.6 + ext)
    return ops

def normal(p, tiles=ALLT, diag=(), full=(), name="", tail=None, extra=None):
    ops = frame(p)
    ats = []
    for (kt, qb) in tiles: ats += [24 * kt + 6 * qb + s for s in range(6)]
    ops += qk(p, tiles, ats) + pv(p, range(4), list(range(48, 96)))
    ops += [Wait([f"V{d}" for d in range(5)], 43.5)]
    ops += softmax(1 - p, KT1, XA2, ()) + check(p, 47) + softmax(p, KT0, XA1, range(4))
    if diag or full:
        ops += masks(p, diag, full, [24 * kt + 6 * qb + 9 for kt, qb in diag] + [24 * kt + 6 * qb for kt, qb in full])
    if tail: ops += tail
    if extra: ops += extra
    return finish(ops, name)

def place_m0(ops):
    ds = sorted([o for o in ops if "m0" in o.meta], key=lambda o: o.at)
    cur = None; prev = -1e9; new = []
    for o in ds:
        key = (o.meta["m0"], o.toff)
        if key != cur:
            s = Op(o.meta["m0"], at=max(o.at - 1.5, prev + 0.00001, o.meta.get("m0lo", -1e9)), prio=o.prio); s.toff = o.toff
            if s.at >= o.at: o.at = s.at + 0.00001
            new.append(s); cur = key
        prev = o.at
    return ops + new
def finish(ops, name, order="at"):
    ops = place_m0(ops)
    for z in [o for o in ops if getattr(o, "name", "") == "Z2"]:
        for o in ops:
            if o.toff == z.toff and (o.meta.get("kt") == 1 or o.meta.get("xadd") == "X"): o.after.append(z)
    seq, tot = schedule(ops, verbose=VERB, name=name, order=order)
    seq = auto_waits(seq)
    seq, nn = fix_hazards(seq)
    if VERB and nn: print(f"   {name}: {nn} nops inserted")
    out = []
    for o in seq:
        out.append(o)
        if "site" in o.meta: out.append(Op(f"L_back{o.meta['site']}:"))
    return out
def raw(lines): return [x if isinstance(x, Op) else Op(x) for x in lines]
def rawfin(lines):
    seq = auto_waits(raw(lines)); seq, _ = fix_hazards(seq); return seq

def qkmem(qb, k, addr, imm0, land, k0, out, rat, mat, xat, wad, wimm, src):
    ops = []
    for n in range(12):
        kt, s = n // 6, n % 6
        f = vr(land[(k0 + n) % len(land)], 4)
        ops.append(Op(f"ds_read_b128 {f}, {vr(addr+(s&1))} offset:{imm0+kt*6144+(s>>1)*1024}", at=rat[n], tag=f"E{k}_{n//3}",
                      meta=dict(src=src, gives=lambda c, n=n: ("MK", qb, n))))
        d = vr(out[kt], 4)
        ops.append(Op(f"{MF} {d}, {f}, {Qreg(qb,s)}, {d if s else '0'}", at=mat[n], meta=dict(frag=lambda c, n=n: ("MK", qb, n))))
    T = [f"v_sub_f32 {vr(out[0]+r)}, {vr(out[0]+r)}, {vr(out[1]+r)}" for r in range(4)]
    T += [f"v_cndmask_b32 {vr(out[0])}, {vr(out[0])}, {vr(out[0]+r)}, {sr(sRM+2*(r-1),2)}" for r in range(1, 4)]
    ops += seq_ops(T, xat)
    ops.append(Op(f"ds_write_b32 {vr(wad)}, {vr(out[0])} offset:{wimm}", at=xat + 0.5, meta=dict(wdst=lambda c: src(c)[1][1])))
    return ops
def lreduce(qbs, at, t):
    ops = []
    for j, qb in enumerate(qbs): ops += xlane("v_add_f32", LR + qb, t + j, at + 0.0001 * j)
    return ops
def pbuild(n, dst, woff, at, t, ent, step=0.0):
    ad, hm = t + 4 * n, t + 4 * n + 1
    ops = seq_ops([f"v_add_u32 {vr(ad)}, {sr(woff)}, {vr(VW)}"], at)
    ops += [Op(f"ds_read_b32 {vr(t+4*j)}, {vr(ad)} offset:{64*j}", at=at + 0.01 + 0.001 * j, meta=dict(nofence=1, wsrc=lambda c, j=j: ent(c, j))) for j in range(n)]
    ops += seq_ops([f"v_lshlrev_b32 {vr(hm)}, 2, {vr(VW)}", f"v_and_b32 {vr(hm)}, 16, {vr(hm)}", f"v_mov_b32 {vr(ad)}, 0xffff",
                    f"v_lshlrev_b32 {vr(hm)}, {vr(hm)}, {vr(ad)}"], at + 0.02)
    for j in range(n):
        x = t + 4 * j; d = dst + 4 * j
        T = [f"v_exp_f32 {vr(x+1)}, -|{vr(x)}|", f"v_add_f32 {vr(x+2)}, 1.0, {vr(x+1)}", f"v_rcp_f32 {vr(x+2)}, {vr(x+2)}",
             f"v_mul_f32 {vr(x+2)}, {sr(sG_)}, {vr(x+2)}", f"v_mul_f32 {vr(x+1)}, {vr(x+1)}, {vr(x+2)}",
             f"v_cvt_pk_bf16_f32 {vr(x+2)}, {vr(x+2)}, {vr(x+2)}", f"v_cvt_pk_bf16_f32 {vr(x+1)}, {vr(x+1)}, {vr(x+1)}",
             f"v_and_b32 {vr(x+2)}, {vr(hm)}, {vr(x+2)}", f"v_and_b32 {vr(x+1)}, {vr(hm)}, {vr(x+1)}"]
        ops += seq_ops(T, at + 0.03 + step * j + 0.0001 * j)
        ops += seq_ops([f"v_cmp_le_f32 vcc, 0, {vr(x)}", f"v_cndmask_b32 {vr(x)}, {vr(x+1)}, {vr(x+2)}, vcc", f"v_cndmask_b32 {vr(x+3)}, {vr(x+2)}, {vr(x+1)}, vcc",
                        f"v_cndmask_b32 {vr(d)}, 0, {vr(x)}, {sr(sPM,2)}", f"v_cndmask_b32 {vr(d+1)}, 0, {vr(x)}, {sr(sPM+2,2)}",
                        f"v_cndmask_b32 {vr(d+2)}, 0, {vr(x+3)}, {sr(sPM,2)}", f"v_cndmask_b32 {vr(d+3)}, 0, {vr(x+3)}, {sr(sPM+2,2)}"],
                       at + 0.05 + step * j + 0.001 * j, step=0.00001)
    return ops
def pvmem(acc, preg, addr, imm0, fr0, nfr, at0, at1, src, tag, needvm=None, k0=0, lead=9, nofence=0):
    ops = []; at = lin(at0, at1, 12)
    for dt in range(12):
        a = fr0 + 4 * ((k0 + dt) % nfr)
        for eh in range(2):
            ops.append(Op(f"ds_read_b64_tr_b16 {ar(a+2*eh,2)}, {vr(addr+(dt&3))} offset:{imm0 + eh*6144 + (dt>>2)*1024}",
                          at=at[dt] + 0.01 * eh, tag=tag, meta=dict(src=src, needvm=needvm, nofence=nofence, gives=lambda c, dt=dt: ("MV", tag, dt))))
        o = vr(acc + 4 * dt, 4)
        ops.append(Op(f"{MF} {o}, {ar(a,4)}, {vr(preg,4)}, {o}", at=at[dt] + lead, meta=dict(frag=lambda c, dt=dt: ("MV", tag, dt))))
    return ops
def outaddr(jw, jr, t, at):
    return lane(t, at) + seq_ops([f"v_and_b32 {vr(jw)}, 15, {vr(t)}", f"v_mul_u32_u24 {vr(jw)}, 400, {vr(jw)}", f"v_lshrrev_b32 {vr(jr)}, 4, {vr(t)}",
                                  f"v_lshl_add_u32 {vr(jw)}, {vr(jr)}, 3, {vr(jw)}", f"v_lshrrev_b32 {vr(jr)}, 3, {vr(t)}",
                                  f"v_lshl_add_u32 {vr(jr)}, {vr(jr)}, 4, {vr(OFF)}"], at + 0.01)
def outpath(acc, soff, jw, jr, imm0, at0, at1, slot, tag, after=None):
    ops = []; at = lin(at0, at0 + (at1 - at0) * 0.6, 12)
    for dt in range(12):
        x = acc + 4 * dt
        ops += seq_ops([f"v_cvt_pk_bf16_f32 {vr(x)}, {vr(x)}, {vr(x+1)}", f"v_cvt_pk_bf16_f32 {vr(x+1)}, {vr(x+2)}, {vr(x+3)}"], at[dt])
        ops.append(Op(f"ds_write_b64 {vr(jw)}, {vr(x,2)} offset:{imm0+32*dt}", at=at[dt] + 0.5, after=after,
                      meta=dict(nofence=1, hw=lambda c: (slot(c), ("ST", c.w, tag)))))
    a2 = at[-1] + 0.6; st = lin(a2 + 6, max(at1, a2 + 7), 6)
    for k in range(6):
        a, rg = k >> 1, k & 1
        ops.append(Op(f"ds_read_b128 {vr(acc+8*k,4)}, {vr(jr)} offset:{imm0+128*a+3200*rg}", at=a2 + 0.01 * k, tag=tag,
                      meta=dict(nofence=1, src=lambda c: (slot(c), ("ST", c.w, tag)))))
        ops.append(Op(f"buffer_store_dwordx4 {vr(acc+8*k,4)}, {vr(OFF)}, {sr(sOUT,4)}, {sr(soff)} offen offset:{128*a+3072*rg} {STMOD}", at=st[k], meta=dict(nofence=1)))
    return ops
def tileload(vo, m0reg, imm, at, tile, tag=None, nofence=0, m0lo=-1e9):
    ops = []; k = 0
    for nb in range(2):
        for a in range(3):
            for rg in range(2):
                ops.append(Op(f"buffer_load_dwordx4 {vr(vo+2*nb+rg)}, {sr(sG,4)}, 0 offen offset:{rg*3072+a*128} {NTMOD} lds", at=at[k], tag=tag,
                              meta=dict(dma=tile, nofence=nofence, m0lo=m0lo, m0=f"s_add_u32 m0, {sr(m0reg)}, {imm + nb*6144 + 896*a}"))); k += 1
    return ops
MV = 96
ACC = [OV, OV + 48, MV, MV + 48]

def evpiece(h):
    p = 1; X = 24
    ops = frame(p, ext=X)
    mem = [54 + k + (k // 2) for k in range(12)] + [74 + k + (k // 2) for k in range(12)]
    rest = [g for g in range(48, 120) if g not in mem]
    ops += qk(p, ALLT, list(range(48))) + pv(p, range(4), rest)
    ops += [Wait([f"V{d}" for d in range(5)], 43.5), Wait([f"V{d}" for d in range(5, 12)], 70.5)]
    ops += softmax(0, KT1, XA2, ()) + check(p, 47) + softmax(1, KT0, lin(80, 87, 5) + lin(91, 114, 11), range(4))
    ops += seq_ops([f"s_and_b32 {sr(sA)}, {sr(sREC)}, 0xff000", f"s_sub_u32 {sr(sA)}, {sr(sA)}, {sr(sRING)}",
                    f"s_bfe_u32 {sr(sC)}, {sr(sREC)}, 0x40014", f"s_lshl_b32 {sr(sC)}, {sr(sC)}, 6"], 10.33, step=3)
    ops += nextrec(24.33)
    ops += seq_ops([f"v_add_u32 {vr(T0)}, {sr(sA)}, {vr(KA)}", f"v_add_u32 {vr(T0+1)}, {sr(sA)}, {vr(KA+1)}", f"v_add_u32 {vr(T0+2)}, {sr(sC)}, {vr(VW)}"], 30.5, step=4)
    land = [SB[0] + 4 * k for k in range(8)]
    for k in range(2):
        mat = mem[12 * k:12 * k + 12]
        rat = [max(47.3 + 0.01 * n, m - 10.5) for n, m in enumerate(mat)]
        out = [PB[1], PB[1] + 4] if k == 0 else [FF, T0 + 3]
        ops += qkmem(2 * h + k, k, T0, k * TILE, land, 12 * k, out, rat, mat, mat[-1] + 2.2, T0 + 2, 64 * k, (lambda c, k=k: (c.rec[2] + k, ("MK", c.rec[4] + k))))
        for g in range(4): ops.append(Wait(f"E{k}_{g}", mat[3 * g] - 1.4))
    ops += [Op("s_branch L_loop0", at=119.2)]
    return finish(ops, f"EV{h}")
def ldpiece():
    V4 = T0 + 1
    ex = seq_ops([f"s_and_b32 {sr(sA)}, {sr(sREC)}, 0xff000", f"s_bfe_u32 {sr(sC)}, {sr(sREC)}, 0x40014", f"s_lshl_b32 {sr(sC)}, {sr(sC)}, 7",
                  f"s_lshl_b32 {sr(sD)}, {sr(sU)}, 6", f"s_sub_u32 {sr(sC)}, {sr(sC)}, {sr(sD)}", f"s_mov_b64 {sr(sG,2)}, {sr(bMK,2)}"], 0.33, step=1)
    ex += [Op(f"v_add_u32 {vr(T0)}, {sr(sC)}, {vr(LTB)}", at=6.5), Op(f"ds_read_b64 {vr(V4,2)}, {vr(T0)}", at=7.5, tag="LT"),
           Op(f"ds_read_b64 {vr(V4+2,2)}, {vr(T0)} offset:64", at=8.5, tag="LT"), Wait("LT", 17)]
    ex += seq_ops([f"v_add_u32 {vr(V4+k)}, {vr(PAT)}, {vr(V4+k)}" for k in range(4)], 17.5)
    at = [x + d for x in (22, 33, 50, 57, 72, 84) for d in (0, 2)]
    ex += tileload(V4, sA, 0, at, lambda c: (c.rec[2], ("MK", c.rec[4])))
    ex += nextrec(24.33)
    return normal(1, name="LD", extra=ex, tail=[Op("s_branch L_loop0", at=95.2)])
def inline_ks(h):
    land = [SB[1] + 4 * k for k in range(8)] + [PB[1] + 4 * k for k in range(4)]
    ops = seq_ops([f"s_lshl_b32 {sr(sC)}, {sr(sW)}, 8", f"v_add_u32 {vr(T0)}, {sr(sPRV)}, {vr(KA)}", f"v_add_u32 {vr(T0+1)}, {sr(sPRV)}, {vr(KA+1)}",
                   f"v_add_u32 {vr(T0+2)}, {sr(sC)}, {vr(VW)}"], 0)
    for k in range(2):
        q = 2 * h + k
        mat = [9 + 12 * k + n for n in range(12)]
        rat = [1 + 0.5 * n for n in range(12)] if k == 0 else [9.5 + n for n in range(12)]
        ops += qkmem(q, k, T0, q * TILE, land, 0, [TMP, TMP + 4] if k == 0 else [MN, MN + 4], rat, mat, mat[-1] + 2.2, T0 + 2, 64 * q,
                     (lambda c, q=q: (prv(c) + q, ("MK", 4 * c.w + q))))
    ops.append(Op("s_waitcnt lgkmcnt(0)", at=40, after=[ops[-1]]))
    return [Op("s_nop 7")] + finish(ops, f"INL{h}")

def diag2():
    p = 0
    ops = frame(p, kr=False)
    tiles = [(0, 2), (0, 3), (1, 3)]
    ops += qk(p, tiles, lin(0, 23, 12) + lin(26, 42, 6)) + pv(p, range(4), list(range(48, 96)))
    ops += [Wait([f"V{d}" for d in range(5)], 43.5)]
    ops += softmax(1, KT1, XA2, ()) + check(p, 47)
    ops += masks(p, [(0, 2), (1, 3)], [(1, 2)], [22, 50, 30])
    ops += softmax(0, tiles, lin(48.2, 88, 12), (2, 3))
    ops += [Op(f"v_mov_b32 {vr(PB[0]+8+2+k)}, 0", at=49 + k) for k in range(2)]
    ops += [Op(f"v_mov_b32 {vr(LS+k)}, 0", at=51 + k) for k in range(2)]
    return finish(ops, "DIAG2")

JW, JR = T0 + 4, T0 + 5
VORD = [0, 1, 3, 2]; STG = [1, 2, 3, 2]
def out_s(k, a0, a1, sreg, after=None):
    j = VORD[k]
    return [Op(f"s_add_u32 {sr(sreg)}, {sr(sROW)}, {j*6144}", at=a0)] + \
        outpath(ACC[j], sreg, JW, JR, STG[k] * TILE, a0, a1, (lambda c: prv(c) + STG[k]), f"O{k}", after=after)
NFIN2 = 1
def fin2(a0):
    ops = []
    for m, k in enumerate(range(4 - NFIN2, 4)): ops += out_s(k, a0 + 28 * m, a0 + 28 * m + 26, [sC, sD][m])
    return ops
def wa():
    fr = [shift(frame(1 - (k & 1), kr=False, vr_=False), k, prio=1) for k in range(3)]
    ops = fr[0] + fr[1] + fr[2]
    Z = {(o.name, o.toff): o for o in ops if o.kind == "Z"}
    for z in Z.values(): z.lg = False
    c = check(1, 2, qbs=(2, 3))
    ops += c + lreduce(range(4), 2.5, TMP)
    for j in range(4):
        ops += [Op(f"v_rcp_f32 {vr(FF+j)}, {vr(LR+j)}", at=7 + 0.1 * j), Op(f"v_mul_f32 {vr(FF+j)}, {sr(sOMG)}, {vr(FF+j)}", at=7.5 + 0.1 * j)]
    BV = SB[0]
    ops += seq_ops([f"s_lshl_b32 {sr(sA)}, {sr(sW)}, 9", f"s_lshl_b32 {sr(sC)}, {sr(sU)}, 6", f"s_sub_u32 {sr(sA)}, {sr(sA)}, {sr(sC)}",
                    f"v_add_u32 {vr(T0+3)}, {sr(sA)}, {vr(LTB)}", f"s_mov_b64 {sr(sG,2)}, {sr(bMV,2)}"], 2.3)
    for k, j in enumerate(VORD):
        for nb in range(2): ops.append(Op(f"ds_read_b64 {vr(BV+4*k+2*nb,2)}, {vr(T0+3)} offset:{j*128+nb*64}", at=2.4 + 0.001 * k, meta=dict(nofence=1)))
    for h, a in ((0, 6.5), (1, 64.5)):
        ops += [Op(f"s_bitcmp1_b32 {sr(sXK)}, {h}", at=a - 0.0002, prio=1), Op(f"s_cbranch_scc1 L_inl{h}", at=a - 0.0001, meta=dict(inl=h), prio=1)]
    ops += vreads(1, 7.2, 24) + pv(1, (2, 3), lin(16, 44, 24))
    ops += seq_ops([f"v_add_u32 {vr(BV+r)}, {vr(PAT)}, {vr(BV+r)}" for r in range(16)], 7)
    at = lin(12, 60, 24) + lin(67, 112, 24)
    for k, j in enumerate(VORD):
        ops += tileload(BV + 4 * k, sPRV, k * TILE, at[12*k:12*k+12], (lambda c, k=k, j=j: (prv(c) + k, ("MV", 4 * c.w + j))), tag=f"VS{k}", nofence=1,
                        m0lo=6.6 if k < 2 else 64.6)
    for j in range(2):
        for r in range(0, 48, 2): ops.append(Op(pkmul(OV + 48*j + r, OV + 48*j + r, FF + j), at=46 + r / 6 + 8 * j))
    ops += [Op(f"s_lshl_b32 {sr(sC)}, {sr(sW)}, 8", at=65)]
    ops += pbuild(4, MN, sC, 65.5, SB[1], lambda c, j: 4 * c.w + j, step=5)
    ops += [Op(f"s_sub_u32 {sr(sA)}, {sr(sPRV)}, {2*TILE}", at=66)]
    ops += seq_ops([f"v_add_u32 {vr(T0+k)}, {sr(sA)}, {vr(VA+k)}" for k in range(4)], 66.1)
    ops += seq_ops([f"v_add_u32 {vr(KA+k)}, {4*TILE}, {vr(KA+k)}" for k in range(6)] + [f"s_mov_b32 {sr(sRING)}, {4*TILE}"], 90)
    ops += outaddr(JW, JR, T0 + 6, 91)
    ops += seq_ops([f"v_add_u32 {vr(JW)}, {sr(sPRV)}, {vr(JW)}", f"v_add_u32 {vr(JR)}, {sr(sPRV)}, {vr(JR)}", f"v_lshlrev_b32 {vr(T0+6)}, 4, {vr(T0+6)}"], 91.1)
    for n_, r in enumerate(list(range(48, 96, 2)) + list(range(0, 48, 2))):
        a = 97 + n_ * 1.1
        ops += [Op(f"v_accvgpr_read_b32 {vr(MV+r)}, {ar(r)}", at=a), Op(f"v_accvgpr_read_b32 {vr(MV+r+1)}, {ar(r+1)}", at=a + 0.01),
                Op(pkmul(MV + r, MV + r, FF + 2 + r // 48), at=a + 1.2)]
    at = lin(114, 150, 24)
    for j in range(4):
        for h in range(2):
            k0 = 6 * j + 3 * h
            ops.append(Op(f"s_add_u32 {sr(sA)}, {sr(sB_)}, {((j^2)*6+3*h)*1024}", at=at[k0] - 0.7))
            for s in range(3):
                ops.append(Op(f"buffer_load_dwordx4 {Qreg(j,3*h+s)}, {vr(T0+6)}, {sr(sWS,4)}, {sr(sA)} offen offset:{s*1024}", at=at[k0+s], tag="QL", meta=dict(nofence=1)))
    PM0 = 152; W = []
    for k, j in enumerate(VORD):
        a0 = PM0 + 17 * k
        ops.append(WaitVM(f"VS{k}", at=a0 - 0.5))
        ops += pvmem(ACC[j], MN + 4 * j, T0, k * TILE, 0, 24, a0, a0 + 16, (lambda c, k=k, j=j: (prv(c) + k, ("MV", 4 * c.w + j))), f"PM{k}",
                     needvm=f"VS{k}", k0=12 * k, nofence=1)
        W.append(Wait(f"PM{k}", a0 + 25)); ops.append(W[-1])
    Z[("Z2", 2)].after.append(W[0])
    O0 = PM0 + 70
    for k in range(4 - NFIN2): ops += out_s(k, O0 + 22 * k, O0 + 22 * k + 21, [sC, sD, sA][k], after=[W[STG[k]]])
    return finish(ops, "WA")
def wb():
    fr = [shift(frame(k & 1, kr=True, vr_=False), k, prio=1) for k in range(2)]
    for o in fr[1]:
        if o.tag in ("K0", "K1"): o.tag += "b"
        if o.wait: o.wait = {"K0b"}
    ops = fr[0] + fr[1] + fin2(0)
    p = 1
    tiles = [(0, 0), (0, 1), (1, 1)]
    w = WaitVM("QL", at=-1)
    q = qk(p, tiles, lin(0, 20, 18), czero=(0, 1))
    for o in q: o.after.append(w)
    x = [w] + q + masks(p, [(0, 0), (1, 1)], [(1, 0)], [10, 24, -4], a0=-5)
    x += initmax(p, 0, 14, T0, T0 + 1) + initmax(p, 1, 26, T0 + 2, T0 + 3)
    x += softmax(p, tiles, lin(36, 60, 12), (0, 1), acc=LR)
    x += seq_ops([f"v_mov_b32 {vr(PB[1]+r)}, 0" for r in (2, 3, 8, 9, 10, 11, 12, 13, 14, 15)] + [f"v_mov_b32 {vr(LR+2+k)}, 0" for k in range(2)], -10)
    ops += shift(x, 1)
    return finish(ops, "WB")
def w6():
    p = 0
    ops = frame(p)
    tiles = [(0, 2), (0, 3), (0, 0), (0, 1), (1, 3), (1, 0), (1, 1)]
    ops += qk(p, tiles, list(range(42)), czero=(2, 3)) + pv(p, range(4), list(range(48, 96)), czero=True)
    ops += [Wait([f"V{d}" for d in range(5)], 43.5)]
    ops += masks(p, [(0, 2), (1, 3)], [(1, 2)], [9, 33, 2])
    ops += initmax(p, 2, 11, T0, T0 + 1) + initmax(p, 3, 34, T0 + 2, T0 + 3)
    ops += softmax(p, KT0, XA1, range(4))
    ops += nextrec(20.33) + [Op("s_branch L_loop1", at=95.2)]
    return finish(ops, "W6")

def xch_write(at):
    T = [f"s_lshl_b32 {sr(sA)}, {sr(sW)}, 8", f"s_add_u32 {sr(sC)}, {sr(sA)}, {XCH-WB}", f"s_sub_u32 {sr(sD)}, {XCH+768}, {sr(sA)}",
         f"v_add_u32 {vr(T0+3)}, {sr(sC)}, {vr(VW)}",
         f"v_mbcnt_lo_u32_b32 {vr(T0+6)}, -1, 0", f"v_mbcnt_hi_u32_b32 {vr(T0+6)}, -1, {vr(T0+6)}",
         f"v_and_b32 {vr(T0+2)}, 15, {vr(T0+6)}", f"v_lshlrev_b32 {vr(T0+2)}, 2, {vr(T0+2)}", f"v_add_u32 {vr(T0+2)}, {sr(sD)}, {vr(T0+2)}",
         f"v_lshlrev_b32 {vr(T0+6)}, 4, {vr(T0+6)}",
         f"ds_write_b32 {vr(T0+3)}, {vr(MN+8)}", f"ds_write_b32 {vr(T0+3)}, {vr(MN+12)} offset:64",
         f"ds_write_b32 {vr(T0+3)}, {vr(LR+2)} offset:128", f"ds_write_b32 {vr(T0+3)}, {vr(LR+3)} offset:192"]
    return seq_ops(T, at)
def xch_read(at):
    t = TMP
    ops = seq_ops([f"ds_read_b32 {vr(t+k)}, {vr(T0+2)} offset:{64*k}" for k in range(4)], at)
    for j in range(2):
        m = t + 4 + 2 * j
        ops += seq_ops([f"v_min_f32 {vr(m)}, {vr(MN+4*j)}, {vr(t+j)}",
              f"v_sub_f32 {vr(FF+j)}, {vr(m)}, {vr(MN+4*j)}", f"v_sub_f32 {vr(FF+2+j)}, {vr(m)}, {vr(t+j)}",
              f"v_exp_f32 {vr(FF+j)}, {vr(FF+j)}", f"v_exp_f32 {vr(FF+2+j)}, {vr(FF+2+j)}",
              f"v_mul_f32 {vr(m)}, {vr(FF+j)}, {vr(LR+j)}", f"v_fma_f32 {vr(m)}, {vr(FF+2+j)}, {vr(t+2+j)}, {vr(m)}",
              f"v_rcp_f32 {vr(m)}, {vr(m)}", f"v_mul_f32 {vr(m)}, {sr(sOMG)}, {vr(m)}",
              f"v_mul_f32 {vr(FF+j)}, {vr(FF+j)}, {vr(m)}", f"v_mul_f32 {vr(FF+2+j)}, {vr(FF+2+j)}, {vr(m)}"], at + 0.1 + 0.0001 * j)
    return ops
PM = PB[0]
FA = PB[0] + 8
def send(j, areg, at, after=None):
    return [Op(f"ds_write_b128 {vr(areg)}, {ar(48*j+4*dt,4)} offset:{1024*dt}", at=at[dt], after=after,
               meta=dict(hw=lambda c: (c.plan.xs(c.w, j), ("XO", c.w, j)), slack=0)) for dt in range(12)]
def last(kind):
    p = 0
    g = 26
    ops = [Bar("Z2", 4), Bar("Z1", g + 16)] + duty("X", 4.5, 20)
    if kind != "x": ops += vreads(p, 4.5, 23)
    if kind == "n": ops += softmax(1, KT1, lin(0, g - 5, 16), ()) + check(p, g)
    if kind == "2": ops += seq_ops([f"v_mov_b32 {vr(MN+r)}, {f32(1e30)}" for r in (8, 12)], 1)
    if kind == "x":
        ops += fin2(0)
        ops += seq_ops([f"v_mov_b32 {vr(MN+r)}, {f32(1e30)}" for r in (0, 4, 8, 12)] + [f"v_mov_b32 {vr(LR+r)}, 0" for r in range(4)], 1)
    else:
        ops += lreduce([2, 3, 0, 1], g + 0.5, TMP)
        ops += pv(p, (2, 3), lin(g + 1, g + 24, 24), czero=(kind == "2")) + pv(p, (0, 1), lin(g + 25, g + 60, 24), czero=(kind == "2"))
    ops += xch_write(g + 3)
    ops += pbuild(2, PM, sWE, g + 8, SB[1] + 16, lambda c, j: c.plan.vl(c.w, j)[1][1])
    ops += xch_read(g + 16.5)
    ops += [Op(f"v_add_u32 {vr(T0)}, {sr(sX0)}, {vr(T0+6)}", at=g + 17), Op(f"v_add_u32 {vr(T0+1)}, {sr(sV0)}, {vr(T0+6)}", at=g + 17)]
    ops += send(0, T0, lin(g + 26.5, g + 59, 12))
    for j, s in enumerate((sV0, sV1)):
        ops += seq_ops([f"s_sub_u32 {sr(sA)}, {sr(s)}, {sr(sRING)}", f"s_sub_u32 {sr(sA)}, {sr(sA)}, {2*TILE}"] +
                       [f"v_add_u32 {vr(FA+4*j+k)}, {sr(sA)}, {vr(VA+k)}" for k in range(4)], g + 18 + j)
    ops += seq_ops([f"s_sub_u32 {sr(sB_)}, 15, {sr(sI)}", f"s_mul_i32 {sr(sB_)}, {sr(sB_)}, 49152", f"s_mov_b32 {sr(sC)}, -24576",
                    f"s_cmp_lt_u32 {sr(sW)}, 2", f"s_cselect_b32 {sr(sA)}, 0, {3*24576+12288}", f"s_cselect_b32 {sr(sC)}, 24576, {sr(sC)}",
                    f"s_mul_i32 {sr(sC)}, {sr(sC)}, {sr(sW)}", f"s_add_u32 {sr(sB_)}, {sr(sB_)}, {sr(sA)}", f"s_add_u32 {sr(sB_)}, {sr(sB_)}, {sr(sC)}",
                    f"s_add_u32 {sr(sC)}, {sr(sB_)}, 6144"], g + 30)
    ops += step_inc(g + 40)
    return finish(ops, "LAST" + kind)
def final():
    pm0 = pvmem(OV, PM, FA, 0, QA, 24, 0, 6, (lambda c: c.plan.vl(c.w, 0)), "PM0", lead=14)
    ops = pm0
    for r in range(0, 48, 2): ops.append(Op(pkmul(OV + r, OV + r, FF), at=6.5))
    w = Wait("PM0", 13.5); ops.append(w)
    ops += send(1, T0 + 1, lin(14.5, 50, 12), after=[w])
    for o in ops[-12:]: o.meta["nofence"] = 1
    z3 = Bar("Z3", 13.6); ops.append(z3)
    for r in range(0, 48, 2): ops.append(Op(pkmul(OV + 48 + r, OV + 48 + r, FF + 1), at=12 + 0.01 * r))
    ops += pvmem(OV + 48, PM + 4, FA + 4, 0, QA, 24, 16, 40, (lambda c: c.plan.vl(c.w, 1)), "PM1", k0=12, lead=10)
    ops += outaddr(JW, JR, T0 + 2, 30)
    A2 = TMP
    ops += seq_ops([f"v_add_u32 {vr(A2)}, {sr(sPV0)}, {vr(T0+6)}", f"v_add_u32 {vr(A2+1)}, {sr(sPV1)}, {vr(T0+6)}",
                    f"v_add_u32 {vr(A2+2)}, {sr(sPV0)}, {vr(JW)}", f"v_add_u32 {vr(A2+3)}, {sr(sPV0)}, {vr(JR)}",
                    f"v_add_u32 {vr(A2+4)}, {sr(sPV1)}, {vr(JW)}", f"v_add_u32 {vr(A2+5)}, {sr(sPV1)}, {vr(JR)}"], 31)
    z4 = Bar("Z4", 52); z4.after += [o for o in ops if o.kind == "H"]; ops.append(z4)
    land = [96 + 4 * k for k in range(16)] + [176 + 4 * k for k in range(8)]
    for j in range(2):
        for dt in range(12):
            k = 12 * j + dt; r = land[k]
            ops.append(Op(f"ds_read_b128 {vr(r,4)}, {vr(A2+j)} offset:{1024*dt}", at=53 + 0.25 * k, tag=f"XR{j}",
                          meta=dict(src=lambda c, j=j: (c.plan.xs(3 - c.w, j), ("XO", 3 - c.w, j)))))
            o = OV + 48 * j + 4 * dt
            ops += [Op(pkfma(o, r, FF + 2 + j, o), at=60 + 22 * j + 0.5 * dt), Op(pkfma(o + 2, r + 2, FF + 2 + j, o + 2), at=60 + 22 * j + 0.5 * dt)]
        w = Wait(f"XR{j}", 66 + 22 * j); ops.append(w)
        ops += outpath(OV + 48 * j, [sB_, sC][j], A2 + 2 + 2 * j, A2 + 3 + 2 * j, 0, 66.5 + 22 * j, 90 + 22 * j, (lambda c, j=j: c.plan.xs(3 - c.w, j)), f"F{j}", after=[w])
    return [Op("s_nop 7")] + finish(ops, "FINAL")

def routine(p):
    so, sn = 1 - p, p
    L = [f"L_rt{p}:", "s_nop 7"]
    x, t, al = CHK, NEG, TA
    L += [f"v_mov_b32 {vr(T0+6)}, {vr(TA)}"]
    for qb in range(4):
        a, b = St(so, 0, qb), St(so, 1, qb)
        L += [f"v_cmp_lt_f32 vcc, {sr(sTHR)}, {vr(LS+qb)}", "s_nop 1", f"s_cbranch_vccz L_rs{p}_{qb}"]
        L += [f"v_max3_f32 {vr(x)}, {vr(a)}, {vr(a+1)}, {vr(a+2)}", f"v_max3_f32 {vr(t)}, {vr(a+3)}, {vr(b)}, {vr(b+1)}",
              f"v_max3_f32 {vr(x)}, {vr(x)}, {vr(b+2)}, {vr(b+3)}", f"v_max3_f32 {vr(x)}, {vr(x)}, {vr(t)}, 0"]
        L += xlane("v_max_f32", x, t, 0)
        L += [f"v_exp_f32 {vr(al)}, -{vr(x)}"]
        for base in (a, b, St(sn, 0, qb), St(sn, 1, qb), MN + 4 * qb):
            L += [f"v_sub_f32 {vr(base+r)}, {vr(base+r)}, {vr(x)}" for r in range(4)]
        L += [f"v_mul_f32 {vr(LR+qb)}, {vr(LR+qb)}, {vr(al)}"]
        for r in range(48):
            if qb < 2: L += [f"v_mul_f32 {vr(OV+48*qb+r)}, {vr(OV+48*qb+r)}, {vr(al)}"]
            else:
                q = 48 * (qb - 2) + r
                L += [f"v_accvgpr_read_b32 {vr(t)}, {ar(q)}", f"v_mul_f32 {vr(t)}, {vr(t)}, {vr(al)}", f"v_accvgpr_write_b32 {ar(q)}, {vr(t)}"]
        L += sorted(softmax(so, [(0, qb), (1, qb)], list(range(8)), (qb,)), key=lambda o: o.at)
        L += [f"L_rs{p}_{qb}:"]
    L += [f"v_mov_b32 {vr(TA)}, {vr(T0+6)}", f"v_mov_b32 {vr(NEG)}, 0xff800000", "s_nop 1", f"s_setpc_b64 {sr(sRET,2)}"]
    return rawfin(L)

def lanemask(fn):
    m = 0
    for l in range(64):
        if fn(l & 15, l >> 4): m |= 1 << l
    return m
def smov64(r, m): return [f"s_mov_b32 {sr(r)}, 0x{m & 0xffffffff:08x}", f"s_mov_b32 {sr(r+1)}, 0x{m >> 32:08x}"]
def desc_word(d):
    if d is None: return 16 * 128 | (15 * 3) << 12 | 255 << 20
    kind, src, dest = d
    if kind in ("K", "V"): return 16 * 128 | (dest * 3) << 12 | (src * 3) << 20
    return src * 128 | (dest * 3) << 12 | (1 << 29) | ((1 << 28) if kind == "MV" else 0)
def rec_word(e):
    t, kind, sa, sb, entry = e
    return t | kind << 8 | (sa * 3) << 12 | entry << 20
def interleave(A, B):
    out = []; n = len(A)
    for k, g in enumerate(A):
        out += g; out += B[len(B) * k // n: len(B) * (k + 1) // n]
    return out

def prologue(plans):
    KB = 84
    l, c_, g_ = T0, T0 + 1, T0 + 2
    t1, t2, t3, t4 = T0 + 3, T0 + 4, T0 + 5, T0 + 6
    H = ["s_cmp_ge_u32 s2, 256", "s_cbranch_scc1 L_end",
         f"s_load_dwordx16 s[{KB}:{KB+15}], s[0:1], 0", "s_load_dwordx2 s[100:101], s[0:1], 72"]
    if STAMP: H += ["s_memtime s[60:61]", "s_memrealtime s[62:63]"]
    if PREF:
        H += ["s_getpc_b64 s[4:5]", "L_pc:", "s_bfe_u32 s6, s2, 0x40003", "s_lshl_b32 s6, s6, 12",
              f"v_lshrrev_b32 {vr(t1)}, 6, v0", f"v_and_b32 {vr(t2)}, 15, v0", f"v_lshlrev_b32 {vr(t2)}, 6, {vr(t2)}",
              f"v_lshl_add_u32 {vr(t1)}, {vr(t1)}, 10, {vr(t2)}", f"v_add_u32 {vr(t1)}, s6, {vr(t1)}",
              f"v_min_u32 {vr(t1)}, L_codeend-L_pc-4, {vr(t1)}",
              f"v_mov_b32 {vr(t4)}, s5", f"v_add_co_u32 {vr(t3)}, vcc, s4, {vr(t1)}", "s_nop 1", f"v_addc_co_u32 {vr(t4)}, vcc, 0, {vr(t4)}, vcc",
              f"global_load_dword a255, {vr(t3,2)}, off"]
    H += [f"v_lshrrev_b32 {vr(t1)}, 6, v0", f"v_and_b32 {vr(l)}, 63, v0", f"v_readfirstlane_b32 {sr(sW)}, {vr(t1)}",
          "s_and_b32 s3, s2, 7", "s_lshl_b32 s3, s3, 2", f"s_bfe_u32 {sr(sI)}, s2, 0x20003", f"s_add_u32 s3, s3, {sr(sI)}",
          f"s_lshr_b32 {sr(sI)}, s2, 5", f"s_and_b32 {sr(sU)}, {sr(sW)}, 1",
          f"v_lshrrev_b32 {vr(t2)}, 3, {vr(l)}", f"v_and_b32 {vr(t3)}, 6, {vr(t2)}", f"v_and_b32 {vr(t4)}, 7, {vr(l)}",
          f"v_xor_b32 {vr(t3)}, {vr(t3)}, {vr(t4)}", f"v_lshlrev_b32 {vr(PAT)}, 4, {vr(t3)}",
          f"v_mul_u32_u24 {vr(OFF)}, 384, {vr(t2)}", f"v_add_u32 {vr(XV)}, {vr(OFF)}, {vr(PAT)}", f"v_add_u32 {vr(XV)}, 3072, {vr(XV)}",
          f"v_lshl_add_u32 {vr(OFF)}, {vr(t4)}, 4, {vr(OFF)}",
          f"s_sub_u32 {sr(sT)}, 15, {sr(sI)}", f"s_cmp_lt_u32 {sr(sW)}, 2", f"s_cselect_b32 {sr(sT)}, {sr(sT)}, {sr(sI)}",
          f"s_lshl_b32 {sr(sT)}, {sr(sT)}, 1", f"s_add_u32 {sr(sT)}, {sr(sT)}, {sr(sU)}",
          f"s_mul_i32 {sr(sEXIT)}, s3, 786432", f"s_mul_i32 {sr(sUA)}, {sr(sW)}, 3072",
          f"s_lshl_b32 {sr(sN)}, s3, 14", f"s_lshl_b32 {sr(sSOX)}, {sr(sT)}, 9", f"s_add_u32 {sr(sN)}, {sr(sN)}, {sr(sSOX)}",
          f"v_lshl_add_u32 {vr(t1)}, {vr(l)}, 3, {sr(sN)}", f"s_lshl_b32 {sr(sN)}, s3, 1", f"v_mov_b32 {vr(t2)}, {sr(sN)}",
          f"s_mul_i32 {sr(sSOY)}, {sr(sT)}, 24576",
          f"s_mul_i32 {sr(sMY)}, {sr(sW)}, {2*TILE}", f"s_add_u32 {sr(sMY)}, {sr(sMY)}, {4*TILE}"]
    for s in (sX, sY, sG): H += [f"s_mov_b32 {sr(s+2)}, {786432+3072}", f"s_mov_b32 {sr(s+3)}, 0x20000"]
    H += ["s_waitcnt lgkmcnt(0)"]
    if STAMP: H += [f"v_mov_b32 {vr(STV)}, 0", f"v_mov_b32 {vr(STV+1)}, 0", f"v_writelane_b32 {vr(STV)}, s60, 0", f"v_writelane_b32 {vr(STV+1)}, s62, 0", f"s_mov_b32 {sr(sST)}, 1"]
    def base(b, ka): return [f"s_add_u32 {sr(b)}, {sr(ka)}, {sr(sEXIT)}", f"s_addc_u32 {sr(b+1)}, {sr(ka+1)}, 0",
                             f"s_sub_u32 {sr(b)}, {sr(b)}, 3072", f"s_subb_u32 {sr(b+1)}, {sr(b+1)}, 0"]
    def tile4(srd, blk, slot, kind):
        G = []
        for a in range(3):
            G.append([f"s_add_u32 m0, {sr(sUA)}, {slot*TILE+896*a}", f"s_add_u32 {sr(sSOX)}, {sr(sUA)}, {blk*TILE}",
                      Op(f"buffer_load_dwordx4 {vr(XV)}, {sr(srd,4)}, {sr(sSOX)} offen offset:{128*a} {NTMOD} lds", meta=dict(dma=lambda c: (slot, (kind, blk))))])
        return G
    def qblk(j):
        G = []
        for a in range(3):
            for rg in range(2):
                pre = [f"s_add_u32 m0, {sr(sMY)}, {j*6144+896*a}", f"s_add_u32 {sr(sSOX)}, {sr(sSOY)}, {j*6144}"] if rg == 0 else []
                G.append(pre + [Op(f"buffer_load_dwordx4 {vr(XV)}, {sr(sG,4)}, {sr(sSOX)} offen offset:{rg*3072+128*a} {NTQ} lds", tag=f"Q{j}",
                                   meta=dict(dma=lambda c: (4 + 2 * c.w + (j >> 1), ("Q", c.w, j)), cnt=6))])
        return G
    H += base(sG, KB)
    for g in qblk(0): H += g
    H += [f"global_load_dwordx2 {vr(YV,2)}, {vr(t1)}, {sr(KB+10,2)}", f"global_load_ushort {vr(CHK)}, {vr(t2)}, {sr(KB+12,2)}"]
    H += base(bK, KB + 2) + [f"s_mov_b64 {sr(sX,2)}, {sr(bK,2)}"]
    for g in tile4(sX, 0, 12, "K"): H += g
    H += base(bV, KB + 4) + [f"s_mov_b64 {sr(sY,2)}, {sr(bV,2)}"] + base(bMK, KB + 6) + base(bMV, KB + 8)
    H += [f"s_add_u32 {sr(sOUT)}, {sr(KB+14)}, {sr(sEXIT)}", f"s_addc_u32 {sr(sOUT+1)}, {sr(KB+15)}, 0", f"s_mov_b32 {sr(sOUT+2)}, 786432", f"s_mov_b32 {sr(sOUT+3)}, 0x20000",
          f"s_mul_i32 {sr(sN)}, s2, 49152", f"s_add_u32 {sr(sN)}, {sr(sN)}, 0x1000000", f"s_add_u32 {sr(sWS)}, s100, {sr(sN)}", f"s_addc_u32 {sr(sWS+1)}, s101, 0",
          f"s_mov_b32 {sr(sWS+2)}, 49152", f"s_mov_b32 {sr(sWS+3)}, 0x20000"]
    A = [f"v_and_b32 {vr(c_)}, 15, {vr(l)}", f"v_lshrrev_b32 {vr(g_)}, 4, {vr(l)}",
         f"v_lshrrev_b32 {vr(t1)}, 3, {vr(c_)}", f"v_mul_u32_u24 {vr(t1)}, 3072, {vr(t1)}", f"v_and_b32 {vr(t2)}, 7, {vr(c_)}",
         f"v_lshl_add_u32 {vr(t1)}, {vr(t2)}, 7, {vr(t1)}", f"v_and_b32 {vr(t3)}, 6, {vr(c_)}"]
    for j in range(2): A += [f"v_or_b32 {vr(t2)}, {4*j}, {vr(g_)}", f"v_xor_b32 {vr(t2)}, {vr(t2)}, {vr(t3)}", f"v_lshl_add_u32 {vr(KA+j)}, {vr(t2)}, 4, {vr(t1)}"]
    A += [f"v_bfe_u32 {vr(t2)}, {vr(l)}, 2, 3", f"v_lshrrev_b32 {vr(t1)}, 5, {vr(l)}", f"v_mul_u32_u24 {vr(t1)}, 3072, {vr(t1)}",
          f"v_lshl_add_u32 {vr(t1)}, {vr(t2)}, 7, {vr(t1)}", f"v_and_b32 {vr(t3)}, 1, {vr(l)}", f"v_lshl_add_u32 {vr(t1)}, {vr(t3)}, 3, {vr(t1)}",
          f"v_add_u32 {vr(t1)}, {2*TILE}, {vr(t1)}", f"v_and_b32 {vr(t2)}, 6, {vr(t2)}", f"v_bfe_u32 {vr(t3)}, {vr(l)}, 1, 1"]
    for x in range(4): A += [f"v_or_b32 {vr(t4)}, {2*x}, {vr(t3)}", f"v_xor_b32 {vr(t4)}, {vr(t4)}, {vr(t2)}", f"v_lshl_add_u32 {vr(VA+x)}, {vr(t4)}, 4, {vr(t1)}"]
    A += [f"v_lshrrev_b32 {vr(t1)}, 3, {vr(l)}", f"s_lshl_b32 {sr(sN)}, {sr(sU)}, 6", f"s_add_u32 {sr(sN)}, {sr(sN)}, {TB}", f"v_lshl_add_u32 {vr(LTB)}, {vr(t1)}, 3, {sr(sN)}",
          f"v_lshlrev_b32 {vr(t1)}, 2, {vr(c_)}", f"v_add_u32 {vr(t1)}, {WB}, {vr(t1)}", f"v_lshrrev_b32 {vr(t2)}, 2, {vr(c_)}", f"v_mov_b32 {vr(VW)}, 0x40000",
          f"v_cmp_eq_u32 vcc, {vr(t2)}, {vr(g_)}", f"v_cndmask_b32 {vr(VW)}, {vr(VW)}, {vr(t1)}, vcc"]
    for r in range(1, 4): A += smov64(sRM + 2 * (r - 1), lanemask(lambda c, g: (c & 3) == r))
    for pp in range(2): A += smov64(sPM + 2 * pp, lanemask(lambda c, g: g == c >> 2 and ((c & 3) >> 1) == pp))
    A += [f"s_mov_b32 {sr(sTHR)}, {f32(THR)}"]
    A += [f"v_accvgpr_write_b32 {ar(r)}, 0" for r in range(96)]
    DM = []
    for r in range(4): DM += smov64(sDM + 2 * r, lanemask(lambda c, g: 4 * g + r > c))
    B0 = [f"s_lshl_b32 {sr(sN)}, {sr(sI)}, 2", f"s_add_u32 {sr(sNEV)}, {sr(sN)}, {2+E-2}",
          f"s_lshl_b32 {sr(sEI)}, {sr(sU)}, 1", f"s_add_u32 {sr(sN)}, {sr(sN)}, {sr(sEI)}", f"s_add_u32 {sr(sN)}, {sr(sN)}, 2",
          f"s_mov_b32 {sr(sWX)}, {(-3<<20) & 0xffffffff}", f"s_mov_b32 {sr(sTX)}, {desc_word(('K',2*NS-5,4))}", f"s_mov_b32 {sr(sTY)}, {desc_word(('V',2*NS-3,6))}",
          f"s_cmp_lt_u32 {sr(sW)}, 2",
          f"s_cselect_b32 {sr(sWX)}, {3<<20}, {sr(sWX)}", f"s_cselect_b32 {sr(sTX)}, {desc_word(('K',4,0))}, {sr(sTX)}",
          f"s_cselect_b32 {sr(sTY)}, {desc_word(('V',2,2))}, {sr(sTY)}", f"s_cselect_b32 {sr(sWY)}, 0, {sr(sNEV)}"] + DM + [
          f"s_lshl_b32 {sr(sEI)}, {sr(sI)}, 2", f"s_add_u32 {sr(sEI)}, {sr(sEI)}, {sr(sW)}", f"s_cmp_eq_u32 {sr(sEI)}, 2",
          f"s_cselect_b64 {sr(sFM,2)}, -1, 0"] + [f"s_cselect_b64 {sr(sDM+2*r,2)}, {sr(sDM+2*r,2)}, 0" for r in range(4)]
    B = [f"v_mul_lo_u32 {vr(t1)}, {vr(l)}, {sr(sWX)}", f"v_and_b32 {vr(t2)}, 1, {vr(l)}", f"v_mul_u32_u24 {vr(t2)}, {3<<12}, {vr(t2)}",
         f"v_add_u32 {vr(t1)}, {vr(t1)}, {vr(t2)}", f"v_add_u32 {vr(DX)}, {sr(sTX)}, {vr(t1)}", f"v_add_u32 {vr(DY)}, {sr(sTY)}, {vr(t1)}",
         f"v_mov_b32 {vr(t3)}, {desc_word(None)}",
         f"v_cmp_gt_u32 vcc, {sr(sWY)}, {vr(l)}", f"v_cndmask_b32 {vr(DY)}, {vr(DY)}, {vr(t3)}, vcc",
         f"v_cmp_lt_u32 vcc, {NS-3}, {vr(l)}", f"v_cndmask_b32 {vr(DY)}, {vr(DY)}, {vr(t3)}, vcc",
         f"v_add_u32 {vr(t2)}, 2, {vr(l)}", f"v_cmp_gt_u32 vcc, {sr(sWY)}, {vr(t2)}", f"v_cndmask_b32 {vr(DX)}, {vr(DX)}, {vr(t3)}, vcc",
         f"v_cmp_lt_u32 vcc, {NS-5}, {vr(l)}", f"v_cndmask_b32 {vr(DX)}, {vr(DX)}, {vr(t3)}, vcc"]
    B += [f"v_mov_b32 {vr(OV+r)}, 0" for r in range(48, 96)]
    B += [f"v_mov_b32 {vr(LR+r)}, 0" for r in range(4)]
    Tb = [f"v_mul_u32_u24 {vr(YV)}, 384, {vr(YV)}", f"v_mul_u32_u24 {vr(YV+1)}, 384, {vr(YV+1)}",
          f"v_bfe_u32 {vr(t1)}, {vr(l)}, 3, 1", f"v_xor_b32 {vr(t2)}, 1, {vr(t1)}", f"v_mul_u32_u24 {vr(t2)}, 3072, {vr(t2)}",
          f"v_add_u32 {vr(YV)}, {vr(YV)}, {vr(t2)}", f"v_add_u32 {vr(YV+1)}, {vr(YV+1)}, {vr(t2)}",
          f"v_and_b32 {vr(t2)}, 7, {vr(l)}", f"v_lshlrev_b32 {vr(t2)}, 3, {vr(t2)}", f"v_lshl_add_u32 {vr(t2)}, {vr(t1)}, 2, {vr(t2)}",
          f"v_lshl_add_u32 {vr(t2)}, {vr(g_)}, 7, {vr(t2)}", f"s_lshl_b32 {sr(sWX)}, {sr(sW)}, 9", f"s_add_u32 {sr(sWX)}, {sr(sWX)}, {TB}",
          f"v_add_u32 {vr(t2)}, {sr(sWX)}, {vr(t2)}", f"ds_write_b32 {vr(t2)}, {vr(YV)}", f"ds_write_b32 {vr(t2)}, {vr(YV+1)} offset:64",
          f"v_bfe_u32 {vr(t1)}, {vr(l)}, 4, 1", f"v_bfe_u32 {vr(t3)}, {vr(l)}, 1, 3", f"v_lshl_add_u32 {vr(t1)}, {vr(t1)}, 4, {vr(t3)}",
          f"v_mul_u32_u24 {vr(t1)}, 384, {vr(t1)}", f"v_add_u32 {vr(t1)}, 3072, {vr(t1)}",
          f"v_and_b32 {vr(t3)}, 31, {vr(l)}", f"v_lshlrev_b32 {vr(t3)}, 2, {vr(t3)}", f"v_add_u32 {vr(t3)}, {TB+2048}, {vr(t3)}", f"ds_write_b32 {vr(t3)}, {vr(t1)}",
          f"v_lshlrev_b32 {vr(CHK)}, 16, {vr(CHK)}", f"v_mul_f32 {vr(CHK)}, {f32(-1.4426950408889634)}, {vr(CHK)}", f"v_exp_f32 {vr(CHK)}, {vr(CHK)}",
          f"v_add_f32 {vr(CHK)}, 1.0, {vr(CHK)}", f"v_rcp_f32 {vr(CHK)}, {vr(CHK)}", f"v_cvt_pk_bf16_f32 {vr(CHK)}, {vr(CHK)}, {vr(CHK)}",
          f"v_and_b32 {vr(CHK)}, 0xffff0000, {vr(CHK)}", f"v_sub_f32 {vr(TA)}, 1.0, {vr(CHK)}", f"v_cvt_pk_bf16_f32 {vr(TA)}, {vr(TA)}, {vr(TA)}",
          f"v_and_b32 {vr(TA)}, 0xffff0000, {vr(TA)}", f"v_readfirstlane_b32 {sr(sG_)}, {vr(CHK)}", f"v_readfirstlane_b32 {sr(sOMG)}, {vr(TA)}"]
    if NOGATHER: Tb = [f"v_and_b32 {vr(YV)}, 7, {vr(YV)}", f"v_and_b32 {vr(YV+1)}, 7, {vr(YV+1)}"] + Tb
    seq = H + interleave(qblk(1) + tile4(sX, 1, 1, "K"), A) + B0 + interleave(qblk(2), B + Tb)
    cval = f32(192 ** -0.5 * 1.4426950408889634)
    seq += [f"s_mov_b32 {sr(sCP)}, {cval}", f"s_mov_b32 {sr(sCP+1)}, {cval}", f"s_mov_b32 {sr(sRING)}, 0", f"s_mov_b32 {sr(sROW)}, {sr(sSOY)}",
            f"v_add_u32 {vr(t1)}, {sr(sMY)}, {vr(KA)}", f"v_add_u32 {vr(t2)}, {sr(sMY)}, {vr(KA+1)}", f"v_lshlrev_b32 {vr(t3)}, 4, {vr(l)}",
            f"s_mul_i32 {sr(sB_)}, {sr(sW)}, 24576", f"s_mul_i32 {sr(sPRV)}, {sr(sU)}, {4*TILE}", f"s_add_u32 {sr(sPRV)}, {sr(sPRV)}, {4*TILE}"]
    main = rawfin(seq)
    blocks = {}; disp = []; disp2 = {}
    for i in range(8):
        d2 = [f"L_cfg{i}:"]
        for w in range(4):
            pl = plans[i]; Bk = [f"L_cfg{i}_{w}:"]
            for ch, dv, sh in (("X", DX, -1), ("Y", DY, 0)):
                for t, d in sorted(pl.chan[w >> 1][ch].items()):
                    if d[0] in ("MK", "MV") or (ch == "X" and t == 0):
                        Bk += [f"s_mov_b32 {sr(sC)}, {desc_word(d)}", f"v_writelane_b32 {vr(dv)}, {sr(sC)}, {(t+sh) % 64}"]
            skip = 1 if (i, w) == (0, 2) else 0
            for k, e in enumerate(pl.recs[w]):
                Bk += [f"s_mov_b32 {sr(sC)}, {rec_word(e)}", f"v_writelane_b32 {vr(DY)}, {sr(sC)}, {RL0+k+skip}"]
            r0 = 0 if (skip or not pl.recs[w]) else rec_word(pl.recs[w][0])
            Bk += [f"s_mov_b32 {sr(sREC)}, {r0}", f"s_mov_b32 {sr(sEXIT)}, {r0 & 0xff}", f"s_mov_b32 {sr(sXK)}, {pl.inl | skip << 2}", "s_branch L_cfgdone"]
            blocks[(i, w)] = raw(Bk)
            if w < 3: d2 += [f"s_cmp_eq_u32 {sr(sW)}, {w}", f"s_cbranch_scc1 L_cfg{i}_{w}"]
        d2 += [f"s_branch L_cfg{i}_3"]
        disp2[i] = raw(d2)
        if i < 7: disp += [f"s_cmp_eq_u32 {sr(sI)}, {i}", f"s_cbranch_scc1 L_cfg{i}"]
    disp += ["s_branch L_cfg7"]
    pl = plans[0]
    wsel = []
    for reg, fn in ((sV0, lambda w: pl.vl(w, 0)[0] * TILE), (sV1, lambda w: pl.vl(w, 1)[0] * TILE), (sX0, lambda w: pl.xs(w, 0) * TILE),
                    (sPV0, lambda w: pl.xs(3 - w, 0) * TILE), (sPV1, lambda w: pl.xs(3 - w, 1) * TILE), (sWE, lambda w: pl.vl(w, 0)[1][1] * 64)):
        sh = 12 if reg != sWE else 6
        pk = sum((fn(w) >> sh) << (8 * w) for w in range(4))
        wsel += [f"s_lshr_b32 {sr(reg)}, {pk}, {sr(sD)}", f"s_and_b32 {sr(reg)}, {sr(reg)}, 0xff", f"s_lshl_b32 {sr(reg)}, {sr(reg)}, {sh}"]
    def presc(j, at=None, mul="pk"):
        Z = OV + 24 * (j & 1)
        G = [WaitVM(f"Q{j}", 0)]
        for s in range(6):
            G.append(Op(f"ds_read_b128 {vr(Z+4*s,4)}, {vr(t1+(s&1))} offset:{j*6144+(s>>1)*1024}", tag=f"QR{j}",
                        meta=dict(src=lambda c: (4 + 2 * c.w + (j >> 1), ("Q", c.w, j)), needvm=f"Q{j}", cnt=6)))
        St_ = []
        for r in range(0, 24, 2):
            tq = [FF + 2 * q if (r >> 1) & 1 else LS + 2 * q for q in range(2)] if j < 2 else [PB[1] + 2 + 4 * q + 8 * ((r >> 1) & 1) for q in range(2)]
            for q in range(2): G += [f"v_lshlrev_b32 {vr(tq[q])}, 16, {vr(Z+r+q)}", f"v_and_b32 {vr(tq[q]+1)}, 0xffff0000, {vr(Z+r+q)}"]
            for q in range(2): G += [f"v_pk_mul_f32 {vr(tq[q],2)}, {vr(tq[q],2)}, {sr(sCP,2)}"]
            for q in range(2): G += [f"v_cvt_pk_bf16_f32 {vr(Z+r+q)}, {vr(tq[q])}, {vr(tq[q]+1)}"]
            for q in range(2): G += [f"v_accvgpr_write_b32 {ar(QA+24*j+r+q)}, {vr(Z+r+q)}"]
        for s in range(6):
            if s % 3 == 0: St_ += [f"s_add_u32 {sr(sA)}, {sr(sB_)}, {(6*j+s)*1024}"]
            St_ += [Op(f"buffer_store_dwordx4 {Qreg(j,s)}, {vr(t3)}, {sr(sWS,4)}, {sr(sA)} offen offset:{(s%3)*1024}", tag="QS", meta=dict(nofence=1))]
        return raw(G), raw(St_)
    (p0, s0), (p1, s1), (p2, s2), (p3, s3) = [presc(j) for j in range(4)]
    seq = ["L_cfgdone:", f"s_mov_b32 {sr(sEI)}, {RL0}", f"s_lshl_b32 {sr(sD)}, {sr(sW)}, 3"] + wsel
    seq += p0[:7] + interleave(qblk(3), p0[7:])
    seq += p1[:7] + interleave(tile4(sY, 0, 2, "V") + tile4(sX, 2, 0, "K") + tile4(sY, 1, 3, "V"), p1[7:])
    seq += [f"s_mul_i32 {sr(sUA)}, {sr(sU)}, 6144", f"s_add_u32 {sr(sUA+1)}, {sr(sUA)}, 896", f"s_add_u32 {sr(sUA+2)}, {sr(sUA)}, 1792",
            f"s_mov_b32 {sr(sT)}, 63", Bar("ZP1", 0)]
    mid = rawfin(seq)
    p = 1
    k0l = [SB[0] + 4 * k for k in range(8)] + [PB[0] + 4 * k for k in range(4)]
    ops = seq_ops([f"v_add_u32 {vr(YV+k)}, {12*TILE}, {vr(KA+k)}" for k in range(2)], 0)
    for n in range(12):
        kt, s = n // 6, n % 6
        ops.append(Op(f"ds_read_b128 {vr(k0l[n],4)}, {vr(YV+(s&1))} offset:{kt*6144+(s>>1)*1024}", at=0.1 + 0.01 * n,
                      meta=dict(src=lambda c: (12, ("K", 0)), gives=lambda c, kt=kt, s=s: ("K", 0, kt, s))))
    ops += kreads(p, 0.5, 0.9) + decode("X", 1, 1.5)
    def blk(qb, a):
        o = qk(p, [(0, qb), (1, qb)], [a + 0.01 * k for k in range(12)], czero=range(4), frag=lambda n: vr(k0l[n], 4))
        if qb == 3:
            for k, x in enumerate(o): x.at = a + 0.01 * (2 * (k % 6) + k // 6)
        if qb == 0:
            o += [Op(f"v_mov_b32 {vr(NEG)}, 0xff800000", at=a)]
            o += seq_ops([f"v_cndmask_b32 {vr(St(p,1,0)+r)}, {vr(St(p,1,0)+r)}, {vr(NEG)}, {sr(sFM,2)}" for r in range(4)], a + 0.2)
        if qb < 2: o += masks(p, [(qb, qb)], [], [a + 0.3])[1:]
        o += initmax(p, qb, a + 0.4, T0, T0 + 1) + softmax(p, [(0, qb)], [a + 0.5 + 0.01 * k for k in range(4)], (qb,))
        return o
    def atset(L, a):
        for k, o in enumerate(L): o.at = a + 0.0001 * k
        return L
    ops += blk(0, 2) + atset(s0, 2.5) + blk(1, 4) + atset(s1, 4.5) + atset(raw(DM), 5)
    ops += atset(p2, 6) + blk(2, 7) + atset(s2, 7.5) + seq_ops([f"v_mov_b32 {vr(OV+r)}, 0" for r in range(24)], 8.5)
    ops += atset(p3, 10) + blk(3, 11) + seq_ops([f"v_mov_b32 {vr(OV+24+r)}, 0" for r in range(24)], 11.15) + atset(s3, 11.2)
    for o in ops:
        if o.at >= 6: o.after.append(p2[0]) if o is not p2[0] else None
        if o.at >= 10: o.after.append(p3[0]) if o is not p3[0] else None
    p2[0].after += [o for o in ops if o.at < 6]; p3[0].after += [o for o in ops if o.at < 10]
    zp2 = Bar("ZP2", 10.05); ops.append(zp2)
    ops += seq_ops([f"s_sub_u32 {sr(sB_)}, 3, {sr(sW)}", f"s_mul_i32 {sr(sB_)}, {sr(sB_)}, 24576", f"s_mov_b32 {sr(sT)}, 0"], 13)
    q1 = finish(ops, "PRO_Q")
    V4 = T0 + 1
    i0 = [f"s_lshl_b32 {sr(sC)}, {sr(sW)}, 7", f"s_lshl_b32 {sr(sD)}, {sr(sU)}, 6", f"s_sub_u32 {sr(sC)}, {sr(sC)}, {sr(sD)}",
          f"v_add_u32 {vr(T0)}, {sr(sC)}, {vr(LTB)}", f"ds_read_b64 {vr(V4,2)}, {vr(T0)} offset:1024", f"ds_read_b64 {vr(V4+2,2)}, {vr(T0)} offset:1088",
          f"s_mov_b64 {sr(sG,2)}, {sr(bMK,2)}", f"s_mul_i32 {sr(sA)}, {sr(sW)}, {TILE}"] + [f"v_add_u32 {vr(V4+k)}, {vr(PAT)}, {vr(V4+k)}" for k in range(4)]
    i0 += sorted(place_m0(tileload(V4, sA, 4 * TILE, list(range(2, 26, 2)), lambda c: (4 + c.w, ("MK", 8 + c.w)))), key=lambda o: o.at)
    i0 += [f"s_bitcmp1_b32 {sr(sXK)}, 2", "s_cbranch_scc1 L_diag2"]
    j0 = raw([f"s_cmp_lg_u32 {sr(sI)}, 0", "s_cbranch_scc1 L_loop0"])
    return dict(main=main, disp=raw(disp), disp2=disp2, blocks=blocks, mid=mid, q1=q1, j0=j0, i0=rawfin(i0))

def stamp_ops():
    return raw(["s_memtime s[2:3]", "s_memrealtime s[0:1]", f"s_mov_b32 {sr(sM0)}, m0", "s_waitcnt lgkmcnt(0)", f"s_mov_b32 m0, {sr(sST)}",
                f"s_add_u32 {sr(sST)}, {sr(sST)}, 1", f"v_writelane_b32 {vr(STV)}, s2, m0", f"v_writelane_b32 {vr(STV+1)}, s0, m0", f"s_mov_b32 m0, {sr(sM0)}", "s_nop 0"])

def build():
    plans = [make_plan(i) for i in range(8)]
    Pc = {}
    Pc["pro"] = prologue(plans)
    Pc["loop0"] = normal(0, name="LOOP0", tail=[Op(f"s_cmp_eq_u32 {sr(sT)}, {sr(sEXIT)}", at=93), Op("s_cbranch_scc1 L_exit", at=95.2)])
    Pc["loop1"] = normal(1, name="LOOP1", tail=[Op(f"s_cmp_eq_u32 {sr(sT)}, {NS-1}", at=93), Op("s_cbranch_scc0 L_loop0", at=95.2)])
    Pc["exit"] = raw(["L_exit:", f"s_bfe_u32 {sr(sA)}, {sr(sREC)}, 0x40008", f"s_cmp_eq_u32 {sr(sA)}, {EV0}", "s_cbranch_scc1 L_ev0",
                      f"s_cmp_eq_u32 {sr(sA)}, {EV1}", "s_cbranch_scc1 L_ev1", f"s_cmp_eq_u32 {sr(sA)}, {LD}", "s_cbranch_scc1 L_ld"])
    Pc["diag1"] = normal(1, tiles=[t for t in ALLT if t != (1, 0)], diag=[(0, 0), (1, 1)], full=[(1, 0)], name="DIAG1",
                         tail=[Op(f"s_cmp_lt_u32 {sr(sW)}, 2", at=93), Op("s_cbranch_scc1 L_d1x", at=95.2)])
    Pc["diag2"] = diag2(); Pc["wa"] = wa(); Pc["wb"] = wb(); Pc["w6"] = w6()
    Pc["inl"] = [inline_ks(0), inline_ks(1)]
    Pc["ev0"] = evpiece(0); Pc["ev1"] = evpiece(1); Pc["ld"] = ldpiece()
    Pc["diag2f"] = normal(0, tiles=[(0, 2), (0, 3), (1, 3)], diag=[(0, 2), (1, 3)], full=[(0, 0), (0, 1), (1, 0), (1, 1), (1, 2)], name="DIAG2F")
    Pc["maskall"] = normal(1, tiles=[], full=ALLT, name="MASKALL", tail=[Op("s_branch L_last", at=95.2)])
    Pc["last"] = last("n"); Pc["last2"] = last("2"); Pc["lastx"] = last("x")
    Pc["final"] = final()
    Pc["rt"] = [routine(0), routine(1)]
    return plans, Pc

def layout(Pc):
    pro = Pc["pro"]
    lab = lambda x: [Op(x + ":")]
    seq = pro["main"] + pro["disp"] + pro["mid"] + pro["q1"] + (stamp_ops() if STAMP else []) + pro["j0"] + pro["i0"]
    seq += [Op(".p2align 6")] + lab("L_loop0") + Pc["loop0"] + lab("L_loop1") + Pc["loop1"]
    seq += lab("L_last") + Pc["last"] + lab("L_final") + (stamp_ops() if STAMP else []) + Pc["final"]
    if STAMP:
        seq += stamp_ops() + raw(["s_waitcnt vmcnt(0)"]) + stamp_ops()
        seq += raw([f"s_sub_u32 {sr(sA)}, {sr(sWS)}, s100", f"s_sub_u32 {sr(sA)}, {sr(sA)}, 0x1000000",
                    f"s_mul_hi_u32 {sr(sA)}, {sr(sA)}, {(1<<32)//49152+1}", f"s_lshl_b32 {sr(sA)}, {sr(sA)}, 2", f"s_add_u32 {sr(sA)}, {sr(sA)}, {sr(sW)}",
                    f"s_lshl_b32 {sr(sA)}, {sr(sA)}, 9", "v_mbcnt_lo_u32_b32 v0, -1, 0", "v_mbcnt_hi_u32_b32 v0, -1, v0", "v_lshlrev_b32 v0, 3, v0",
                    f"v_add_u32 v0, {sr(sA)}, v0", f"global_store_dwordx2 v0, {vr(STV,2)}, s[100:101]"])
    seq += raw(["L_end:", "s_endpgm"])
    wa_ = []
    for o in Pc["wa"]:
        wa_.append(o)
        if "inl" in o.meta: wa_ += lab(f"L_inlb{o.meta['inl']}")
    seq += Pc["exit"] + Pc["diag1"] + lab("L_diag2") + Pc["diag2"] + wa_
    seq += raw([f"s_cmp_eq_u32 {sr(sT)}, {NS-1}", "s_cbranch_scc1 L_lastx"]) + Pc["wb"]
    seq += raw([f"s_cmp_eq_u32 {sr(sT)}, {NS-1}", "s_cbranch_scc1 L_last2"]) + Pc["w6"]
    seq += lab("L_ev0") + Pc["ev0"] + lab("L_ev1") + Pc["ev1"] + lab("L_ld") + Pc["ld"]
    for h in range(2): seq += lab(f"L_inl{h}") + Pc["inl"][h] + raw([f"s_branch L_inlb{h}"])
    seq += raw(["L_d1x:", f"s_cmp_eq_u32 {sr(sT)}, {NS-1}", "s_cbranch_scc1 L_last"]) + Pc["diag2f"] + Pc["maskall"]
    seq += lab("L_lastx") + Pc["lastx"] + raw(["s_branch L_final"]) + lab("L_last2") + Pc["last2"] + raw(["s_branch L_final"])
    for i in range(8):
        seq += pro["disp2"][i]
        for w in range(4): seq += pro["blocks"][(i, w)]
    seq += lab("L_codeend")
    for k, p in enumerate(sites):
        seq += raw([f"L_stub{k}:", f"s_call_b64 {sr(sRET,2)}, L_rt{p}", f"s_branch L_back{k}"])
    seq += Pc["rt"][0] + Pc["rt"][1]
    if STAMP:
        out = []
        for o in seq:
            if getattr(o, "name", "") in STAMPZ:
                st = stamp_ops(); o.lgn = 0
                out += st[:3] + [o] + raw([f"s_cselect_b32 s99, 1, 0"]) + st[4:] + raw(["s_cmp_lg_u32 s99, 0"])
            elif "stamp" in o.meta: out += [o] + raw([f"s_cselect_b32 s99, 1, 0"]) + stamp_ops() + raw(["s_cmp_lg_u32 s99, 0"])
            else: out.append(o)
        seq = out
    return seq

HEADER = open("standalone__memory_aug_memorizing_tr__prompt.s.ref").read().split("; @launch")[0]
def text(seq):
    L = [HEADER.rstrip("\n"), "; @launch grid=(256,1,1) block=(256,1,1) lds=163840",
         '.amdgcn_target "amdgcn-amd-amdhsa--gfx950"', ".text", f".globl {KN}", ".p2align 8", f".type {KN},@function", f"{KN}:"]
    L += emit(seq)
    L += ['.section .rodata,"a"', ".p2align 6", f".amdhsa_kernel {KN}", "  .amdhsa_next_free_vgpr 512", "  .amdhsa_next_free_sgpr 102",
          "  .amdhsa_accum_offset 256", "  .amdhsa_group_segment_fixed_size 0", "  .amdhsa_kernarg_size 80", "  .amdhsa_user_sgpr_count 2",
          "  .amdhsa_user_sgpr_kernarg_segment_ptr 1", "  .amdhsa_system_sgpr_workgroup_id_x 1", ".end_amdhsa_kernel"]
    return "\n".join(L) + "\n"

STAMPZ = ('Z2', 'Z3', 'Z4', 'ZP1', 'ZP2'); PREF = True; NTQ = ""; NOGATHER = False; VERB = True; STAMP = False; THR = 2.0 ** 24; STV = 224
if __name__ == "__main__":
    import argparse
    ap = argparse.ArgumentParser()
    ap.add_argument("-o", default="k.s"); ap.add_argument("--stamp", action="store_true")
    ap.add_argument("--thr", type=float, default=2.0 ** 24); ap.add_argument("-q", action="store_true")
    ap.add_argument("--nt", default=""); ap.add_argument("--st", default=""); ap.add_argument("--nogather", action="store_true")
    ap.add_argument("--nopref", action="store_true"); ap.add_argument("--ntq", default="nt")
    a = ap.parse_args()
    PREF = not a.nopref; NTQ = a.ntq; NTMOD = a.nt; STMOD = a.st; NOGATHER = a.nogather
    STAMP = a.stamp; THR = a.thr; VERB = not a.q
    plans, Pc = build()
    import trace
    trace.analyse(plans, Pc, sites, VERB)
    open(a.o, "w").write(text(layout(Pc)))
```

```python
import sys, struct, math
from core import *
from plan import make_plan, NS, E, EV0, EV1, LD, DIAG
import core

KN = "standalone__memory_aug_memorizing_tr__prompt_kernel"
OV = 0; SB = [96, 128]; PB = [160, 176]; MN = 192; LR = 208; LS = 212; TMP = 216; NT = 8
KA = 226; VA = 228; PAT = 232; LTB = 233; XV = 234; YV = 236; DX = 238; DY = 239; CHK = 240; TA = 241; VW = 242
NEG = 243; FF = 244; OFF = 248; T0 = 249
QA = 96; FRB = 192
sX, sY, sG, sOUT, sWS = 4, 8, 12, 16, 20
bK, bV, bMK, bMV, bQ = 24, 26, 28, 30, 32
sT, sEXIT, sW, sI, sN, sU = 34, 35, 36, 37, 38, 39
sUA = 40
sSOX, sMX, sSOY, sMY, sWX, sWY, sTX, sTY = 43, 44, 45, 46, 47, 48, 49, 79
sTP = 50
sTHR, sG_, sOMG = 52, 54, 55
sDM = 56
sRM = 64
sFM = 70
sPM = 72
sX0, sPRV = 76, 77
sNEV = 78
sRET = 80
sEI, sREC = 82, 83
sRING, sROW, sA, sB_, sC, sD = 84, 85, 86, 87, 88, 89
sCP = 90
sV0, sV1, sWE, sXK, sM0 = 92, 93, 94, 95, 96
sPV0, sPV1 = 97, 98
sST = 53
TILE = 12288
TB = 159744; WB = TB + 2176; XCH = TB
Z2G, Z1G = 6, 64
NTMOD = ""; STMOD = ""; RL0 = 40

def f32(x): return "0x%08x" % struct.unpack("<I", struct.pack("<f", x))[0]
def vr(a, n=1): return f"v{a}" if n == 1 else f"v[{a}:{a+n-1}]"
def ar(a, n=1): return f"a{a}" if n == 1 else f"a[{a}:{a+n-1}]"
def sr(a, n=1): return f"s{a}" if n == 1 else f"s[{a}:{a+n-1}]"
def FR(n): return FRB + 4 * (n % 16)
def Oreg(qb, dt): return vr(OV + 48 * qb + 4 * dt, 4) if qb < 2 else ar(48 * (qb - 2) + 4 * dt, 4)
def Qreg(qb, s): return ar(QA + 24 * qb + 4 * s, 4)
def St(p, kt, qb): return SB[p] + 16 * kt + 4 * qb
def lin(a, b, n): return [a + (b - a) * k / max(n - 1, 1) for k in range(n)]
def bc(f):
    return (vr(f, 2), (0, 0)) if f % 2 == 0 else (vr(f - 1, 2), (1, 1))
def pkmul(d, a, f):
    r, (lo, hi) = bc(f); return f"v_pk_mul_f32 {vr(d,2)}, {vr(a,2)}, {r} op_sel:[0,{lo}] op_sel_hi:[1,{hi}]"
def pkfma(d, a, f, c):
    r, (lo, hi) = bc(f); return f"v_pk_fma_f32 {vr(d,2)}, {vr(a,2)}, {r}, {vr(c,2)} op_sel:[0,{lo},0] op_sel_hi:[1,{hi},1]"


def cur_ring(c, j): return 4 if (c.w >= 2 and j >= c.n + E) else 0
def ktile(c, j):
    if j > NS - 1: return None
    if c.w >= 2 and c.n <= j < c.n + E: return None
    r = cur_ring(c, j); return (r + (j & 1), ("K", 2 * NS - 1 - j if r else j))
def vtile(c, j):
    r = cur_ring(c, j); return (r + 2 + (j & 1), ("V", 2 * NS - 1 - j if r else j))
def chan(c, ch, t):
    d = c.plan.chan[c.w >> 1][ch].get(t)
    return None if d is None else (d[2], (d[0], d[1]))
def prv(c): return 4 + 4 * (c.w & 1)
def seq_ops(T, at, step=0.001, **kw): return [Op(s, at=at + step * k, **kw) for k, s in enumerate(T)]
MF = "v_mfma_f32_16x16x32_bf16"

def qk(p, tiles, ats, czero=(), frag=None):
    ops = []; k = 0
    for (kt, qb) in tiles:
        d = vr(St(p, kt, qb), 4)
        for s in range(6):
            c = d if s else ("0" if qb in czero else vr(MN + 4 * qb, 4))
            a = frag(6 * kt + s) if frag else ar(FR(24 * p + 6 * kt + s), 4)
            ops.append(Op(f"{MF} {d}, {a}, {Qreg(qb,s)}, {c}", at=ats[k],
                          meta=dict(kt=kt, frag=lambda c, kt=kt, s=s: ("K", c.t + 1, kt, s)))); k += 1
    return ops
def pv(p, qbs, ats, czero=False):
    ops = []; k = 0
    for dt in range(12):
        for qb in qbs:
            o = Oreg(qb, dt)
            ops.append(Op(f"{MF} {o}, {ar(FR(24*p+12+dt),4)}, {vr(PB[1-p]+4*qb,4)}, {'0' if czero else o}", at=ats[k],
                          meta=dict(frag=lambda c, dt=dt: ("V", c.t, dt)))); k += 1
    return ops
def vreads(p, g0, g1):
    ops = []; at = lin(g0, g1, 24)
    for dt in range(12):
        a = FR(24 * p + 12 + dt)
        for eh in range(2):
            ops.append(Op(f"ds_read_b64_tr_b16 {ar(a+2*eh,2)}, {vr(VA+(dt&3))} offset:{p*TILE + eh*6144 + (dt>>2)*1024}",
                          at=at[2*dt+eh], tag=f"V{dt}", meta=dict(src=lambda c: vtile(c, c.t), gives=lambda c, dt=dt: ("V", c.t, dt))))
    return ops
def kreads(p, g0, g1):
    ops = []; at = lin(g0, g1, 12)
    for n in range(12):
        kt, s = n // 6, n % 6
        ops.append(Op(f"ds_read_b128 {ar(FR(24*p+24+n),4)}, {vr(KA+(s&1))} offset:{p*TILE + kt*6144 + (s>>1)*1024}",
                      at=at[n], tag=f"K{kt}", meta=dict(src=lambda c: ktile(c, c.t + 2), gives=lambda c, kt=kt, s=s: ("K", c.t + 2, kt, s))))
    return ops
def softmax(sp, tiles, at, fresh, acc=LS):
    ops = []; k = 0; fresh = set(fresh)
    for (kt, qb) in tiles:
        for r in range(4):
            t = TMP + (k % NT)
            ops.append(Op(f"v_exp_f32 {vr(t)}, {vr(St(sp,kt,qb)+r)}", at=at[k]))
            a = at[k] + 0.9
            if qb in fresh:
                if r == 1: ops.append(Op(f"v_add_f32 {vr(acc+qb)}, {vr(t-1)}, {vr(t)}", at=a)); fresh.discard(qb)
            else: ops.append(Op(f"v_add_f32 {vr(acc+qb)}, {vr(acc+qb)}, {vr(t)}", at=a))
            if r & 1: ops.append(Op(f"v_cvt_pk_bf16_f32 {vr(PB[sp]+4*qb+2*kt+(r>>1))}, {vr(t-1)}, {vr(t)}", at=a + 0.01))
            k += 1
    return ops
def duty(ch, g0, g1):
    vo, srd, so, m0 = (XV, sX, sSOX, sMX) if ch == "X" else (YV, sY, sSOY, sMY)
    ops = [Op(f"v_add_u32 {vr(vo)}, {vr(PAT)}, {vr(vo)}", at=g0, meta=dict(xadd=ch)), Op(f"v_add_u32 {vr(vo+1)}, {vr(PAT)}, {vr(vo+1)}", at=g0 + 0.01, meta=dict(xadd=ch))]
    at = lin(g0 + 2, g1, 6)
    for a in range(3):
        for rg in range(2):
            ops.append(Op(f"buffer_load_dwordx4 {vr(vo+rg)}, {sr(srd,4)}, {sr(so)} offen offset:{rg*3072+a*128} {NTMOD} lds",
                          at=at[2*a+rg], meta=dict(dma=lambda c, ch=ch: chan(c, ch, c.t), m0=f"s_add_u32 m0, {sr(m0)}, {sr(sUA+a)}")))
    return ops
def decode(ch, g0, g1):
    vo, srd, so, m0, w, tb, dv, bs = (XV, sX, sSOX, sMX, sWX, sTX, DX, bK) if ch == "X" else (YV, sY, sSOY, sMY, sWY, sTY, DY, bV)
    T = [f"v_readlane_b32 {sr(w)}, {vr(dv)}, {sr(sT)}",
         f"s_and_b32 {sr(tb)}, {sr(w)}, 0xfff",
         f"s_and_b32 {sr(m0)}, {sr(w)}, 0xff000",
         f"s_lshr_b32 {sr(so)}, {sr(w)}, 8",
         f"s_and_b32 {sr(so)}, {sr(so)}, 0xff000",
         f"s_bitcmp1_b32 {sr(w)}, 28",
         f"s_cselect_b64 {sr(sTP,2)}, {sr(bMV,2)}, {sr(bMK,2)}",
         f"s_bitcmp1_b32 {sr(w)}, 29",
         f"s_cselect_b64 {sr(srd,2)}, {sr(sTP,2)}, {sr(bs,2)}",
         f"v_add_u32 {vr(TA)}, {sr(tb)}, {vr(LTB)}",
         f"ds_read_b64 {vr(vo,2)}, {vr(TA)}"]
    at = lin(g0, g1, len(T))
    at[6] = at[5] + 0.0001; at[8] = at[7] + 0.0001
    return [Op(x, at=a, tag="TB" + ch) for x, a in zip(T, at)]
sites = []
def check(p, g, qbs=(0, 1, 2, 3)):
    k = len(sites); sites.append(p)
    ops = []
    if len(qbs) == 4:
        ops.append(Op(f"v_max3_f32 {vr(CHK)}, {vr(LS)}, {vr(LS+1)}, {vr(LS+2)}", at=g - 3))
        ops.append(Op(f"v_max_f32 {vr(CHK)}, {vr(CHK)}, {vr(LS+3)}", at=g - 2))
    else:
        ops.append(Op(f"v_max_f32 {vr(CHK)}, {vr(LS+qbs[0])}, {vr(LS+qbs[1])}", at=g - 2))
    ops.append(Op(f"v_cmp_lt_f32 vcc, {sr(sTHR)}, {vr(CHK)}", at=g - 1.5))
    ops.append(Op(f"s_cbranch_vccnz L_stub{k}", at=g + 0.1, meta=dict(site=k)))
    for j, qb in enumerate(qbs):
        ops.append(Op(f"v_add_f32 {vr(LR+qb)}, {vr(LR+qb)}, {vr(LS+qb)}", at=g + 0.2 + 0.01 * j))
    return ops
def masks(p, diag, full, at, a0=0.5):
    ops = [Op(f"v_mov_b32 {vr(NEG)}, 0xff800000", at=a0)] if diag else []
    for (kt, qb), a in zip(full, at[len(diag):]):
        for r in range(4): ops.append(Op(f"v_mov_b32 {vr(St(p,kt,qb)+r)}, 0xff800000", at=a + 0.01 * r))
    for (kt, qb), a in zip(diag, at):
        for r in range(4):
            x = vr(St(p, kt, qb) + r)
            ops.append(Op(f"v_cndmask_b32 {x}, {x}, {vr(NEG)}, {sr(sDM+2*r,2)}", at=a + 0.01 * r))
    return ops
def xlane(op, x, t, at):
    return seq_ops([f"v_mov_b32 {vr(t)}, {vr(x)}", f"v_permlane16_swap_b32 {vr(x)}, {vr(t)}", f"{op} {vr(x)}, {vr(x)}, {vr(t)}",
                    f"v_mov_b32 {vr(t)}, {vr(x)}", f"v_permlane32_swap_b32 {vr(x)}, {vr(t)}", f"{op} {vr(x)}, {vr(x)}, {vr(t)}"], at)
def initmax(sp, qb, at, x, t):
    a, b = St(sp, 0, qb), St(sp, 1, qb)
    ops = seq_ops([f"v_max3_f32 {vr(x)}, {vr(a)}, {vr(a+1)}, {vr(a+2)}", f"v_max3_f32 {vr(t)}, {vr(a+3)}, {vr(b)}, {vr(b+1)}",
                   f"v_max3_f32 {vr(x)}, {vr(x)}, {vr(b+2)}, {vr(b+3)}", f"v_max_f32 {vr(x)}, {vr(x)}, {vr(t)}"], at)
    ops += xlane("v_max_f32", x, t, at + 0.01)
    ops += seq_ops([f"v_sub_f32 {vr(r)}, {vr(r)}, {vr(x)}" for r in [a, a+1, a+2, a+3, b, b+1, b+2, b+3]], at + 0.02)
    ops += seq_ops([f"v_sub_f32 {vr(MN+4*qb+r)}, 0, {vr(x)}" for r in range(4)], at + 0.03)
    return ops
def step_inc(at): return [Op(f"s_add_u32 {sr(sT)}, {sr(sT)}, 1", at=at, meta=dict(inc=1))]
def lane(r, at): return seq_ops([f"v_mbcnt_lo_u32_b32 {vr(r)}, -1, 0", f"v_mbcnt_hi_u32_b32 {vr(r)}, -1, {vr(r)}"], at)
def nextrec(at):
    return seq_ops([f"s_add_u32 {sr(sEI)}, {sr(sEI)}, 1", f"v_readlane_b32 {sr(sREC)}, {vr(DY)}, {sr(sEI)}", f"s_and_b32 {sr(sEXIT)}, {sr(sREC)}, 0xff"], at, step=1.5)
ALLT = [(kt, qb) for kt in range(2) for qb in range(4)]
KT0 = [(0, qb) for qb in range(4)]; KT1 = [(1, qb) for qb in range(4)]
XA2 = [0.1, 1.1, 2.6, 3.6, 5.1] + lin(8.5, 39.5, 11)
XA1 = lin(48.1, 56, 4) + lin(57.5, 63, 4) + lin(67, 90, 8)

def shift(ops, k, prio=0):
    for o in ops:
        o.at += 96 * k; o.toff = k
        if prio: o.prio = prio
    return ops
def frame(p, kr=True, vr_=True, ext=0):
    z1 = Z1G + ext
    ops = [Bar("Z2", Z2G + 0.1), Bar("Z1", z1 + 0.1)]
    ops += duty("X", Z2G + 1, 60 + ext) + duty("Y", z1 + 1, 92 + ext)
    ops += decode("Y", 0.3, 52.5) + decode("X", 62 + ext, 89.5 + ext)
    if vr_: ops += vreads(p, 7.2, 55)
    if kr: ops += kreads(p, z1 + 1.2, 91.2 + ext) + [Wait("K0", 92.5 + ext)]
    ops += step_inc(92.6 + ext)
    return ops

def normal(p, tiles=ALLT, diag=(), full=(), name="", tail=None, extra=None):
    ops = frame(p)
    ats = []
    for (kt, qb) in tiles: ats += [24 * kt + 6 * qb + s for s in range(6)]
    ops += qk(p, tiles, ats) + pv(p, range(4), list(range(48, 96)))
    ops += [Wait([f"V{d}" for d in range(5)], 43.5)]
    ops += softmax(1 - p, KT1, XA2, ()) + check(p, 47) + softmax(p, KT0, XA1, range(4))
    if diag or full:
        ops += masks(p, diag, full, [24 * kt + 6 * qb + 9 for kt, qb in diag] + [24 * kt + 6 * qb for kt, qb in full])
    if tail: ops += tail
    if extra: ops += extra
    return finish(ops, name)

def place_m0(ops):
    ds = sorted([o for o in ops if "m0" in o.meta], key=lambda o: o.at)
    cur = None; prev = -1e9; new = []
    for o in ds:
        key = (o.meta["m0"], o.toff)
        if key != cur:
            s = Op(o.meta["m0"], at=max(o.at - 1.5, prev + 0.00001, o.meta.get("m0lo", -1e9)), prio=o.prio); s.toff = o.toff
            if s.at >= o.at: o.at = s.at + 0.00001
            new.append(s); cur = key
        prev = o.at
    return ops + new
def finish(ops, name, order="at"):
    ops = place_m0(ops)
    for z in [o for o in ops if getattr(o, "name", "") == "Z2"]:
        for o in ops:
            if o.toff == z.toff and (o.meta.get("kt") == 1 or o.meta.get("xadd") == "X"): o.after.append(z)
    seq, tot = schedule(ops, verbose=VERB, name=name, order=order)
    seq = auto_waits(seq)
    seq, nn = fix_hazards(seq)
    if VERB and nn: print(f"   {name}: {nn} nops inserted")
    out = []
    for o in seq:
        out.append(o)
        if "site" in o.meta: out.append(Op(f"L_back{o.meta['site']}:"))
    return out
def raw(lines): return [x if isinstance(x, Op) else Op(x) for x in lines]
def rawfin(lines):
    seq = auto_waits(raw(lines)); seq, _ = fix_hazards(seq); return seq

def qkmem(qb, k, addr, imm0, land, k0, out, rat, mat, xat, wad, wimm, src):
    ops = []
    for n in range(12):
        kt, s = n // 6, n % 6
        f = vr(land[(k0 + n) % len(land)], 4)
        ops.append(Op(f"ds_read_b128 {f}, {vr(addr+(s&1))} offset:{imm0+kt*6144+(s>>1)*1024}", at=rat[n], tag=f"E{k}_{n//3}",
                      meta=dict(src=src, gives=lambda c, n=n: ("MK", qb, n))))
        d = vr(out[kt], 4)
        ops.append(Op(f"{MF} {d}, {f}, {Qreg(qb,s)}, {d if s else '0'}", at=mat[n], meta=dict(frag=lambda c, n=n: ("MK", qb, n))))
    T = [f"v_sub_f32 {vr(out[0]+r)}, {vr(out[0]+r)}, {vr(out[1]+r)}" for r in range(4)]
    T += [f"v_cndmask_b32 {vr(out[0])}, {vr(out[0])}, {vr(out[0]+r)}, {sr(sRM+2*(r-1),2)}" for r in range(1, 4)]
    ops += seq_ops(T, xat)
    ops.append(Op(f"ds_write_b32 {vr(wad)}, {vr(out[0])} offset:{wimm}", at=xat + 0.5, meta=dict(wdst=lambda c: src(c)[1][1])))
    return ops
def lreduce(qbs, at, t):
    ops = []
    for j, qb in enumerate(qbs): ops += xlane("v_add_f32", LR + qb, t + j, at + 0.0001 * j)
    return ops
def pbuild(n, dst, woff, at, t, ent, step=0.0):
    ad, hm = t + 4 * n, t + 4 * n + 1
    ops = seq_ops([f"v_add_u32 {vr(ad)}, {sr(woff)}, {vr(VW)}"], at)
    ops += [Op(f"ds_read_b32 {vr(t+4*j)}, {vr(ad)} offset:{64*j}", at=at + 0.01 + 0.001 * j, meta=dict(nofence=1, wsrc=lambda c, j=j: ent(c, j))) for j in range(n)]
    ops += seq_ops([f"v_lshlrev_b32 {vr(hm)}, 2, {vr(VW)}", f"v_and_b32 {vr(hm)}, 16, {vr(hm)}", f"v_mov_b32 {vr(ad)}, 0xffff",
                    f"v_lshlrev_b32 {vr(hm)}, {vr(hm)}, {vr(ad)}"], at + 0.02)
    for j in range(n):
        x = t + 4 * j; d = dst + 4 * j
        T = [f"v_exp_f32 {vr(x+1)}, -|{vr(x)}|", f"v_add_f32 {vr(x+2)}, 1.0, {vr(x+1)}", f"v_rcp_f32 {vr(x+2)}, {vr(x+2)}",
             f"v_mul_f32 {vr(x+2)}, {sr(sG_)}, {vr(x+2)}", f"v_mul_f32 {vr(x+1)}, {vr(x+1)}, {vr(x+2)}",
             f"v_cvt_pk_bf16_f32 {vr(x+2)}, {vr(x+2)}, {vr(x+2)}", f"v_cvt_pk_bf16_f32 {vr(x+1)}, {vr(x+1)}, {vr(x+1)}",
             f"v_and_b32 {vr(x+2)}, {vr(hm)}, {vr(x+2)}", f"v_and_b32 {vr(x+1)}, {vr(hm)}, {vr(x+1)}"]
        ops += seq_ops(T, at + 0.03 + step * j + 0.0001 * j)
        ops += seq_ops([f"v_cmp_le_f32 vcc, 0, {vr(x)}", f"v_cndmask_b32 {vr(x)}, {vr(x+1)}, {vr(x+2)}, vcc", f"v_cndmask_b32 {vr(x+3)}, {vr(x+2)}, {vr(x+1)}, vcc",
                        f"v_cndmask_b32 {vr(d)}, 0, {vr(x)}, {sr(sPM,2)}", f"v_cndmask_b32 {vr(d+1)}, 0, {vr(x)}, {sr(sPM+2,2)}",
                        f"v_cndmask_b32 {vr(d+2)}, 0, {vr(x+3)}, {sr(sPM,2)}", f"v_cndmask_b32 {vr(d+3)}, 0, {vr(x+3)}, {sr(sPM+2,2)}"],
                       at + 0.05 + step * j + 0.001 * j, step=0.00001)
    return ops
def pvmem(acc, preg, addr, imm0, fr0, nfr, at0, at1, src, tag, needvm=None, k0=0, lead=9, nofence=0):
    ops = []; at = lin(at0, at1, 12)
    for dt in range(12):
        a = fr0 + 4 * ((k0 + dt) % nfr)
        for eh in range(2):
            ops.append(Op(f"ds_read_b64_tr_b16 {ar(a+2*eh,2)}, {vr(addr+(dt&3))} offset:{imm0 + eh*6144 + (dt>>2)*1024}",
                          at=at[dt] + 0.01 * eh, tag=tag, meta=dict(src=src, needvm=needvm, nofence=nofence, gives=lambda c, dt=dt: ("MV", tag, dt))))
        o = vr(acc + 4 * dt, 4)
        ops.append(Op(f"{MF} {o}, {ar(a,4)}, {vr(preg,4)}, {o}", at=at[dt] + lead, meta=dict(frag=lambda c, dt=dt: ("MV", tag, dt))))
    return ops
def outaddr(jw, jr, t, at):
    return lane(t, at) + seq_ops([f"v_and_b32 {vr(jw)}, 15, {vr(t)}", f"v_mul_u32_u24 {vr(jw)}, 400, {vr(jw)}", f"v_lshrrev_b32 {vr(jr)}, 4, {vr(t)}",
                                  f"v_lshl_add_u32 {vr(jw)}, {vr(jr)}, 3, {vr(jw)}", f"v_lshrrev_b32 {vr(jr)}, 3, {vr(t)}",
                                  f"v_lshl_add_u32 {vr(jr)}, {vr(jr)}, 4, {vr(OFF)}"], at + 0.01)
def outpath(acc, soff, jw, jr, imm0, at0, at1, slot, tag, after=None):
    ops = []; at = lin(at0, at0 + (at1 - at0) * 0.6, 12)
    for dt in range(12):
        x = acc + 4 * dt
        ops += seq_ops([f"v_cvt_pk_bf16_f32 {vr(x)}, {vr(x)}, {vr(x+1)}", f"v_cvt_pk_bf16_f32 {vr(x+1)}, {vr(x+2)}, {vr(x+3)}"], at[dt])
        ops.append(Op(f"ds_write_b64 {vr(jw)}, {vr(x,2)} offset:{imm0+32*dt}", at=at[dt] + 0.5, after=after,
                      meta=dict(nofence=1, hw=lambda c: (slot(c), ("ST", c.w, tag)))))
    a2 = at[-1] + 0.6; st = lin(a2 + 6, max(at1, a2 + 7), 6)
    for k in range(6):
        a, rg = k >> 1, k & 1
        ops.append(Op(f"ds_read_b128 {vr(acc+8*k,4)}, {vr(jr)} offset:{imm0+128*a+3200*rg}", at=a2 + 0.01 * k, tag=tag,
                      meta=dict(nofence=1, src=lambda c: (slot(c), ("ST", c.w, tag)))))
        ops.append(Op(f"buffer_store_dwordx4 {vr(acc+8*k,4)}, {vr(OFF)}, {sr(sOUT,4)}, {sr(soff)} offen offset:{128*a+3072*rg} {STMOD}", at=st[k], meta=dict(nofence=1)))
    return ops
def tileload(vo, m0reg, imm, at, tile, tag=None, nofence=0, m0lo=-1e9):
    ops = []; k = 0
    for nb in range(2):
        for a in range(3):
            for rg in range(2):
                ops.append(Op(f"buffer_load_dwordx4 {vr(vo+2*nb+rg)}, {sr(sG,4)}, 0 offen offset:{rg*3072+a*128} {NTMOD} lds", at=at[k], tag=tag,
                              meta=dict(dma=tile, nofence=nofence, m0lo=m0lo, m0=f"s_add_u32 m0, {sr(m0reg)}, {imm + nb*6144 + 896*a}"))); k += 1
    return ops
MV = 96
ACC = [OV, OV + 48, MV, MV + 48]

def evpiece(h):
    p = 1; X = 24
    ops = frame(p, ext=X)
    mem = [54 + k + (k // 2) for k in range(12)] + [74 + k + (k // 2) for k in range(12)]
    rest = [g for g in range(48, 120) if g not in mem]
    ops += qk(p, ALLT, list(range(48))) + pv(p, range(4), rest)
    ops += [Wait([f"V{d}" for d in range(5)], 43.5), Wait([f"V{d}" for d in range(5, 12)], 70.5)]
    ops += softmax(0, KT1, XA2, ()) + check(p, 47) + softmax(1, KT0, lin(80, 87, 5) + lin(91, 114, 11), range(4))
    ops += seq_ops([f"s_and_b32 {sr(sA)}, {sr(sREC)}, 0xff000", f"s_sub_u32 {sr(sA)}, {sr(sA)}, {sr(sRING)}",
                    f"s_bfe_u32 {sr(sC)}, {sr(sREC)}, 0x40014", f"s_lshl_b32 {sr(sC)}, {sr(sC)}, 6"], 10.33, step=3)
    ops += nextrec(24.33)
    ops += seq_ops([f"v_add_u32 {vr(T0)}, {sr(sA)}, {vr(KA)}", f"v_add_u32 {vr(T0+1)}, {sr(sA)}, {vr(KA+1)}", f"v_add_u32 {vr(T0+2)}, {sr(sC)}, {vr(VW)}"], 30.5, step=4)
    land = [SB[0] + 4 * k for k in range(8)]
    for k in range(2):
        mat = mem[12 * k:12 * k + 12]
        rat = [max(47.3 + 0.01 * n, m - 10.5) for n, m in enumerate(mat)]
        out = [PB[1], PB[1] + 4] if k == 0 else [FF, T0 + 3]
        ops += qkmem(2 * h + k, k, T0, k * TILE, land, 12 * k, out, rat, mat, mat[-1] + 2.2, T0 + 2, 64 * k, (lambda c, k=k: (c.rec[2] + k, ("MK", c.rec[4] + k))))
        for g in range(4): ops.append(Wait(f"E{k}_{g}", mat[3 * g] - 1.4))
    ops += [Op("s_branch L_loop0", at=119.2)]
    return finish(ops, f"EV{h}")
def ldpiece():
    V4 = T0 + 1
    ex = seq_ops([f"s_and_b32 {sr(sA)}, {sr(sREC)}, 0xff000", f"s_bfe_u32 {sr(sC)}, {sr(sREC)}, 0x40014", f"s_lshl_b32 {sr(sC)}, {sr(sC)}, 7",
                  f"s_lshl_b32 {sr(sD)}, {sr(sU)}, 6", f"s_sub_u32 {sr(sC)}, {sr(sC)}, {sr(sD)}", f"s_mov_b64 {sr(sG,2)}, {sr(bMK,2)}"], 0.33, step=1)
    ex += [Op(f"v_add_u32 {vr(T0)}, {sr(sC)}, {vr(LTB)}", at=6.5), Op(f"ds_read_b64 {vr(V4,2)}, {vr(T0)}", at=7.5, tag="LT"),
           Op(f"ds_read_b64 {vr(V4+2,2)}, {vr(T0)} offset:64", at=8.5, tag="LT"), Wait("LT", 17)]
    ex += seq_ops([f"v_add_u32 {vr(V4+k)}, {vr(PAT)}, {vr(V4+k)}" for k in range(4)], 17.5)
    at = [x + d for x in (22, 33, 50, 57, 72, 84) for d in (0, 2)]
    ex += tileload(V4, sA, 0, at, lambda c: (c.rec[2], ("MK", c.rec[4])))
    ex += nextrec(24.33)
    return normal(1, name="LD", extra=ex, tail=[Op("s_branch L_loop0", at=95.2)])
def inline_ks(h):
    land = [SB[1] + 4 * k for k in range(8)] + [PB[1] + 4 * k for k in range(4)]
    ops = seq_ops([f"s_lshl_b32 {sr(sC)}, {sr(sW)}, 8", f"v_add_u32 {vr(T0)}, {sr(sPRV)}, {vr(KA)}", f"v_add_u32 {vr(T0+1)}, {sr(sPRV)}, {vr(KA+1)}",
                   f"v_add_u32 {vr(T0+2)}, {sr(sC)}, {vr(VW)}"], 0)
    for k in range(2):
        q = 2 * h + k
        mat = [9 + 12 * k + n for n in range(12)]
        rat = [1 + 0.5 * n for n in range(12)] if k == 0 else [9.5 + n for n in range(12)]
        ops += qkmem(q, k, T0, q * TILE, land, 0, [TMP, TMP + 4] if k == 0 else [MN, MN + 4], rat, mat, mat[-1] + 2.2, T0 + 2, 64 * q,
                     (lambda c, q=q: (prv(c) + q, ("MK", 4 * c.w + q))))
    ops.append(Op("s_waitcnt lgkmcnt(0)", at=40, after=[ops[-1]]))
    return [Op("s_nop 7")] + finish(ops, f"INL{h}")

def diag2():
    p = 0
    ops = frame(p, kr=False)
    tiles = [(0, 2), (0, 3), (1, 3)]
    ops += qk(p, tiles, lin(0, 23, 12) + lin(26, 42, 6)) + pv(p, range(4), list(range(48, 96)))
    ops += [Wait([f"V{d}" for d in range(5)], 43.5)]
    ops += softmax(1, KT1, XA2, ()) + check(p, 47)
    ops += masks(p, [(0, 2), (1, 3)], [(1, 2)], [22, 50, 30])
    ops += softmax(0, tiles, lin(48.2, 88, 12), (2, 3))
    ops += [Op(f"v_mov_b32 {vr(PB[0]+8+2+k)}, 0", at=49 + k) for k in range(2)]
    ops += [Op(f"v_mov_b32 {vr(LS+k)}, 0", at=51 + k) for k in range(2)]
    return finish(ops, "DIAG2")

JW, JR = T0 + 4, T0 + 5
VORD = [0, 1, 3, 2]; STG = [1, 2, 3, 2]
def out_s(k, a0, a1, sreg, after=None):
    j = VORD[k]
    return [Op(f"s_add_u32 {sr(sreg)}, {sr(sROW)}, {j*6144}", at=a0)] + \
        outpath(ACC[j], sreg, JW, JR, STG[k] * TILE, a0, a1, (lambda c: prv(c) + STG[k]), f"O{k}", after=after)
NFIN2 = 1
def fin2(a0):
    ops = []
    for m, k in enumerate(range(4 - NFIN2, 4)): ops += out_s(k, a0 + 28 * m, a0 + 28 * m + 26, [sC, sD][m])
    return ops
def wa():
    fr = [shift(frame(1 - (k & 1), kr=False, vr_=False), k, prio=1) for k in range(3)]
    ops = fr[0] + fr[1] + fr[2]
    Z = {(o.name, o.toff): o for o in ops if o.kind == "Z"}
    for z in Z.values(): z.lg = False
    c = check(1, 2, qbs=(2, 3))
    ops += c + lreduce(range(4), 2.5, TMP)
    for j in range(4):
        ops += [Op(f"v_rcp_f32 {vr(FF+j)}, {vr(LR+j)}", at=7 + 0.1 * j), Op(f"v_mul_f32 {vr(FF+j)}, {sr(sOMG)}, {vr(FF+j)}", at=7.5 + 0.1 * j)]
    BV = SB[0]
    ops += seq_ops([f"s_lshl_b32 {sr(sA)}, {sr(sW)}, 9", f"s_lshl_b32 {sr(sC)}, {sr(sU)}, 6", f"s_sub_u32 {sr(sA)}, {sr(sA)}, {sr(sC)}",
                    f"v_add_u32 {vr(T0+3)}, {sr(sA)}, {vr(LTB)}", f"s_mov_b64 {sr(sG,2)}, {sr(bMV,2)}"], 2.3)
    for k, j in enumerate(VORD):
        for nb in range(2): ops.append(Op(f"ds_read_b64 {vr(BV+4*k+2*nb,2)}, {vr(T0+3)} offset:{j*128+nb*64}", at=2.4 + 0.001 * k, meta=dict(nofence=1)))
    for h, a in ((0, 6.5), (1, 64.5)):
        ops += [Op(f"s_bitcmp1_b32 {sr(sXK)}, {h}", at=a - 0.0002, prio=1), Op(f"s_cbranch_scc1 L_inl{h}", at=a - 0.0001, meta=dict(inl=h), prio=1)]
    ops += vreads(1, 7.2, 24) + pv(1, (2, 3), lin(16, 44, 24))
    ops += seq_ops([f"v_add_u32 {vr(BV+r)}, {vr(PAT)}, {vr(BV+r)}" for r in range(16)], 7)
    at = lin(12, 60, 24) + lin(67, 112, 24)
    for k, j in enumerate(VORD):
        ops += tileload(BV + 4 * k, sPRV, k * TILE, at[12*k:12*k+12], (lambda c, k=k, j=j: (prv(c) + k, ("MV", 4 * c.w + j))), tag=f"VS{k}", nofence=1,
                        m0lo=6.6 if k < 2 else 64.6)
    for j in range(2):
        for r in range(0, 48, 2): ops.append(Op(pkmul(OV + 48*j + r, OV + 48*j + r, FF + j), at=46 + r / 6 + 8 * j))
    ops += [Op(f"s_lshl_b32 {sr(sC)}, {sr(sW)}, 8", at=65)]
    ops += pbuild(4, MN, sC, 65.5, SB[1], lambda c, j: 4 * c.w + j, step=5)
    ops += [Op(f"s_sub_u32 {sr(sA)}, {sr(sPRV)}, {2*TILE}", at=66)]
    ops += seq_ops([f"v_add_u32 {vr(T0+k)}, {sr(sA)}, {vr(VA+k)}" for k in range(4)], 66.1)
    ops += seq_ops([f"v_add_u32 {vr(KA+k)}, {4*TILE}, {vr(KA+k)}" for k in range(6)] + [f"s_mov_b32 {sr(sRING)}, {4*TILE}"], 90)
    ops += outaddr(JW, JR, T0 + 6, 91)
    ops += seq_ops([f"v_add_u32 {vr(JW)}, {sr(sPRV)}, {vr(JW)}", f"v_add_u32 {vr(JR)}, {sr(sPRV)}, {vr(JR)}", f"v_lshlrev_b32 {vr(T0+6)}, 4, {vr(T0+6)}"], 91.1)
    for n_, r in enumerate(list(range(48, 96, 2)) + list(range(0, 48, 2))):
        a = 97 + n_ * 1.1
        ops += [Op(f"v_accvgpr_read_b32 {vr(MV+r)}, {ar(r)}", at=a), Op(f"v_accvgpr_read_b32 {vr(MV+r+1)}, {ar(r+1)}", at=a + 0.01),
                Op(pkmul(MV + r, MV + r, FF + 2 + r // 48), at=a + 1.2)]
    at = lin(114, 150, 24)
    for j in range(4):
        for h in range(2):
            k0 = 6 * j + 3 * h
            ops.append(Op(f"s_add_u32 {sr(sA)}, {sr(sB_)}, {((j^2)*6+3*h)*1024}", at=at[k0] - 0.7))
            for s in range(3):
                ops.append(Op(f"buffer_load_dwordx4 {Qreg(j,3*h+s)}, {vr(T0+6)}, {sr(sWS,4)}, {sr(sA)} offen offset:{s*1024}", at=at[k0+s], tag="QL", meta=dict(nofence=1)))
    PM0 = 152; W = []
    for k, j in enumerate(VORD):
        a0 = PM0 + 17 * k
        ops.append(WaitVM(f"VS{k}", at=a0 - 0.5))
        ops += pvmem(ACC[j], MN + 4 * j, T0, k * TILE, 0, 24, a0, a0 + 16, (lambda c, k=k, j=j: (prv(c) + k, ("MV", 4 * c.w + j))), f"PM{k}",
                     needvm=f"VS{k}", k0=12 * k, nofence=1)
        W.append(Wait(f"PM{k}", a0 + 25)); ops.append(W[-1])
    Z[("Z2", 2)].after.append(W[0])
    O0 = PM0 + 70
    for k in range(4 - NFIN2): ops += out_s(k, O0 + 22 * k, O0 + 22 * k + 21, [sC, sD, sA][k], after=[W[STG[k]]])
    return finish(ops, "WA")
def wb():
    fr = [shift(frame(k & 1, kr=True, vr_=False), k, prio=1) for k in range(2)]
    for o in fr[1]:
        if o.tag in ("K0", "K1"): o.tag += "b"
        if o.wait: o.wait = {"K0b"}
    ops = fr[0] + fr[1] + fin2(0)
    p = 1
    tiles = [(0, 0), (0, 1), (1, 1)]
    w = WaitVM("QL", at=-1)
    q = qk(p, tiles, lin(0, 20, 18), czero=(0, 1))
    for o in q: o.after.append(w)
    x = [w] + q + masks(p, [(0, 0), (1, 1)], [(1, 0)], [10, 24, -4], a0=-5)
    x += initmax(p, 0, 14, T0, T0 + 1) + initmax(p, 1, 26, T0 + 2, T0 + 3)
    x += softmax(p, tiles, lin(36, 60, 12), (0, 1), acc=LR)
    x += seq_ops([f"v_mov_b32 {vr(PB[1]+r)}, 0" for r in (2, 3, 8, 9, 10, 11, 12, 13, 14, 15)] + [f"v_mov_b32 {vr(LR+2+k)}, 0" for k in range(2)], -10)
    ops += shift(x, 1)
    return finish(ops, "WB")
def w6():
    p = 0
    ops = frame(p)
    tiles = [(0, 2), (0, 3), (0, 0), (0, 1), (1, 3), (1, 0), (1, 1)]
    ops += qk(p, tiles, list(range(42)), czero=(2, 3)) + pv(p, range(4), list(range(48, 96)), czero=True)
    ops += [Wait([f"V{d}" for d in range(5)], 43.5)]
    ops += masks(p, [(0, 2), (1, 3)], [(1, 2)], [9, 33, 2])
    ops += initmax(p, 2, 11, T0, T0 + 1) + initmax(p, 3, 34, T0 + 2, T0 + 3)
    ops += softmax(p, KT0, XA1, range(4))
    ops += nextrec(20.33) + [Op("s_branch L_loop1", at=95.2)]
    return finish(ops, "W6")

def xch_write(at):
    T = [f"s_lshl_b32 {sr(sA)}, {sr(sW)}, 8", f"s_add_u32 {sr(sC)}, {sr(sA)}, {XCH-WB}", f"s_sub_u32 {sr(sD)}, {XCH+768}, {sr(sA)}",
         f"v_add_u32 {vr(T0+3)}, {sr(sC)}, {vr(VW)}",
         f"v_mbcnt_lo_u32_b32 {vr(T0+6)}, -1, 0", f"v_mbcnt_hi_u32_b32 {vr(T0+6)}, -1, {vr(T0+6)}",
         f"v_and_b32 {vr(T0+2)}, 15, {vr(T0+6)}", f"v_lshlrev_b32 {vr(T0+2)}, 2, {vr(T0+2)}", f"v_add_u32 {vr(T0+2)}, {sr(sD)}, {vr(T0+2)}",
         f"v_lshlrev_b32 {vr(T0+6)}, 4, {vr(T0+6)}",
         f"ds_write_b32 {vr(T0+3)}, {vr(MN+8)}", f"ds_write_b32 {vr(T0+3)}, {vr(MN+12)} offset:64",
         f"ds_write_b32 {vr(T0+3)}, {vr(LR+2)} offset:128", f"ds_write_b32 {vr(T0+3)}, {vr(LR+3)} offset:192"]
    return seq_ops(T, at)
def xch_read(at):
    t = TMP
    ops = seq_ops([f"ds_read_b32 {vr(t+k)}, {vr(T0+2)} offset:{64*k}" for k in range(4)], at)
    for j in range(2):
        m = t + 4 + 2 * j
        ops += seq_ops([f"v_min_f32 {vr(m)}, {vr(MN+4*j)}, {vr(t+j)}",
              f"v_sub_f32 {vr(FF+j)}, {vr(m)}, {vr(MN+4*j)}", f"v_sub_f32 {vr(FF+2+j)}, {vr(m)}, {vr(t+j)}",
              f"v_exp_f32 {vr(FF+j)}, {vr(FF+j)}", f"v_exp_f32 {vr(FF+2+j)}, {vr(FF+2+j)}",
              f"v_mul_f32 {vr(m)}, {vr(FF+j)}, {vr(LR+j)}", f"v_fma_f32 {vr(m)}, {vr(FF+2+j)}, {vr(t+2+j)}, {vr(m)}",
              f"v_rcp_f32 {vr(m)}, {vr(m)}", f"v_mul_f32 {vr(m)}, {sr(sOMG)}, {vr(m)}",
              f"v_mul_f32 {vr(FF+j)}, {vr(FF+j)}, {vr(m)}", f"v_mul_f32 {vr(FF+2+j)}, {vr(FF+2+j)}, {vr(m)}"], at + 0.1 + 0.0001 * j)
    return ops
PM = PB[0]
FA = PB[0] + 8
def send(j, areg, at, after=None):
    return [Op(f"ds_write_b128 {vr(areg)}, {ar(48*j+4*dt,4)} offset:{1024*dt}", at=at[dt], after=after,
               meta=dict(hw=lambda c: (c.plan.xs(c.w, j), ("XO", c.w, j)), slack=0)) for dt in range(12)]
def last(kind):
    p = 0
    g = 26
    ops = [Bar("Z2", 4), Bar("Z1", g + 16)] + duty("X", 4.5, 20)
    if kind != "x": ops += vreads(p, 4.5, 23)
    if kind == "n": ops += softmax(1, KT1, lin(0, g - 5, 16), ()) + check(p, g)
    if kind == "2": ops += seq_ops([f"v_mov_b32 {vr(MN+r)}, {f32(1e30)}" for r in (8, 12)], 1)
    if kind == "x":
        ops += fin2(0)
        ops += seq_ops([f"v_mov_b32 {vr(MN+r)}, {f32(1e30)}" for r in (0, 4, 8, 12)] + [f"v_mov_b32 {vr(LR+r)}, 0" for r in range(4)], 1)
    else:
        ops += lreduce([2, 3, 0, 1], g + 0.5, TMP)
        ops += pv(p, (2, 3), lin(g + 1, g + 24, 24), czero=(kind == "2")) + pv(p, (0, 1), lin(g + 25, g + 60, 24), czero=(kind == "2"))
    ops += xch_write(g + 3)
    ops += pbuild(2, PM, sWE, g + 8, SB[1] + 16, lambda c, j: c.plan.vl(c.w, j)[1][1])
    ops += xch_read(g + 16.5)
    ops += [Op(f"v_add_u32 {vr(T0)}, {sr(sX0)}, {vr(T0+6)}", at=g + 17), Op(f"v_add_u32 {vr(T0+1)}, {sr(sV0)}, {vr(T0+6)}", at=g + 17)]
    ops += send(0, T0, lin(g + 26.5, g + 59, 12))
    for j, s in enumerate((sV0, sV1)):
        ops += seq_ops([f"s_sub_u32 {sr(sA)}, {sr(s)}, {sr(sRING)}", f"s_sub_u32 {sr(sA)}, {sr(sA)}, {2*TILE}"] +
                       [f"v_add_u32 {vr(FA+4*j+k)}, {sr(sA)}, {vr(VA+k)}" for k in range(4)], g + 18 + j)
    ops += seq_ops([f"s_sub_u32 {sr(sB_)}, 15, {sr(sI)}", f"s_mul_i32 {sr(sB_)}, {sr(sB_)}, 49152", f"s_mov_b32 {sr(sC)}, -24576",
                    f"s_cmp_lt_u32 {sr(sW)}, 2", f"s_cselect_b32 {sr(sA)}, 0, {3*24576+12288}", f"s_cselect_b32 {sr(sC)}, 24576, {sr(sC)}",
                    f"s_mul_i32 {sr(sC)}, {sr(sC)}, {sr(sW)}", f"s_add_u32 {sr(sB_)}, {sr(sB_)}, {sr(sA)}", f"s_add_u32 {sr(sB_)}, {sr(sB_)}, {sr(sC)}",
                    f"s_add_u32 {sr(sC)}, {sr(sB_)}, 6144"], g + 30)
    ops += step_inc(g + 40)
    return finish(ops, "LAST" + kind)
def final():
    pm0 = pvmem(OV, PM, FA, 0, QA, 24, 0, 6, (lambda c: c.plan.vl(c.w, 0)), "PM0", lead=14)
    ops = pm0
    for r in range(0, 48, 2): ops.append(Op(pkmul(OV + r, OV + r, FF), at=6.5))
    w = Wait("PM0", 13.5); ops.append(w)
    ops += send(1, T0 + 1, lin(14.5, 50, 12), after=[w])
    for o in ops[-12:]: o.meta["nofence"] = 1
    z3 = Bar("Z3", 13.6); ops.append(z3)
    for r in range(0, 48, 2): ops.append(Op(pkmul(OV + 48 + r, OV + 48 + r, FF + 1), at=12 + 0.01 * r))
    ops += pvmem(OV + 48, PM + 4, FA + 4, 0, QA, 24, 16, 40, (lambda c: c.plan.vl(c.w, 1)), "PM1", k0=12, lead=10)
    ops += outaddr(JW, JR, T0 + 2, 30)
    A2 = TMP
    ops += seq_ops([f"v_add_u32 {vr(A2)}, {sr(sPV0)}, {vr(T0+6)}", f"v_add_u32 {vr(A2+1)}, {sr(sPV1)}, {vr(T0+6)}",
                    f"v_add_u32 {vr(A2+2)}, {sr(sPV0)}, {vr(JW)}", f"v_add_u32 {vr(A2+3)}, {sr(sPV0)}, {vr(JR)}",
                    f"v_add_u32 {vr(A2+4)}, {sr(sPV1)}, {vr(JW)}", f"v_add_u32 {vr(A2+5)}, {sr(sPV1)}, {vr(JR)}"], 31)
    z4 = Bar("Z4", 52); z4.after += [o for o in ops if o.kind == "H"]; ops.append(z4)
    land = [96 + 4 * k for k in range(16)] + [176 + 4 * k for k in range(8)]
    for j in range(2):
        for dt in range(12):
            k = 12 * j + dt; r = land[k]
            ops.append(Op(f"ds_read_b128 {vr(r,4)}, {vr(A2+j)} offset:{1024*dt}", at=53 + 0.25 * k, tag=f"XR{j}",
                          meta=dict(src=lambda c, j=j: (c.plan.xs(3 - c.w, j), ("XO", 3 - c.w, j)))))
            o = OV + 48 * j + 4 * dt
            ops += [Op(pkfma(o, r, FF + 2 + j, o), at=60 + 22 * j + 0.5 * dt), Op(pkfma(o + 2, r + 2, FF + 2 + j, o + 2), at=60 + 22 * j + 0.5 * dt)]
        w = Wait(f"XR{j}", 66 + 22 * j); ops.append(w)
        ops += outpath(OV + 48 * j, [sB_, sC][j], A2 + 2 + 2 * j, A2 + 3 + 2 * j, 0, 66.5 + 22 * j, 90 + 22 * j, (lambda c, j=j: c.plan.xs(3 - c.w, j)), f"F{j}", after=[w])
    return [Op("s_nop 7")] + finish(ops, "FINAL")

def routine(p):
    so, sn = 1 - p, p
    L = [f"L_rt{p}:", "s_nop 7"]
    x, t, al = CHK, NEG, TA
    L += [f"v_mov_b32 {vr(T0+6)}, {vr(TA)}"]
    for qb in range(4):
        a, b = St(so, 0, qb), St(so, 1, qb)
        L += [f"v_cmp_lt_f32 vcc, {sr(sTHR)}, {vr(LS+qb)}", "s_nop 1", f"s_cbranch_vccz L_rs{p}_{qb}"]
        L += [f"v_max3_f32 {vr(x)}, {vr(a)}, {vr(a+1)}, {vr(a+2)}", f"v_max3_f32 {vr(t)}, {vr(a+3)}, {vr(b)}, {vr(b+1)}",
              f"v_max3_f32 {vr(x)}, {vr(x)}, {vr(b+2)}, {vr(b+3)}", f"v_max3_f32 {vr(x)}, {vr(x)}, {vr(t)}, 0"]
        L += xlane("v_max_f32", x, t, 0)
        L += [f"v_exp_f32 {vr(al)}, -{vr(x)}"]
        for base in (a, b, St(sn, 0, qb), St(sn, 1, qb), MN + 4 * qb):
            L += [f"v_sub_f32 {vr(base+r)}, {vr(base+r)}, {vr(x)}" for r in range(4)]
        L += [f"v_mul_f32 {vr(LR+qb)}, {vr(LR+qb)}, {vr(al)}"]
        for r in range(48):
            if qb < 2: L += [f"v_mul_f32 {vr(OV+48*qb+r)}, {vr(OV+48*qb+r)}, {vr(al)}"]
            else:
                q = 48 * (qb - 2) + r
                L += [f"v_accvgpr_read_b32 {vr(t)}, {ar(q)}", f"v_mul_f32 {vr(t)}, {vr(t)}, {vr(al)}", f"v_accvgpr_write_b32 {ar(q)}, {vr(t)}"]
        L += sorted(softmax(so, [(0, qb), (1, qb)], list(range(8)), (qb,)), key=lambda o: o.at)
        L += [f"L_rs{p}_{qb}:"]
    L += [f"v_mov_b32 {vr(TA)}, {vr(T0+6)}", f"v_mov_b32 {vr(NEG)}, 0xff800000", "s_nop 1", f"s_setpc_b64 {sr(sRET,2)}"]
    return rawfin(L)

def lanemask(fn):
    m = 0
    for l in range(64):
        if fn(l & 15, l >> 4): m |= 1 << l
    return m
def smov64(r, m): return [f"s_mov_b32 {sr(r)}, 0x{m & 0xffffffff:08x}", f"s_mov_b32 {sr(r+1)}, 0x{m >> 32:08x}"]
def desc_word(d):
    if d is None: return 16 * 128 | (15 * 3) << 12 | 255 << 20
    kind, src, dest = d
    if kind in ("K", "V"): return 16 * 128 | (dest * 3) << 12 | (src * 3) << 20
    return src * 128 | (dest * 3) << 12 | (1 << 29) | ((1 << 28) if kind == "MV" else 0)
def rec_word(e):
    t, kind, sa, sb, entry = e
    return t | kind << 8 | (sa * 3) << 12 | entry << 20
def interleave(A, B):
    out = []; n = len(A)
    for k, g in enumerate(A):
        out += g; out += B[len(B) * k // n: len(B) * (k + 1) // n]
    return out

def prologue(plans):
    KB = 84
    l, c_, g_ = T0, T0 + 1, T0 + 2
    t1, t2, t3, t4 = T0 + 3, T0 + 4, T0 + 5, T0 + 6
    H = ["s_cmp_ge_u32 s2, 256", "s_cbranch_scc1 L_end",
         f"s_load_dwordx16 s[{KB}:{KB+15}], s[0:1], 0", "s_load_dwordx2 s[100:101], s[0:1], 72"]
    if STAMP: H += ["s_memtime s[60:61]", "s_memrealtime s[62:63]"]
    if DBG: H += ["s_memrealtime s[60:61]", "s_load_dwordx2 s[62:63], s[0:1], 64"]
    if PREF:
        H += ["s_getpc_b64 s[4:5]", "L_pc:", "s_bfe_u32 s6, s2, 0x40003", "s_lshl_b32 s6, s6, 12",
              f"v_lshrrev_b32 {vr(t1)}, 6, v0", f"v_and_b32 {vr(t2)}, 15, v0", f"v_lshlrev_b32 {vr(t2)}, 6, {vr(t2)}",
              f"v_lshl_add_u32 {vr(t1)}, {vr(t1)}, 10, {vr(t2)}", f"v_add_u32 {vr(t1)}, s6, {vr(t1)}",
              f"v_min_u32 {vr(t1)}, L_codeend-L_pc-4, {vr(t1)}",
              f"v_mov_b32 {vr(t4)}, s5", f"v_add_co_u32 {vr(t3)}, vcc, s4, {vr(t1)}", "s_nop 1", f"v_addc_co_u32 {vr(t4)}, vcc, 0, {vr(t4)}, vcc",
              f"global_load_dword a255, {vr(t3,2)}, off"]
    H += [f"v_lshrrev_b32 {vr(t1)}, 6, v0", f"v_and_b32 {vr(l)}, 63, v0", f"v_readfirstlane_b32 {sr(sW)}, {vr(t1)}",
          "s_and_b32 s3, s2, 7", "s_lshl_b32 s3, s3, 2", f"s_bfe_u32 {sr(sI)}, s2, 0x20003", f"s_add_u32 s3, s3, {sr(sI)}",
          f"s_lshr_b32 {sr(sI)}, s2, 5", f"s_and_b32 {sr(sU)}, {sr(sW)}, 1",
          f"v_lshrrev_b32 {vr(t2)}, 3, {vr(l)}", f"v_and_b32 {vr(t3)}, 6, {vr(t2)}", f"v_and_b32 {vr(t4)}, 7, {vr(l)}",
          f"v_xor_b32 {vr(t3)}, {vr(t3)}, {vr(t4)}", f"v_lshlrev_b32 {vr(PAT)}, 4, {vr(t3)}",
          f"v_mul_u32_u24 {vr(OFF)}, 384, {vr(t2)}", f"v_add_u32 {vr(XV)}, {vr(OFF)}, {vr(PAT)}", f"v_add_u32 {vr(XV)}, 3072, {vr(XV)}",
          f"v_lshl_add_u32 {vr(OFF)}, {vr(t4)}, 4, {vr(OFF)}",
          f"s_sub_u32 {sr(sT)}, 15, {sr(sI)}", f"s_cmp_lt_u32 {sr(sW)}, 2", f"s_cselect_b32 {sr(sT)}, {sr(sT)}, {sr(sI)}",
          f"s_lshl_b32 {sr(sT)}, {sr(sT)}, 1", f"s_add_u32 {sr(sT)}, {sr(sT)}, {sr(sU)}",
          f"s_mul_i32 {sr(sEXIT)}, s3, 786432", f"s_mul_i32 {sr(sUA)}, {sr(sW)}, 3072",
          f"s_lshl_b32 {sr(sN)}, s3, 14", f"s_lshl_b32 {sr(sSOX)}, {sr(sT)}, 9", f"s_add_u32 {sr(sN)}, {sr(sN)}, {sr(sSOX)}",
          f"v_lshl_add_u32 {vr(t1)}, {vr(l)}, 3, {sr(sN)}", f"s_lshl_b32 {sr(sN)}, s3, 1", f"v_mov_b32 {vr(t2)}, {sr(sN)}",
          f"s_mul_i32 {sr(sSOY)}, {sr(sT)}, 24576",
          f"s_mul_i32 {sr(sMY)}, {sr(sW)}, {2*TILE}", f"s_add_u32 {sr(sMY)}, {sr(sMY)}, {4*TILE}"]
    for s in (sX, sY, sG): H += [f"s_mov_b32 {sr(s+2)}, {786432+3072}", f"s_mov_b32 {sr(s+3)}, 0x20000"]
    H += ["s_waitcnt lgkmcnt(0)"]
    if STAMP: H += [f"v_mov_b32 {vr(STV)}, 0", f"v_mov_b32 {vr(STV+1)}, 0", f"v_writelane_b32 {vr(STV)}, s60, 0", f"v_writelane_b32 {vr(STV+1)}, s62, 0", f"s_mov_b32 {sr(sST)}, 1"]
    if DBG: H += [f"v_mov_b32 {vr(STV)}, s60", "s_mov_b64 s[0:1], s[62:63]"]
    def base(b, ka): return [f"s_add_u32 {sr(b)}, {sr(ka)}, {sr(sEXIT)}", f"s_addc_u32 {sr(b+1)}, {sr(ka+1)}, 0",
                             f"s_sub_u32 {sr(b)}, {sr(b)}, 3072", f"s_subb_u32 {sr(b+1)}, {sr(b+1)}, 0"]
    def tile4(srd, blk, slot, kind):
        G = []
        for a in range(3):
            G.append([f"s_add_u32 m0, {sr(sUA)}, {slot*TILE+896*a}", f"s_add_u32 {sr(sSOX)}, {sr(sUA)}, {blk*TILE}",
                      Op(f"buffer_load_dwordx4 {vr(XV)}, {sr(srd,4)}, {sr(sSOX)} offen offset:{128*a} {NTMOD} lds", meta=dict(dma=lambda c: (slot, (kind, blk))))])
        return G
    def qblk(j):
        G = []
        for a in range(3):
            for rg in range(2):
                pre = [f"s_add_u32 m0, {sr(sMY)}, {j*6144+896*a}", f"s_add_u32 {sr(sSOX)}, {sr(sSOY)}, {j*6144}"] if rg == 0 else []
                G.append(pre + [Op(f"buffer_load_dwordx4 {vr(XV)}, {sr(sG,4)}, {sr(sSOX)} offen offset:{rg*3072+128*a} {NTQ} lds", tag=f"Q{j}",
                                   meta=dict(dma=lambda c: (4 + 2 * c.w + (j >> 1), ("Q", c.w, j)), cnt=6))])
        return G
    H += base(sG, KB)
    for g in qblk(0): H += g
    H += [f"global_load_dwordx2 {vr(YV,2)}, {vr(t1)}, {sr(KB+10,2)}", f"global_load_ushort {vr(CHK)}, {vr(t2)}, {sr(KB+12,2)}"]
    H += base(bK, KB + 2) + [f"s_mov_b64 {sr(sX,2)}, {sr(bK,2)}"]
    for g in tile4(sX, 0, 12, "K"): H += g
    H += base(bV, KB + 4) + [f"s_mov_b64 {sr(sY,2)}, {sr(bV,2)}"] + base(bMK, KB + 6) + base(bMV, KB + 8)
    H += [f"s_add_u32 {sr(sOUT)}, {sr(KB+14)}, {sr(sEXIT)}", f"s_addc_u32 {sr(sOUT+1)}, {sr(KB+15)}, 0", f"s_mov_b32 {sr(sOUT+2)}, 786432", f"s_mov_b32 {sr(sOUT+3)}, 0x20000",
          f"s_mul_i32 {sr(sN)}, s2, 49152", f"s_add_u32 {sr(sN)}, {sr(sN)}, 0x1000000", f"s_add_u32 {sr(sWS)}, s100, {sr(sN)}", f"s_addc_u32 {sr(sWS+1)}, s101, 0",
          f"s_mov_b32 {sr(sWS+2)}, 49152", f"s_mov_b32 {sr(sWS+3)}, 0x20000"]
    A = [f"v_and_b32 {vr(c_)}, 15, {vr(l)}", f"v_lshrrev_b32 {vr(g_)}, 4, {vr(l)}",
         f"v_lshrrev_b32 {vr(t1)}, 3, {vr(c_)}", f"v_mul_u32_u24 {vr(t1)}, 3072, {vr(t1)}", f"v_and_b32 {vr(t2)}, 7, {vr(c_)}",
         f"v_lshl_add_u32 {vr(t1)}, {vr(t2)}, 7, {vr(t1)}", f"v_and_b32 {vr(t3)}, 6, {vr(c_)}"]
    for j in range(2): A += [f"v_or_b32 {vr(t2)}, {4*j}, {vr(g_)}", f"v_xor_b32 {vr(t2)}, {vr(t2)}, {vr(t3)}", f"v_lshl_add_u32 {vr(KA+j)}, {vr(t2)}, 4, {vr(t1)}"]
    A += [f"v_bfe_u32 {vr(t2)}, {vr(l)}, 2, 3", f"v_lshrrev_b32 {vr(t1)}, 5, {vr(l)}", f"v_mul_u32_u24 {vr(t1)}, 3072, {vr(t1)}",
          f"v_lshl_add_u32 {vr(t1)}, {vr(t2)}, 7, {vr(t1)}", f"v_and_b32 {vr(t3)}, 1, {vr(l)}", f"v_lshl_add_u32 {vr(t1)}, {vr(t3)}, 3, {vr(t1)}",
          f"v_add_u32 {vr(t1)}, {2*TILE}, {vr(t1)}", f"v_and_b32 {vr(t2)}, 6, {vr(t2)}", f"v_bfe_u32 {vr(t3)}, {vr(l)}, 1, 1"]
    for x in range(4): A += [f"v_or_b32 {vr(t4)}, {2*x}, {vr(t3)}", f"v_xor_b32 {vr(t4)}, {vr(t4)}, {vr(t2)}", f"v_lshl_add_u32 {vr(VA+x)}, {vr(t4)}, 4, {vr(t1)}"]
    A += [f"v_lshrrev_b32 {vr(t1)}, 3, {vr(l)}", f"s_lshl_b32 {sr(sN)}, {sr(sU)}, 6", f"s_add_u32 {sr(sN)}, {sr(sN)}, {TB}", f"v_lshl_add_u32 {vr(LTB)}, {vr(t1)}, 3, {sr(sN)}",
          f"v_lshlrev_b32 {vr(t1)}, 2, {vr(c_)}", f"v_add_u32 {vr(t1)}, {WB}, {vr(t1)}", f"v_lshrrev_b32 {vr(t2)}, 2, {vr(c_)}", f"v_mov_b32 {vr(VW)}, 0x40000",
          f"v_cmp_eq_u32 vcc, {vr(t2)}, {vr(g_)}", f"v_cndmask_b32 {vr(VW)}, {vr(VW)}, {vr(t1)}, vcc"]
    for r in range(1, 4): A += smov64(sRM + 2 * (r - 1), lanemask(lambda c, g: (c & 3) == r))
    for pp in range(2): A += smov64(sPM + 2 * pp, lanemask(lambda c, g: g == c >> 2 and ((c & 3) >> 1) == pp))
    A += [f"s_mov_b32 {sr(sTHR)}, {f32(THR)}"]
    A += [f"v_accvgpr_write_b32 {ar(r)}, 0" for r in range(96)]
    DM = []
    for r in range(4): DM += smov64(sDM + 2 * r, lanemask(lambda c, g: 4 * g + r > c))
    B0 = [f"s_lshl_b32 {sr(sN)}, {sr(sI)}, 2", f"s_add_u32 {sr(sNEV)}, {sr(sN)}, {2+E-2}",
          f"s_lshl_b32 {sr(sEI)}, {sr(sU)}, 1", f"s_add_u32 {sr(sN)}, {sr(sN)}, {sr(sEI)}", f"s_add_u32 {sr(sN)}, {sr(sN)}, 2",
          f"s_mov_b32 {sr(sWX)}, {(-3<<20) & 0xffffffff}", f"s_mov_b32 {sr(sTX)}, {desc_word(('K',2*NS-5,4))}", f"s_mov_b32 {sr(sTY)}, {desc_word(('V',2*NS-3,6))}",
          f"s_cmp_lt_u32 {sr(sW)}, 2",
          f"s_cselect_b32 {sr(sWX)}, {3<<20}, {sr(sWX)}", f"s_cselect_b32 {sr(sTX)}, {desc_word(('K',4,0))}, {sr(sTX)}",
          f"s_cselect_b32 {sr(sTY)}, {desc_word(('V',2,2))}, {sr(sTY)}", f"s_cselect_b32 {sr(sWY)}, 0, {sr(sNEV)}"] + DM + [
          f"s_lshl_b32 {sr(sEI)}, {sr(sI)}, 2", f"s_add_u32 {sr(sEI)}, {sr(sEI)}, {sr(sW)}", f"s_cmp_eq_u32 {sr(sEI)}, 2",
          f"s_cselect_b64 {sr(sFM,2)}, -1, 0"] + [f"s_cselect_b64 {sr(sDM+2*r,2)}, {sr(sDM+2*r,2)}, 0" for r in range(4)]
    B = [f"v_mul_lo_u32 {vr(t1)}, {vr(l)}, {sr(sWX)}", f"v_and_b32 {vr(t2)}, 1, {vr(l)}", f"v_mul_u32_u24 {vr(t2)}, {3<<12}, {vr(t2)}",
         f"v_add_u32 {vr(t1)}, {vr(t1)}, {vr(t2)}", f"v_add_u32 {vr(DX)}, {sr(sTX)}, {vr(t1)}", f"v_add_u32 {vr(DY)}, {sr(sTY)}, {vr(t1)}",
         f"v_mov_b32 {vr(t3)}, {desc_word(None)}",
         f"v_cmp_gt_u32 vcc, {sr(sWY)}, {vr(l)}", f"v_cndmask_b32 {vr(DY)}, {vr(DY)}, {vr(t3)}, vcc",
         f"v_cmp_lt_u32 vcc, {NS-3}, {vr(l)}", f"v_cndmask_b32 {vr(DY)}, {vr(DY)}, {vr(t3)}, vcc",
         f"v_add_u32 {vr(t2)}, 2, {vr(l)}", f"v_cmp_gt_u32 vcc, {sr(sWY)}, {vr(t2)}", f"v_cndmask_b32 {vr(DX)}, {vr(DX)}, {vr(t3)}, vcc",
         f"v_cmp_lt_u32 vcc, {NS-5}, {vr(l)}", f"v_cndmask_b32 {vr(DX)}, {vr(DX)}, {vr(t3)}, vcc"]
    B += [f"v_mov_b32 {vr(OV+r)}, 0" for r in range(48, 96)]
    B += [f"v_mov_b32 {vr(LR+r)}, 0" for r in range(4)]
    Tb = [f"v_mul_u32_u24 {vr(YV)}, 384, {vr(YV)}", f"v_mul_u32_u24 {vr(YV+1)}, 384, {vr(YV+1)}",
          f"v_bfe_u32 {vr(t1)}, {vr(l)}, 3, 1", f"v_xor_b32 {vr(t2)}, 1, {vr(t1)}", f"v_mul_u32_u24 {vr(t2)}, 3072, {vr(t2)}",
          f"v_add_u32 {vr(YV)}, {vr(YV)}, {vr(t2)}", f"v_add_u32 {vr(YV+1)}, {vr(YV+1)}, {vr(t2)}",
          f"v_and_b32 {vr(t2)}, 7, {vr(l)}", f"v_lshlrev_b32 {vr(t2)}, 3, {vr(t2)}", f"v_lshl_add_u32 {vr(t2)}, {vr(t1)}, 2, {vr(t2)}",
          f"v_lshl_add_u32 {vr(t2)}, {vr(g_)}, 7, {vr(t2)}", f"s_lshl_b32 {sr(sWX)}, {sr(sW)}, 9", f"s_add_u32 {sr(sWX)}, {sr(sWX)}, {TB}",
          f"v_add_u32 {vr(t2)}, {sr(sWX)}, {vr(t2)}", f"ds_write_b32 {vr(t2)}, {vr(YV)}", f"ds_write_b32 {vr(t2)}, {vr(YV+1)} offset:64",
          f"v_bfe_u32 {vr(t1)}, {vr(l)}, 4, 1", f"v_bfe_u32 {vr(t3)}, {vr(l)}, 1, 3", f"v_lshl_add_u32 {vr(t1)}, {vr(t1)}, 4, {vr(t3)}",
          f"v_mul_u32_u24 {vr(t1)}, 384, {vr(t1)}", f"v_add_u32 {vr(t1)}, 3072, {vr(t1)}",
          f"v_and_b32 {vr(t3)}, 31, {vr(l)}", f"v_lshlrev_b32 {vr(t3)}, 2, {vr(t3)}", f"v_add_u32 {vr(t3)}, {TB+2048}, {vr(t3)}", f"ds_write_b32 {vr(t3)}, {vr(t1)}",
          f"v_lshlrev_b32 {vr(CHK)}, 16, {vr(CHK)}", f"v_mul_f32 {vr(CHK)}, {f32(-1.4426950408889634)}, {vr(CHK)}", f"v_exp_f32 {vr(CHK)}, {vr(CHK)}",
          f"v_add_f32 {vr(CHK)}, 1.0, {vr(CHK)}", f"v_rcp_f32 {vr(CHK)}, {vr(CHK)}", f"v_cvt_pk_bf16_f32 {vr(CHK)}, {vr(CHK)}, {vr(CHK)}",
          f"v_and_b32 {vr(CHK)}, 0xffff0000, {vr(CHK)}", f"v_sub_f32 {vr(TA)}, 1.0, {vr(CHK)}", f"v_cvt_pk_bf16_f32 {vr(TA)}, {vr(TA)}, {vr(TA)}",
          f"v_and_b32 {vr(TA)}, 0xffff0000, {vr(TA)}", f"v_readfirstlane_b32 {sr(sG_)}, {vr(CHK)}", f"v_readfirstlane_b32 {sr(sOMG)}, {vr(TA)}"]
    if NOGATHER: Tb = [f"v_and_b32 {vr(YV)}, 7, {vr(YV)}", f"v_and_b32 {vr(YV+1)}, 7, {vr(YV+1)}"] + Tb
    seq = H + interleave(qblk(1) + tile4(sX, 1, 1, "K"), A) + B0 + interleave(qblk(2), B + Tb)
    cval = f32(192 ** -0.5 * 1.4426950408889634)
    seq += [f"s_mov_b32 {sr(sCP)}, {cval}", f"s_mov_b32 {sr(sCP+1)}, {cval}", f"s_mov_b32 {sr(sRING)}, 0", f"s_mov_b32 {sr(sROW)}, {sr(sSOY)}",
            f"v_add_u32 {vr(t1)}, {sr(sMY)}, {vr(KA)}", f"v_add_u32 {vr(t2)}, {sr(sMY)}, {vr(KA+1)}", f"v_lshlrev_b32 {vr(t3)}, 4, {vr(l)}",
            f"s_mul_i32 {sr(sB_)}, {sr(sW)}, 24576", f"s_mul_i32 {sr(sPRV)}, {sr(sU)}, {4*TILE}", f"s_add_u32 {sr(sPRV)}, {sr(sPRV)}, {4*TILE}"]
    main = rawfin(seq)
    blocks = {}; disp = []; disp2 = {}
    for i in range(8):
        d2 = [f"L_cfg{i}:"]
        for w in range(4):
            pl = plans[i]; Bk = [f"L_cfg{i}_{w}:"]
            for ch, dv, sh in (("X", DX, -1), ("Y", DY, 0)):
                for t, d in sorted(pl.chan[w >> 1][ch].items()):
                    if d[0] in ("MK", "MV") or (ch == "X" and t == 0):
                        Bk += [f"s_mov_b32 {sr(sC)}, {desc_word(d)}", f"v_writelane_b32 {vr(dv)}, {sr(sC)}, {(t+sh) % 64}"]
            skip = 1 if (i, w) == (0, 2) else 0
            for k, e in enumerate(pl.recs[w]):
                Bk += [f"s_mov_b32 {sr(sC)}, {rec_word(e)}", f"v_writelane_b32 {vr(DY)}, {sr(sC)}, {RL0+k+skip}"]
            r0 = 0 if (skip or not pl.recs[w]) else rec_word(pl.recs[w][0])
            Bk += [f"s_mov_b32 {sr(sREC)}, {r0}", f"s_mov_b32 {sr(sEXIT)}, {r0 & 0xff}", f"s_mov_b32 {sr(sXK)}, {pl.inl | skip << 2}", "s_branch L_cfgdone"]
            blocks[(i, w)] = raw(Bk)
            if w < 3: d2 += [f"s_cmp_eq_u32 {sr(sW)}, {w}", f"s_cbranch_scc1 L_cfg{i}_{w}"]
        d2 += [f"s_branch L_cfg{i}_3"]
        disp2[i] = raw(d2)
        if i < 7: disp += [f"s_cmp_eq_u32 {sr(sI)}, {i}", f"s_cbranch_scc1 L_cfg{i}"]
    disp += ["s_branch L_cfg7"]
    pl = plans[0]
    wsel = []
    for reg, fn in ((sV0, lambda w: pl.vl(w, 0)[0] * TILE), (sV1, lambda w: pl.vl(w, 1)[0] * TILE), (sX0, lambda w: pl.xs(w, 0) * TILE),
                    (sPV0, lambda w: pl.xs(3 - w, 0) * TILE), (sPV1, lambda w: pl.xs(3 - w, 1) * TILE), (sWE, lambda w: pl.vl(w, 0)[1][1] * 64)):
        sh = 12 if reg != sWE else 6
        pk = sum((fn(w) >> sh) << (8 * w) for w in range(4))
        wsel += [f"s_lshr_b32 {sr(reg)}, {pk}, {sr(sD)}", f"s_and_b32 {sr(reg)}, {sr(reg)}, 0xff", f"s_lshl_b32 {sr(reg)}, {sr(reg)}, {sh}"]
    def presc(j, at=None, mul="pk"):
        Z = OV + 24 * (j & 1)
        G = [WaitVM(f"Q{j}", 0)]
        for s in range(6):
            G.append(Op(f"ds_read_b128 {vr(Z+4*s,4)}, {vr(t1+(s&1))} offset:{j*6144+(s>>1)*1024}", tag=f"QR{j}",
                        meta=dict(src=lambda c: (4 + 2 * c.w + (j >> 1), ("Q", c.w, j)), needvm=f"Q{j}", cnt=6)))
        St_ = []
        for r in range(0, 24, 2):
            tq = [FF + 2 * q if (r >> 1) & 1 else LS + 2 * q for q in range(2)] if j < 2 else [PB[1] + 2 + 4 * q + 8 * ((r >> 1) & 1) for q in range(2)]
            for q in range(2): G += [f"v_lshlrev_b32 {vr(tq[q])}, 16, {vr(Z+r+q)}", f"v_and_b32 {vr(tq[q]+1)}, 0xffff0000, {vr(Z+r+q)}"]
            for q in range(2): G += [f"v_pk_mul_f32 {vr(tq[q],2)}, {vr(tq[q],2)}, {sr(sCP,2)}"]
            for q in range(2): G += [f"v_cvt_pk_bf16_f32 {vr(Z+r+q)}, {vr(tq[q])}, {vr(tq[q]+1)}"]
            for q in range(2): G += [f"v_accvgpr_write_b32 {ar(QA+24*j+r+q)}, {vr(Z+r+q)}"]
        for s in range(6):
            if s % 3 == 0: St_ += [f"s_add_u32 {sr(sA)}, {sr(sB_)}, {(6*j+s)*1024}"]
            St_ += [Op(f"buffer_store_dwordx4 {Qreg(j,s)}, {vr(t3)}, {sr(sWS,4)}, {sr(sA)} offen offset:{(s%3)*1024}", tag="QS", meta=dict(nofence=1))]
        return raw(G), raw(St_)
    (p0, s0), (p1, s1), (p2, s2), (p3, s3) = [presc(j) for j in range(4)]
    seq = ["L_cfgdone:", f"s_mov_b32 {sr(sEI)}, {RL0}", f"s_lshl_b32 {sr(sD)}, {sr(sW)}, 3"] + wsel
    seq += p0[:7] + interleave(qblk(3), p0[7:])
    seq += p1[:7] + interleave(tile4(sY, 0, 2, "V") + tile4(sX, 2, 0, "K") + tile4(sY, 1, 3, "V"), p1[7:])
    seq += [f"s_mul_i32 {sr(sUA)}, {sr(sU)}, 6144", f"s_add_u32 {sr(sUA+1)}, {sr(sUA)}, 896", f"s_add_u32 {sr(sUA+2)}, {sr(sUA)}, 1792",
            f"s_mov_b32 {sr(sT)}, 63", Bar("ZP1", 0)]
    mid = rawfin(seq)
    p = 1
    k0l = [SB[0] + 4 * k for k in range(8)] + [PB[0] + 4 * k for k in range(4)]
    ops = seq_ops([f"v_add_u32 {vr(YV+k)}, {12*TILE}, {vr(KA+k)}" for k in range(2)], 0)
    for n in range(12):
        kt, s = n // 6, n % 6
        ops.append(Op(f"ds_read_b128 {vr(k0l[n],4)}, {vr(YV+(s&1))} offset:{kt*6144+(s>>1)*1024}", at=0.1 + 0.01 * n,
                      meta=dict(src=lambda c: (12, ("K", 0)), gives=lambda c, kt=kt, s=s: ("K", 0, kt, s))))
    ops += kreads(p, 0.5, 0.9) + decode("X", 1, 1.5)
    def blk(qb, a):
        o = qk(p, [(0, qb), (1, qb)], [a + 0.01 * k for k in range(12)], czero=range(4), frag=lambda n: vr(k0l[n], 4))
        if qb == 3:
            for k, x in enumerate(o): x.at = a + 0.01 * (2 * (k % 6) + k // 6)
        if qb == 0:
            o += [Op(f"v_mov_b32 {vr(NEG)}, 0xff800000", at=a)]
            o += seq_ops([f"v_cndmask_b32 {vr(St(p,1,0)+r)}, {vr(St(p,1,0)+r)}, {vr(NEG)}, {sr(sFM,2)}" for r in range(4)], a + 0.2)
        if qb < 2: o += masks(p, [(qb, qb)], [], [a + 0.3])[1:]
        o += initmax(p, qb, a + 0.4, T0, T0 + 1) + softmax(p, [(0, qb)], [a + 0.5 + 0.01 * k for k in range(4)], (qb,))
        return o
    def atset(L, a):
        for k, o in enumerate(L): o.at = a + 0.0001 * k
        return L
    ops += blk(0, 2) + atset(s0, 2.5) + blk(1, 4) + atset(s1, 4.5) + atset(raw(DM), 5)
    ops += atset(p2, 6) + blk(2, 7) + atset(s2, 7.5) + seq_ops([f"v_mov_b32 {vr(OV+r)}, 0" for r in range(24)], 8.5)
    ops += atset(p3, 10) + blk(3, 11) + seq_ops([f"v_mov_b32 {vr(OV+24+r)}, 0" for r in range(24)], 11.15) + atset(s3, 11.2)
    for o in ops:
        if o.at >= 6: o.after.append(p2[0]) if o is not p2[0] else None
        if o.at >= 10: o.after.append(p3[0]) if o is not p3[0] else None
    p2[0].after += [o for o in ops if o.at < 6]; p3[0].after += [o for o in ops if o.at < 10]
    zp2 = Bar("ZP2", 10.05); ops.append(zp2)
    ops += seq_ops([f"s_sub_u32 {sr(sB_)}, 3, {sr(sW)}", f"s_mul_i32 {sr(sB_)}, {sr(sB_)}, 24576", f"s_mov_b32 {sr(sT)}, 0"], 13)
    q1 = finish(ops, "PRO_Q")
    V4 = T0 + 1
    i0 = [f"s_lshl_b32 {sr(sC)}, {sr(sW)}, 7", f"s_lshl_b32 {sr(sD)}, {sr(sU)}, 6", f"s_sub_u32 {sr(sC)}, {sr(sC)}, {sr(sD)}",
          f"v_add_u32 {vr(T0)}, {sr(sC)}, {vr(LTB)}", f"ds_read_b64 {vr(V4,2)}, {vr(T0)} offset:1024", f"ds_read_b64 {vr(V4+2,2)}, {vr(T0)} offset:1088",
          f"s_mov_b64 {sr(sG,2)}, {sr(bMK,2)}", f"s_mul_i32 {sr(sA)}, {sr(sW)}, {TILE}"] + [f"v_add_u32 {vr(V4+k)}, {vr(PAT)}, {vr(V4+k)}" for k in range(4)]
    i0 += sorted(place_m0(tileload(V4, sA, 4 * TILE, list(range(2, 26, 2)), lambda c: (4 + c.w, ("MK", 8 + c.w)))), key=lambda o: o.at)
    i0 += [f"s_bitcmp1_b32 {sr(sXK)}, 2", "s_cbranch_scc1 L_diag2"]
    j0 = raw([f"s_cmp_lg_u32 {sr(sI)}, 0", "s_cbranch_scc1 L_loop0"])
    return dict(main=main, disp=raw(disp), disp2=disp2, blocks=blocks, mid=mid, q1=q1, j0=j0, i0=rawfin(i0))

def stamp_ops():
    return raw(["s_memtime s[2:3]", "s_memrealtime s[0:1]", f"s_mov_b32 {sr(sM0)}, m0", "s_waitcnt lgkmcnt(0)", f"s_mov_b32 m0, {sr(sST)}",
                f"s_add_u32 {sr(sST)}, {sr(sST)}, 1", f"v_writelane_b32 {vr(STV)}, s2, m0", f"v_writelane_b32 {vr(STV+1)}, s0, m0", f"s_mov_b32 m0, {sr(sM0)}", "s_nop 0"])

def build():
    plans = [make_plan(i) for i in range(8)]
    Pc = {}
    Pc["pro"] = prologue(plans)
    Pc["loop0"] = normal(0, name="LOOP0", tail=[Op(f"s_cmp_eq_u32 {sr(sT)}, {sr(sEXIT)}", at=93), Op("s_cbranch_scc1 L_exit", at=95.2)])
    Pc["loop1"] = normal(1, name="LOOP1", tail=[Op(f"s_cmp_eq_u32 {sr(sT)}, {NS-1}", at=93), Op("s_cbranch_scc0 L_loop0", at=95.2)])
    Pc["exit"] = raw(["L_exit:", f"s_bfe_u32 {sr(sA)}, {sr(sREC)}, 0x40008", f"s_cmp_eq_u32 {sr(sA)}, {EV0}", "s_cbranch_scc1 L_ev0",
                      f"s_cmp_eq_u32 {sr(sA)}, {EV1}", "s_cbranch_scc1 L_ev1", f"s_cmp_eq_u32 {sr(sA)}, {LD}", "s_cbranch_scc1 L_ld"])
    Pc["diag1"] = normal(1, tiles=[t for t in ALLT if t != (1, 0)], diag=[(0, 0), (1, 1)], full=[(1, 0)], name="DIAG1",
                         tail=[Op(f"s_cmp_lt_u32 {sr(sW)}, 2", at=93), Op("s_cbranch_scc1 L_d1x", at=95.2)])
    Pc["diag2"] = diag2(); Pc["wa"] = wa(); Pc["wb"] = wb(); Pc["w6"] = w6()
    Pc["inl"] = [inline_ks(0), inline_ks(1)]
    Pc["ev0"] = evpiece(0); Pc["ev1"] = evpiece(1); Pc["ld"] = ldpiece()
    Pc["diag2f"] = normal(0, tiles=[(0, 2), (0, 3), (1, 3)], diag=[(0, 2), (1, 3)], full=[(0, 0), (0, 1), (1, 0), (1, 1), (1, 2)], name="DIAG2F")
    Pc["maskall"] = normal(1, tiles=[], full=ALLT, name="MASKALL", tail=[Op("s_branch L_last", at=95.2)])
    Pc["last"] = last("n"); Pc["last2"] = last("2"); Pc["lastx"] = last("x")
    Pc["final"] = final()
    Pc["rt"] = [routine(0), routine(1)]
    return plans, Pc

def layout(Pc):
    pro = Pc["pro"]
    lab = lambda x: [Op(x + ":")]
    seq = pro["main"] + pro["disp"] + pro["mid"] + pro["q1"] + (stamp_ops() if STAMP else []) + pro["j0"] + pro["i0"]
    if DBG:
        k = len(pro["main"] + pro["disp"] + pro["mid"] + pro["q1"])
        seq[k:k] = raw(["s_memrealtime s[2:3]", "s_waitcnt lgkmcnt(0)", f"v_mov_b32 {vr(STV+1)}, s2"])
    seq += [Op(".p2align 6")] + lab("L_loop0") + Pc["loop0"] + lab("L_loop1") + Pc["loop1"]
    seq += lab("L_last") + Pc["last"] + lab("L_final") + (stamp_ops() if STAMP else []) + Pc["final"]
    if STAMP:
        seq += stamp_ops() + raw(["s_waitcnt vmcnt(0)"]) + stamp_ops()
        seq += raw([f"s_sub_u32 {sr(sA)}, {sr(sWS)}, s100", f"s_sub_u32 {sr(sA)}, {sr(sA)}, 0x1000000",
                    f"s_mul_hi_u32 {sr(sA)}, {sr(sA)}, {(1<<32)//49152+1}", f"s_lshl_b32 {sr(sA)}, {sr(sA)}, 2", f"s_add_u32 {sr(sA)}, {sr(sA)}, {sr(sW)}",
                    f"s_lshl_b32 {sr(sA)}, {sr(sA)}, 9", "v_mbcnt_lo_u32_b32 v0, -1, 0", "v_mbcnt_hi_u32_b32 v0, -1, v0", "v_lshlrev_b32 v0, 3, v0",
                    f"v_add_u32 v0, {sr(sA)}, v0", f"global_store_dwordx2 v0, {vr(STV,2)}, s[100:101]"])
    if DBG:
        seq += raw(["s_waitcnt vmcnt(0)", "s_memrealtime s[2:3]", "s_waitcnt lgkmcnt(0)", "v_mov_b32 v0, 0", f"v_not_b32 v1, {vr(STV)}", "v_mov_b32 v2, s2",
                    f"v_sub_u32 v3, v2, {vr(STV)}", f"v_sub_u32 v4, {vr(STV+1)}, {vr(STV)}", "v_not_b32 v5, v3", "v_not_b32 v6, v4", "s_mov_b64 exec, 1",
                    ".long 0", ".long 1", "s_waitcnt vmcnt(0)"])
    seq += raw(["L_end:", "s_endpgm"])
    wa_ = []
    for o in Pc["wa"]:
        wa_.append(o)
        if "inl" in o.meta: wa_ += lab(f"L_inlb{o.meta['inl']}")
    seq += Pc["exit"] + Pc["diag1"] + lab("L_diag2") + Pc["diag2"] + wa_
    seq += raw([f"s_cmp_eq_u32 {sr(sT)}, {NS-1}", "s_cbranch_scc1 L_lastx"]) + Pc["wb"]
    seq += raw([f"s_cmp_eq_u32 {sr(sT)}, {NS-1}", "s_cbranch_scc1 L_last2"]) + Pc["w6"]
    seq += lab("L_ev0") + Pc["ev0"] + lab("L_ev1") + Pc["ev1"] + lab("L_ld") + Pc["ld"]
    for h in range(2): seq += lab(f"L_inl{h}") + Pc["inl"][h] + raw([f"s_branch L_inlb{h}"])
    seq += raw(["L_d1x:", f"s_cmp_eq_u32 {sr(sT)}, {NS-1}", "s_cbranch_scc1 L_last"]) + Pc["diag2f"] + Pc["maskall"]
    seq += lab("L_lastx") + Pc["lastx"] + raw(["s_branch L_final"]) + lab("L_last2") + Pc["last2"] + raw(["s_branch L_final"])
    for i in range(8):
        seq += pro["disp2"][i]
        for w in range(4): seq += pro["blocks"][(i, w)]
    seq += lab("L_codeend")
    for k, p in enumerate(sites):
        seq += raw([f"L_stub{k}:", f"s_call_b64 {sr(sRET,2)}, L_rt{p}", f"s_branch L_back{k}"])
    seq += Pc["rt"][0] + Pc["rt"][1]
    if STAMP:
        out = []
        for o in seq:
            if getattr(o, "name", "") in STAMPZ:
                st = stamp_ops(); o.lgn = 0
                out += st[:3] + [o] + raw([f"s_cselect_b32 s99, 1, 0"]) + st[4:] + raw(["s_cmp_lg_u32 s99, 0"])
            elif "stamp" in o.meta: out += [o] + raw([f"s_cselect_b32 s99, 1, 0"]) + stamp_ops() + raw(["s_cmp_lg_u32 s99, 0"])
            else: out.append(o)
        seq = out
    return seq

HEADER = open("standalone__memory_aug_memorizing_tr__prompt.s.ref").read().split("; @launch")[0]
def text(seq):
    L = [HEADER.rstrip("\n"), "; @launch grid=(256,1,1) block=(256,1,1) lds=163840",
         '.amdgcn_target "amdgcn-amd-amdhsa--gfx950"', ".text", f".globl {KN}", ".p2align 8", f".type {KN},@function", f"{KN}:"]
    L += emit(seq)
    L += ['.section .rodata,"a"', ".p2align 6", f".amdhsa_kernel {KN}", "  .amdhsa_next_free_vgpr 512", "  .amdhsa_next_free_sgpr 102",
          "  .amdhsa_accum_offset 256", "  .amdhsa_group_segment_fixed_size 0", "  .amdhsa_kernarg_size 80", "  .amdhsa_user_sgpr_count 2",
          "  .amdhsa_user_sgpr_kernarg_segment_ptr 1", "  .amdhsa_system_sgpr_workgroup_id_x 1", ".end_amdhsa_kernel"]
    t = "\n".join(L) + "\n"
    if DBG:
        at = "\n".join(f"global_atomic_umax v0, {r}, s[0:1] offset:{4*k}" for k, r in enumerate(["v1", "v2", "v3", "v4", vr(STV), "v5", "v6"]))
        t = t.replace(".long 0\n.long 1", at)
    return t

DBG = False
STAMPZ = ('Z2', 'Z3', 'Z4', 'ZP1', 'ZP2'); PREF = True; NTQ = ""; NOGATHER = False; VERB = True; STAMP = False; THR = 2.0 ** 24; STV = 224
if __name__ == "__main__":
    import argparse
    ap = argparse.ArgumentParser()
    ap.add_argument("-o", default="k.s"); ap.add_argument("--stamp", action="store_true")
    ap.add_argument("--thr", type=float, default=2.0 ** 24); ap.add_argument("-q", action="store_true")
    ap.add_argument("--nt", default=""); ap.add_argument("--st", default=""); ap.add_argument("--nogather", action="store_true")
    ap.add_argument("--nopref", action="store_true"); ap.add_argument("--ntq", default="nt")
    ap.add_argument("--dbg", action="store_true")
    a = ap.parse_args()
    DBG = a.dbg
    PREF = not a.nopref; NTQ = a.ntq; NTMOD = a.nt; STMOD = a.st; NOGATHER = a.nogather
    STAMP = a.stamp; THR = a.thr; VERB = not a.q
    plans, Pc = build()
    import trace
    trace.analyse(plans, Pc, sites, VERB)
    open(a.o, "w").write(text(layout(Pc)))
```

```python
import sys, struct, math
from core import *
from plan import make_plan, NS, E, EV0, EV1, LD, DIAG
import core

KN = "standalone__memory_aug_memorizing_tr__prompt_kernel"
OV = 0; SB = [96, 128]; PB = [160, 176]; MN = 192; LR = 208; LS = 212; TMP = 216; NT = 8
KA = 226; VA = 228; PAT = 232; LTB = 233; XV = 234; YV = 236; DX = 238; DY = 239; CHK = 240; TA = 241; VW = 242
NEG = 243; FF = 244; OFF = 248; T0 = 249
QA = 96; FRB = 192
sX, sY, sG, sOUT, sWS = 4, 8, 12, 16, 20
bK, bV, bMK, bMV, bQ = 24, 26, 28, 30, 32
sT, sEXIT, sW, sI, sN, sU = 34, 35, 36, 37, 38, 39
sUA = 40
sSOX, sMX, sSOY, sMY, sWX, sWY, sTX, sTY = 43, 44, 45, 46, 47, 48, 49, 79
sTP = 50
sTHR, sG_, sOMG = 52, 54, 55
sDM = 56
sRM = 64
sFM = 70
sPM = 72
sX0, sPRV = 76, 77
sNEV = 78
sRET = 80
sEI, sREC = 82, 83
sRING, sROW, sA, sB_, sC, sD = 84, 85, 86, 87, 88, 89
sCP = 90
sV0, sV1, sWE, sXK, sM0 = 92, 93, 94, 95, 96
sPV0, sPV1 = 97, 98
sST = 53
TILE = 12288
TB = 159744; WB = TB + 2176; XCH = TB
Z2G, Z1G = 6, 64
NTMOD = ""; STMOD = ""; RL0 = 40

def f32(x): return "0x%08x" % struct.unpack("<I", struct.pack("<f", x))[0]
def vr(a, n=1): return f"v{a}" if n == 1 else f"v[{a}:{a+n-1}]"
def ar(a, n=1): return f"a{a}" if n == 1 else f"a[{a}:{a+n-1}]"
def sr(a, n=1): return f"s{a}" if n == 1 else f"s[{a}:{a+n-1}]"
def FR(n): return FRB + 4 * (n % 16)
def Oreg(qb, dt): return vr(OV + 48 * qb + 4 * dt, 4) if qb < 2 else ar(48 * (qb - 2) + 4 * dt, 4)
def Qreg(qb, s): return ar(QA + 24 * qb + 4 * s, 4)
def St(p, kt, qb): return SB[p] + 16 * kt + 4 * qb
def lin(a, b, n): return [a + (b - a) * k / max(n - 1, 1) for k in range(n)]
def bc(f):
    return (vr(f, 2), (0, 0)) if f % 2 == 0 else (vr(f - 1, 2), (1, 1))
def pkmul(d, a, f):
    r, (lo, hi) = bc(f); return f"v_pk_mul_f32 {vr(d,2)}, {vr(a,2)}, {r} op_sel:[0,{lo}] op_sel_hi:[1,{hi}]"
def pkfma(d, a, f, c):
    r, (lo, hi) = bc(f); return f"v_pk_fma_f32 {vr(d,2)}, {vr(a,2)}, {r}, {vr(c,2)} op_sel:[0,{lo},0] op_sel_hi:[1,{hi},1]"


def cur_ring(c, j): return 4 if (c.w >= 2 and j >= c.n + E) else 0
def ktile(c, j):
    if j > NS - 1: return None
    if c.w >= 2 and c.n <= j < c.n + E: return None
    r = cur_ring(c, j); return (r + (j & 1), ("K", 2 * NS - 1 - j if r else j))
def vtile(c, j):
    r = cur_ring(c, j); return (r + 2 + (j & 1), ("V", 2 * NS - 1 - j if r else j))
def chan(c, ch, t):
    d = c.plan.chan[c.w >> 1][ch].get(t)
    return None if d is None else (d[2], (d[0], d[1]))
def prv(c): return 4 + 4 * (c.w & 1)
def seq_ops(T, at, step=0.001, **kw): return [Op(s, at=at + step * k, **kw) for k, s in enumerate(T)]
MF = "v_mfma_f32_16x16x32_bf16"

def qk(p, tiles, ats, czero=(), frag=None):
    ops = []; k = 0
    for (kt, qb) in tiles:
        d = vr(St(p, kt, qb), 4)
        for s in range(6):
            c = d if s else ("0" if qb in czero else vr(MN + 4 * qb, 4))
            a = frag(6 * kt + s) if frag else ar(FR(24 * p + 6 * kt + s), 4)
            ops.append(Op(f"{MF} {d}, {a}, {Qreg(qb,s)}, {c}", at=ats[k],
                          meta=dict(kt=kt, frag=lambda c, kt=kt, s=s: ("K", c.t + 1, kt, s)))); k += 1
    return ops
def pv(p, qbs, ats, czero=False):
    ops = []; k = 0
    for dt in range(12):
        for qb in qbs:
            o = Oreg(qb, dt)
            ops.append(Op(f"{MF} {o}, {ar(FR(24*p+12+dt),4)}, {vr(PB[1-p]+4*qb,4)}, {'0' if czero else o}", at=ats[k],
                          meta=dict(frag=lambda c, dt=dt: ("V", c.t, dt)))); k += 1
    return ops
def vreads(p, g0, g1):
    ops = []; at = lin(g0, g1, 24)
    for dt in range(12):
        a = FR(24 * p + 12 + dt)
        for eh in range(2):
            ops.append(Op(f"ds_read_b64_tr_b16 {ar(a+2*eh,2)}, {vr(VA+(dt&3))} offset:{p*TILE + eh*6144 + (dt>>2)*1024}",
                          at=at[2*dt+eh], tag=f"V{dt}", meta=dict(src=lambda c: vtile(c, c.t), gives=lambda c, dt=dt: ("V", c.t, dt))))
    return ops
def kreads(p, g0, g1):
    ops = []; at = lin(g0, g1, 12)
    for n in range(12):
        kt, s = n // 6, n % 6
        ops.append(Op(f"ds_read_b128 {ar(FR(24*p+24+n),4)}, {vr(KA+(s&1))} offset:{p*TILE + kt*6144 + (s>>1)*1024}",
                      at=at[n], tag=f"K{kt}", meta=dict(src=lambda c: ktile(c, c.t + 2), gives=lambda c, kt=kt, s=s: ("K", c.t + 2, kt, s))))
    return ops
def softmax(sp, tiles, at, fresh, acc=LS):
    ops = []; k = 0; fresh = set(fresh)
    for (kt, qb) in tiles:
        for r in range(4):
            t = TMP + (k % NT)
            ops.append(Op(f"v_exp_f32 {vr(t)}, {vr(St(sp,kt,qb)+r)}", at=at[k]))
            a = at[k] + 0.9
            if qb in fresh:
                if r == 1: ops.append(Op(f"v_add_f32 {vr(acc+qb)}, {vr(t-1)}, {vr(t)}", at=a)); fresh.discard(qb)
            else: ops.append(Op(f"v_add_f32 {vr(acc+qb)}, {vr(acc+qb)}, {vr(t)}", at=a))
            if r & 1: ops.append(Op(f"v_cvt_pk_bf16_f32 {vr(PB[sp]+4*qb+2*kt+(r>>1))}, {vr(t-1)}, {vr(t)}", at=a + 0.01))
            k += 1
    return ops
def duty(ch, g0, g1):
    vo, srd, so, m0 = (XV, sX, sSOX, sMX) if ch == "X" else (YV, sY, sSOY, sMY)
    ops = [Op(f"v_add_u32 {vr(vo)}, {vr(PAT)}, {vr(vo)}", at=g0, meta=dict(xadd=ch)), Op(f"v_add_u32 {vr(vo+1)}, {vr(PAT)}, {vr(vo+1)}", at=g0 + 0.01, meta=dict(xadd=ch))]
    at = lin(g0 + 2, g1, 6)
    for a in range(3):
        for rg in range(2):
            ops.append(Op(f"buffer_load_dwordx4 {vr(vo+rg)}, {sr(srd,4)}, {sr(so)} offen offset:{rg*3072+a*128} {NTMOD} lds",
                          at=at[2*a+rg], meta=dict(dma=lambda c, ch=ch: chan(c, ch, c.t), m0=f"s_add_u32 m0, {sr(m0)}, {sr(sUA+a)}")))
    return ops
def decode(ch, g0, g1):
    vo, srd, so, m0, w, tb, dv, bs = (XV, sX, sSOX, sMX, sWX, sTX, DX, bK) if ch == "X" else (YV, sY, sSOY, sMY, sWY, sTY, DY, bV)
    T = [f"v_readlane_b32 {sr(w)}, {vr(dv)}, {sr(sT)}",
         f"s_and_b32 {sr(tb)}, {sr(w)}, 0xfff",
         f"s_and_b32 {sr(m0)}, {sr(w)}, 0xff000",
         f"s_lshr_b32 {sr(so)}, {sr(w)}, 8",
         f"s_and_b32 {sr(so)}, {sr(so)}, 0xff000",
         f"s_bitcmp1_b32 {sr(w)}, 28",
         f"s_cselect_b64 {sr(sTP,2)}, {sr(bMV,2)}, {sr(bMK,2)}",
         f"s_bitcmp1_b32 {sr(w)}, 29",
         f"s_cselect_b64 {sr(srd,2)}, {sr(sTP,2)}, {sr(bs,2)}",
         f"v_add_u32 {vr(TA)}, {sr(tb)}, {vr(LTB)}",
         f"ds_read_b64 {vr(vo,2)}, {vr(TA)}"]
    at = lin(g0, g1, len(T))
    at[6] = at[5] + 0.0001; at[8] = at[7] + 0.0001
    return [Op(x, at=a, tag="TB" + ch) for x, a in zip(T, at)]
sites = []
def check(p, g, qbs=(0, 1, 2, 3)):
    k = len(sites); sites.append(p)
    ops = []
    if len(qbs) == 4:
        ops.append(Op(f"v_max3_f32 {vr(CHK)}, {vr(LS)}, {vr(LS+1)}, {vr(LS+2)}", at=g - 3))
        ops.append(Op(f"v_max_f32 {vr(CHK)}, {vr(CHK)}, {vr(LS+3)}", at=g - 2))
    else:
        ops.append(Op(f"v_max_f32 {vr(CHK)}, {vr(LS+qbs[0])}, {vr(LS+qbs[1])}", at=g - 2))
    ops.append(Op(f"v_cmp_lt_f32 vcc, {sr(sTHR)}, {vr(CHK)}", at=g - 1.5))
    ops.append(Op(f"s_cbranch_vccnz L_stub{k}", at=g + 0.1, meta=dict(site=k)))
    for j, qb in enumerate(qbs):
        ops.append(Op(f"v_add_f32 {vr(LR+qb)}, {vr(LR+qb)}, {vr(LS+qb)}", at=g + 0.2 + 0.01 * j))
    return ops
def masks(p, diag, full, at, a0=0.5):
    ops = [Op(f"v_mov_b32 {vr(NEG)}, 0xff800000", at=a0)] if diag else []
    for (kt, qb), a in zip(full, at[len(diag):]):
        for r in range(4): ops.append(Op(f"v_mov_b32 {vr(St(p,kt,qb)+r)}, 0xff800000", at=a + 0.01 * r))
    for (kt, qb), a in zip(diag, at):
        for r in range(4):
            x = vr(St(p, kt, qb) + r)
            ops.append(Op(f"v_cndmask_b32 {x}, {x}, {vr(NEG)}, {sr(sDM+2*r,2)}", at=a + 0.01 * r))
    return ops
def xlane(op, x, t, at):
    return seq_ops([f"v_mov_b32 {vr(t)}, {vr(x)}", f"v_permlane16_swap_b32 {vr(x)}, {vr(t)}", f"{op} {vr(x)}, {vr(x)}, {vr(t)}",
                    f"v_mov_b32 {vr(t)}, {vr(x)}", f"v_permlane32_swap_b32 {vr(x)}, {vr(t)}", f"{op} {vr(x)}, {vr(x)}, {vr(t)}"], at)
def initmax(sp, qb, at, x, t):
    a, b = St(sp, 0, qb), St(sp, 1, qb)
    ops = seq_ops([f"v_max3_f32 {vr(x)}, {vr(a)}, {vr(a+1)}, {vr(a+2)}", f"v_max3_f32 {vr(t)}, {vr(a+3)}, {vr(b)}, {vr(b+1)}",
                   f"v_max3_f32 {vr(x)}, {vr(x)}, {vr(b+2)}, {vr(b+3)}", f"v_max_f32 {vr(x)}, {vr(x)}, {vr(t)}"], at)
    ops += xlane("v_max_f32", x, t, at + 0.01)
    ops += seq_ops([f"v_sub_f32 {vr(r)}, {vr(r)}, {vr(x)}" for r in [a, a+1, a+2, a+3, b, b+1, b+2, b+3]], at + 0.02)
    ops += seq_ops([f"v_sub_f32 {vr(MN+4*qb+r)}, 0, {vr(x)}" for r in range(4)], at + 0.03)
    return ops
def step_inc(at): return [Op(f"s_add_u32 {sr(sT)}, {sr(sT)}, 1", at=at, meta=dict(inc=1))]
def lane(r, at): return seq_ops([f"v_mbcnt_lo_u32_b32 {vr(r)}, -1, 0", f"v_mbcnt_hi_u32_b32 {vr(r)}, -1, {vr(r)}"], at)
def nextrec(at):
    return seq_ops([f"s_add_u32 {sr(sEI)}, {sr(sEI)}, 1", f"v_readlane_b32 {sr(sREC)}, {vr(DY)}, {sr(sEI)}", f"s_and_b32 {sr(sEXIT)}, {sr(sREC)}, 0xff"], at, step=1.5)
ALLT = [(kt, qb) for kt in range(2) for qb in range(4)]
KT0 = [(0, qb) for qb in range(4)]; KT1 = [(1, qb) for qb in range(4)]
XA2 = [0.1, 1.1, 2.6, 3.6, 5.1] + lin(8.5, 39.5, 11)
XA1 = lin(48.1, 56, 4) + lin(57.5, 63, 4) + lin(67, 90, 8)

def shift(ops, k, prio=0):
    for o in ops:
        o.at += 96 * k; o.toff = k
        if prio: o.prio = prio
    return ops
def frame(p, kr=True, vr_=True, ext=0):
    z1 = Z1G + ext
    ops = [Bar("Z2", Z2G + 0.1), Bar("Z1", z1 + 0.1)]
    ops += duty("X", Z2G + 1, 60 + ext) + duty("Y", z1 + 1, 92 + ext)
    ops += decode("Y", 0.3, 52.5) + decode("X", 62 + ext, 89.5 + ext)
    if vr_: ops += vreads(p, 7.2, 55)
    if kr: ops += kreads(p, z1 + 1.2, 91.2 + ext) + [Wait("K0", 92.5 + ext)]
    ops += step_inc(92.6 + ext)
    return ops

def normal(p, tiles=ALLT, diag=(), full=(), name="", tail=None, extra=None):
    ops = frame(p)
    ats = []
    for (kt, qb) in tiles: ats += [24 * kt + 6 * qb + s for s in range(6)]
    ops += qk(p, tiles, ats) + pv(p, range(4), list(range(48, 96)))
    ops += [Wait([f"V{d}" for d in range(5)], 43.5)]
    ops += softmax(1 - p, KT1, XA2, ()) + check(p, 47) + softmax(p, KT0, XA1, range(4))
    if diag or full:
        ops += masks(p, diag, full, [24 * kt + 6 * qb + 9 for kt, qb in diag] + [24 * kt + 6 * qb for kt, qb in full])
    if tail: ops += tail
    if extra: ops += extra
    return finish(ops, name)

def place_m0(ops):
    ds = sorted([o for o in ops if "m0" in o.meta], key=lambda o: o.at)
    cur = None; prev = -1e9; new = []
    for o in ds:
        key = (o.meta["m0"], o.toff)
        if key != cur:
            s = Op(o.meta["m0"], at=max(o.at - 1.5, prev + 0.00001, o.meta.get("m0lo", -1e9)), prio=o.prio); s.toff = o.toff
            if s.at >= o.at: o.at = s.at + 0.00001
            new.append(s); cur = key
        prev = o.at
    return ops + new
def finish(ops, name, order="at"):
    ops = place_m0(ops)
    for z in [o for o in ops if getattr(o, "name", "") == "Z2"]:
        for o in ops:
            if o.toff == z.toff and (o.meta.get("kt") == 1 or o.meta.get("xadd") == "X"): o.after.append(z)
    seq, tot = schedule(ops, verbose=VERB, name=name, order=order)
    seq = auto_waits(seq)
    seq, nn = fix_hazards(seq)
    if VERB and nn: print(f"   {name}: {nn} nops inserted")
    out = []
    for o in seq:
        out.append(o)
        if "site" in o.meta: out.append(Op(f"L_back{o.meta['site']}:"))
    return out
def raw(lines): return [x if isinstance(x, Op) else Op(x) for x in lines]
def rawfin(lines):
    seq = auto_waits(raw(lines)); seq, _ = fix_hazards(seq); return seq

def qkmem(qb, k, addr, imm0, land, k0, out, rat, mat, xat, wad, wimm, src):
    ops = []
    for n in range(12):
        kt, s = n // 6, n % 6
        f = vr(land[(k0 + n) % len(land)], 4)
        ops.append(Op(f"ds_read_b128 {f}, {vr(addr+(s&1))} offset:{imm0+kt*6144+(s>>1)*1024}", at=rat[n], tag=f"E{k}_{n//3}",
                      meta=dict(src=src, gives=lambda c, n=n: ("MK", qb, n))))
        d = vr(out[kt], 4)
        ops.append(Op(f"{MF} {d}, {f}, {Qreg(qb,s)}, {d if s else '0'}", at=mat[n], meta=dict(frag=lambda c, n=n: ("MK", qb, n))))
    T = [f"v_sub_f32 {vr(out[0]+r)}, {vr(out[0]+r)}, {vr(out[1]+r)}" for r in range(4)]
    T += [f"v_cndmask_b32 {vr(out[0])}, {vr(out[0])}, {vr(out[0]+r)}, {sr(sRM+2*(r-1),2)}" for r in range(1, 4)]
    ops += seq_ops(T, xat)
    ops.append(Op(f"ds_write_b32 {vr(wad)}, {vr(out[0])} offset:{wimm}", at=xat + 0.5, meta=dict(wdst=lambda c: src(c)[1][1])))
    return ops
def lreduce(qbs, at, t):
    ops = []
    for j, qb in enumerate(qbs): ops += xlane("v_add_f32", LR + qb, t + j, at + 0.0001 * j)
    return ops
def pbuild(n, dst, woff, at, t, ent, step=0.0):
    ad, hm = t + 4 * n, t + 4 * n + 1
    ops = seq_ops([f"v_add_u32 {vr(ad)}, {sr(woff)}, {vr(VW)}"], at)
    ops += [Op(f"ds_read_b32 {vr(t+4*j)}, {vr(ad)} offset:{64*j}", at=at + 0.01 + 0.001 * j, meta=dict(nofence=1, wsrc=lambda c, j=j: ent(c, j))) for j in range(n)]
    ops += seq_ops([f"v_lshlrev_b32 {vr(hm)}, 2, {vr(VW)}", f"v_and_b32 {vr(hm)}, 16, {vr(hm)}", f"v_mov_b32 {vr(ad)}, 0xffff",
                    f"v_lshlrev_b32 {vr(hm)}, {vr(hm)}, {vr(ad)}"], at + 0.02)
    for j in range(n):
        x = t + 4 * j; d = dst + 4 * j
        T = [f"v_exp_f32 {vr(x+1)}, -|{vr(x)}|", f"v_add_f32 {vr(x+2)}, 1.0, {vr(x+1)}", f"v_rcp_f32 {vr(x+2)}, {vr(x+2)}",
             f"v_mul_f32 {vr(x+2)}, {sr(sG_)}, {vr(x+2)}", f"v_mul_f32 {vr(x+1)}, {vr(x+1)}, {vr(x+2)}",
             f"v_cvt_pk_bf16_f32 {vr(x+2)}, {vr(x+2)}, {vr(x+2)}", f"v_cvt_pk_bf16_f32 {vr(x+1)}, {vr(x+1)}, {vr(x+1)}",
             f"v_and_b32 {vr(x+2)}, {vr(hm)}, {vr(x+2)}", f"v_and_b32 {vr(x+1)}, {vr(hm)}, {vr(x+1)}"]
        ops += seq_ops(T, at + 0.03 + step * j + 0.0001 * j)
        ops += seq_ops([f"v_cmp_le_f32 vcc, 0, {vr(x)}", f"v_cndmask_b32 {vr(x)}, {vr(x+1)}, {vr(x+2)}, vcc", f"v_cndmask_b32 {vr(x+3)}, {vr(x+2)}, {vr(x+1)}, vcc",
                        f"v_cndmask_b32 {vr(d)}, 0, {vr(x)}, {sr(sPM,2)}", f"v_cndmask_b32 {vr(d+1)}, 0, {vr(x)}, {sr(sPM+2,2)}",
                        f"v_cndmask_b32 {vr(d+2)}, 0, {vr(x+3)}, {sr(sPM,2)}", f"v_cndmask_b32 {vr(d+3)}, 0, {vr(x+3)}, {sr(sPM+2,2)}"],
                       at + 0.05 + step * j + 0.001 * j, step=0.00001)
    return ops
def pvmem(acc, preg, addr, imm0, fr0, nfr, at0, at1, src, tag, needvm=None, k0=0, lead=9, nofence=0):
    ops = []; at = lin(at0, at1, 12)
    for dt in range(12):
        a = fr0 + 4 * ((k0 + dt) % nfr)
        for eh in range(2):
            ops.append(Op(f"ds_read_b64_tr_b16 {ar(a+2*eh,2)}, {vr(addr+(dt&3))} offset:{imm0 + eh*6144 + (dt>>2)*1024}",
                          at=at[dt] + 0.01 * eh, tag=tag, meta=dict(src=src, needvm=needvm, nofence=nofence, gives=lambda c, dt=dt: ("MV", tag, dt))))
        o = vr(acc + 4 * dt, 4)
        ops.append(Op(f"{MF} {o}, {ar(a,4)}, {vr(preg,4)}, {o}", at=at[dt] + lead, meta=dict(frag=lambda c, dt=dt: ("MV", tag, dt))))
    return ops
def outaddr(jw, jr, t, at):
    return lane(t, at) + seq_ops([f"v_and_b32 {vr(jw)}, 15, {vr(t)}", f"v_mul_u32_u24 {vr(jw)}, 400, {vr(jw)}", f"v_lshrrev_b32 {vr(jr)}, 4, {vr(t)}",
                                  f"v_lshl_add_u32 {vr(jw)}, {vr(jr)}, 3, {vr(jw)}", f"v_lshrrev_b32 {vr(jr)}, 3, {vr(t)}",
                                  f"v_lshl_add_u32 {vr(jr)}, {vr(jr)}, 4, {vr(OFF)}"], at + 0.01)
def outpath(acc, soff, jw, jr, imm0, at0, at1, slot, tag, after=None):
    ops = []; at = lin(at0, at0 + (at1 - at0) * 0.6, 12)
    for dt in range(12):
        x = acc + 4 * dt
        ops += seq_ops([f"v_cvt_pk_bf16_f32 {vr(x)}, {vr(x)}, {vr(x+1)}", f"v_cvt_pk_bf16_f32 {vr(x+1)}, {vr(x+2)}, {vr(x+3)}"], at[dt])
        ops.append(Op(f"ds_write_b64 {vr(jw)}, {vr(x,2)} offset:{imm0+32*dt}", at=at[dt] + 0.5, after=after,
                      meta=dict(nofence=1, hw=lambda c: (slot(c), ("ST", c.w, tag)))))
    a2 = at[-1] + 0.6; st = lin(a2 + 6, max(at1, a2 + 7), 6)
    for k in range(6):
        a, rg = k >> 1, k & 1
        ops.append(Op(f"ds_read_b128 {vr(acc+8*k,4)}, {vr(jr)} offset:{imm0+128*a+3200*rg}", at=a2 + 0.01 * k, tag=tag,
                      meta=dict(nofence=1, src=lambda c: (slot(c), ("ST", c.w, tag)))))
        ops.append(Op(f"buffer_store_dwordx4 {vr(acc+8*k,4)}, {vr(OFF)}, {sr(sOUT,4)}, {sr(soff)} offen offset:{128*a+3072*rg} {STMOD}", at=st[k], meta=dict(nofence=1)))
    return ops
def tileload(vo, m0reg, imm, at, tile, tag=None, nofence=0, m0lo=-1e9):
    ops = []; k = 0
    for nb in range(2):
        for a in range(3):
            for rg in range(2):
                ops.append(Op(f"buffer_load_dwordx4 {vr(vo+2*nb+rg)}, {sr(sG,4)}, 0 offen offset:{rg*3072+a*128} {NTG} lds", at=at[k], tag=tag,
                              meta=dict(dma=tile, nofence=nofence, m0lo=m0lo, m0=f"s_add_u32 m0, {sr(m0reg)}, {imm + nb*6144 + 896*a}"))); k += 1
    return ops
MV = 96
ACC = [OV, OV + 48, MV, MV + 48]

def evpiece(h):
    p = 1; X = 24
    ops = frame(p, ext=X)
    mem = [54 + k + (k // 2) for k in range(12)] + [74 + k + (k // 2) for k in range(12)]
    rest = [g for g in range(48, 120) if g not in mem]
    ops += qk(p, ALLT, list(range(48))) + pv(p, range(4), rest)
    ops += [Wait([f"V{d}" for d in range(5)], 43.5), Wait([f"V{d}" for d in range(5, 12)], 70.5)]
    ops += softmax(0, KT1, XA2, ()) + check(p, 47) + softmax(1, KT0, lin(80, 87, 5) + lin(91, 114, 11), range(4))
    ops += seq_ops([f"s_and_b32 {sr(sA)}, {sr(sREC)}, 0xff000", f"s_sub_u32 {sr(sA)}, {sr(sA)}, {sr(sRING)}",
                    f"s_bfe_u32 {sr(sC)}, {sr(sREC)}, 0x40014", f"s_lshl_b32 {sr(sC)}, {sr(sC)}, 6"], 10.33, step=3)
    ops += nextrec(24.33)
    ops += seq_ops([f"v_add_u32 {vr(T0)}, {sr(sA)}, {vr(KA)}", f"v_add_u32 {vr(T0+1)}, {sr(sA)}, {vr(KA+1)}", f"v_add_u32 {vr(T0+2)}, {sr(sC)}, {vr(VW)}"], 30.5, step=4)
    land = [SB[0] + 4 * k for k in range(8)]
    for k in range(2):
        mat = mem[12 * k:12 * k + 12]
        rat = [max(47.3 + 0.01 * n, m - 10.5) for n, m in enumerate(mat)]
        out = [PB[1], PB[1] + 4] if k == 0 else [FF, T0 + 3]
        ops += qkmem(2 * h + k, k, T0, k * TILE, land, 12 * k, out, rat, mat, mat[-1] + 2.2, T0 + 2, 64 * k, (lambda c, k=k: (c.rec[2] + k, ("MK", c.rec[4] + k))))
        for g in range(4): ops.append(Wait(f"E{k}_{g}", mat[3 * g] - 1.4))
    ops += [Op("s_branch L_loop0", at=119.2)]
    return finish(ops, f"EV{h}")
def ldpiece():
    V4 = T0 + 1
    ex = seq_ops([f"s_and_b32 {sr(sA)}, {sr(sREC)}, 0xff000", f"s_bfe_u32 {sr(sC)}, {sr(sREC)}, 0x40014", f"s_lshl_b32 {sr(sC)}, {sr(sC)}, 7",
                  f"s_lshl_b32 {sr(sD)}, {sr(sU)}, 6", f"s_sub_u32 {sr(sC)}, {sr(sC)}, {sr(sD)}", f"s_mov_b64 {sr(sG,2)}, {sr(bMK,2)}"], 0.33, step=1)
    ex += [Op(f"v_add_u32 {vr(T0)}, {sr(sC)}, {vr(LTB)}", at=6.5), Op(f"ds_read_b64 {vr(V4,2)}, {vr(T0)}", at=7.5, tag="LT"),
           Op(f"ds_read_b64 {vr(V4+2,2)}, {vr(T0)} offset:64", at=8.5, tag="LT"), Wait("LT", 17)]
    ex += seq_ops([f"v_add_u32 {vr(V4+k)}, {vr(PAT)}, {vr(V4+k)}" for k in range(4)], 17.5)
    at = [x + d for x in (22, 33, 50, 57, 72, 84) for d in (0, 2)]
    ex += tileload(V4, sA, 0, at, lambda c: (c.rec[2], ("MK", c.rec[4])))
    ex += nextrec(24.33)
    return normal(1, name="LD", extra=ex, tail=[Op("s_branch L_loop0", at=95.2)])
def inline_ks(h):
    land = [SB[1] + 4 * k for k in range(8)] + [PB[1] + 4 * k for k in range(4)]
    ops = seq_ops([f"s_lshl_b32 {sr(sC)}, {sr(sW)}, 8", f"v_add_u32 {vr(T0)}, {sr(sPRV)}, {vr(KA)}", f"v_add_u32 {vr(T0+1)}, {sr(sPRV)}, {vr(KA+1)}",
                   f"v_add_u32 {vr(T0+2)}, {sr(sC)}, {vr(VW)}"], 0)
    for k in range(2):
        q = 2 * h + k
        mat = [9 + 12 * k + n for n in range(12)]
        rat = [1 + 0.5 * n for n in range(12)] if k == 0 else [9.5 + n for n in range(12)]
        ops += qkmem(q, k, T0, q * TILE, land, 0, [TMP, TMP + 4] if k == 0 else [MN, MN + 4], rat, mat, mat[-1] + 2.2, T0 + 2, 64 * q,
                     (lambda c, q=q: (prv(c) + q, ("MK", 4 * c.w + q))))
    ops.append(Op("s_waitcnt lgkmcnt(0)", at=40, after=[ops[-1]]))
    return [Op("s_nop 7")] + finish(ops, f"INL{h}")

def diag2():
    p = 0
    ops = frame(p, kr=False)
    tiles = [(0, 2), (0, 3), (1, 3)]
    ops += qk(p, tiles, lin(0, 23, 12) + lin(26, 42, 6)) + pv(p, range(4), list(range(48, 96)))
    ops += [Wait([f"V{d}" for d in range(5)], 43.5)]
    ops += softmax(1, KT1, XA2, ()) + check(p, 47)
    ops += masks(p, [(0, 2), (1, 3)], [(1, 2)], [22, 50, 30])
    ops += softmax(0, tiles, lin(48.2, 88, 12), (2, 3))
    ops += [Op(f"v_mov_b32 {vr(PB[0]+8+2+k)}, 0", at=49 + k) for k in range(2)]
    ops += [Op(f"v_mov_b32 {vr(LS+k)}, 0", at=51 + k) for k in range(2)]
    return finish(ops, "DIAG2")

JW, JR = T0 + 4, T0 + 5
VORD = [0, 1, 3, 2]; STG = [1, 2, 3, 2]
def out_s(k, a0, a1, sreg, after=None):
    j = VORD[k]
    return [Op(f"s_add_u32 {sr(sreg)}, {sr(sROW)}, {j*6144}", at=a0)] + \
        outpath(ACC[j], sreg, JW, JR, STG[k] * TILE, a0, a1, (lambda c: prv(c) + STG[k]), f"O{k}", after=after)
NFIN2 = 1
def fin2(a0):
    ops = []
    for m, k in enumerate(range(4 - NFIN2, 4)): ops += out_s(k, a0 + 28 * m, a0 + 28 * m + 26, [sC, sD][m])
    return ops
def wa():
    fr = [shift(frame(1 - (k & 1), kr=False, vr_=False), k, prio=1) for k in range(3)]
    ops = fr[0] + fr[1] + fr[2]
    Z = {(o.name, o.toff): o for o in ops if o.kind == "Z"}
    for z in Z.values(): z.lg = False
    c = check(1, 2, qbs=(2, 3))
    ops += c + lreduce(range(4), 2.5, TMP)
    for j in range(4):
        ops += [Op(f"v_rcp_f32 {vr(FF+j)}, {vr(LR+j)}", at=7 + 0.1 * j), Op(f"v_mul_f32 {vr(FF+j)}, {sr(sOMG)}, {vr(FF+j)}", at=7.5 + 0.1 * j)]
    BV = SB[0]
    ops += seq_ops([f"s_lshl_b32 {sr(sA)}, {sr(sW)}, 9", f"s_lshl_b32 {sr(sC)}, {sr(sU)}, 6", f"s_sub_u32 {sr(sA)}, {sr(sA)}, {sr(sC)}",
                    f"v_add_u32 {vr(T0+3)}, {sr(sA)}, {vr(LTB)}", f"s_mov_b64 {sr(sG,2)}, {sr(bMV,2)}"], 2.3)
    for k, j in enumerate(VORD):
        for nb in range(2): ops.append(Op(f"ds_read_b64 {vr(BV+4*k+2*nb,2)}, {vr(T0+3)} offset:{j*128+nb*64}", at=2.4 + 0.001 * k, meta=dict(nofence=1)))
    for h, a in ((0, 6.5), (1, 64.5)):
        ops += [Op(f"s_bitcmp1_b32 {sr(sXK)}, {h}", at=a - 0.0002, prio=1), Op(f"s_cbranch_scc1 L_inl{h}", at=a - 0.0001, meta=dict(inl=h), prio=1)]
    ops += vreads(1, 7.2, 24) + pv(1, (2, 3), lin(16, 44, 24))
    ops += seq_ops([f"v_add_u32 {vr(BV+r)}, {vr(PAT)}, {vr(BV+r)}" for r in range(16)], 7)
    at = lin(12, 60, 24) + lin(67, 112, 24)
    for k, j in enumerate(VORD):
        ops += tileload(BV + 4 * k, sPRV, k * TILE, at[12*k:12*k+12], (lambda c, k=k, j=j: (prv(c) + k, ("MV", 4 * c.w + j))), tag=f"VS{k}", nofence=1,
                        m0lo=6.6 if k < 2 else 64.6)
    for j in range(2):
        for r in range(0, 48, 2): ops.append(Op(pkmul(OV + 48*j + r, OV + 48*j + r, FF + j), at=46 + r / 6 + 8 * j))
    ops += [Op(f"s_lshl_b32 {sr(sC)}, {sr(sW)}, 8", at=65)]
    ops += pbuild(4, MN, sC, 65.5, SB[1], lambda c, j: 4 * c.w + j, step=5)
    ops += [Op(f"s_sub_u32 {sr(sA)}, {sr(sPRV)}, {2*TILE}", at=66)]
    ops += seq_ops([f"v_add_u32 {vr(T0+k)}, {sr(sA)}, {vr(VA+k)}" for k in range(4)], 66.1)
    ops += seq_ops([f"v_add_u32 {vr(KA+k)}, {4*TILE}, {vr(KA+k)}" for k in range(6)] + [f"s_mov_b32 {sr(sRING)}, {4*TILE}"], 90)
    ops += outaddr(JW, JR, T0 + 6, 91)
    ops += seq_ops([f"v_add_u32 {vr(JW)}, {sr(sPRV)}, {vr(JW)}", f"v_add_u32 {vr(JR)}, {sr(sPRV)}, {vr(JR)}", f"v_lshlrev_b32 {vr(T0+6)}, 4, {vr(T0+6)}"], 91.1)
    for n_, r in enumerate(list(range(48, 96, 2)) + list(range(0, 48, 2))):
        a = 97 + n_ * 1.1
        ops += [Op(f"v_accvgpr_read_b32 {vr(MV+r)}, {ar(r)}", at=a), Op(f"v_accvgpr_read_b32 {vr(MV+r+1)}, {ar(r+1)}", at=a + 0.01),
                Op(pkmul(MV + r, MV + r, FF + 2 + r // 48), at=a + 1.2)]
    at = lin(114, 150, 24)
    for j in range(4):
        for h in range(2):
            k0 = 6 * j + 3 * h
            ops.append(Op(f"s_add_u32 {sr(sA)}, {sr(sB_)}, {((j^2)*6+3*h)*1024}", at=at[k0] - 0.7))
            for s in range(3):
                ops.append(Op(f"buffer_load_dwordx4 {Qreg(j,3*h+s)}, {vr(T0+6)}, {sr(sWS,4)}, {sr(sA)} offen offset:{s*1024}", at=at[k0+s], tag="QL", meta=dict(nofence=1)))
    PM0 = 152; W = []
    for k, j in enumerate(VORD):
        a0 = PM0 + 17 * k
        ops.append(WaitVM(f"VS{k}", at=a0 - 0.5))
        ops += pvmem(ACC[j], MN + 4 * j, T0, k * TILE, 0, 24, a0, a0 + 16, (lambda c, k=k, j=j: (prv(c) + k, ("MV", 4 * c.w + j))), f"PM{k}",
                     needvm=f"VS{k}", k0=12 * k, nofence=1)
        W.append(Wait(f"PM{k}", a0 + 25)); ops.append(W[-1])
    Z[("Z2", 2)].after.append(W[0])
    O0 = PM0 + 70
    for k in range(4 - NFIN2): ops += out_s(k, O0 + 22 * k, O0 + 22 * k + 21, [sC, sD, sA][k], after=[W[STG[k]]])
    return finish(ops, "WA")
def wb():
    fr = [shift(frame(k & 1, kr=True, vr_=False), k, prio=1) for k in range(2)]
    for o in fr[1]:
        if o.tag in ("K0", "K1"): o.tag += "b"
        if o.wait: o.wait = {"K0b"}
    ops = fr[0] + fr[1] + fin2(0)
    p = 1
    tiles = [(0, 0), (0, 1), (1, 1)]
    w = WaitVM("QL", at=-1)
    q = qk(p, tiles, lin(0, 20, 18), czero=(0, 1))
    for o in q: o.after.append(w)
    x = [w] + q + masks(p, [(0, 0), (1, 1)], [(1, 0)], [10, 24, -4], a0=-5)
    x += initmax(p, 0, 14, T0, T0 + 1) + initmax(p, 1, 26, T0 + 2, T0 + 3)
    x += softmax(p, tiles, lin(36, 60, 12), (0, 1), acc=LR)
    x += seq_ops([f"v_mov_b32 {vr(PB[1]+r)}, 0" for r in (2, 3, 8, 9, 10, 11, 12, 13, 14, 15)] + [f"v_mov_b32 {vr(LR+2+k)}, 0" for k in range(2)], -10)
    ops += shift(x, 1)
    return finish(ops, "WB")
def w6():
    p = 0
    ops = frame(p)
    tiles = [(0, 2), (0, 3), (0, 0), (0, 1), (1, 3), (1, 0), (1, 1)]
    ops += qk(p, tiles, list(range(42)), czero=(2, 3)) + pv(p, range(4), list(range(48, 96)), czero=True)
    ops += [Wait([f"V{d}" for d in range(5)], 43.5)]
    ops += masks(p, [(0, 2), (1, 3)], [(1, 2)], [9, 33, 2])
    ops += initmax(p, 2, 11, T0, T0 + 1) + initmax(p, 3, 34, T0 + 2, T0 + 3)
    ops += softmax(p, KT0, XA1, range(4))
    ops += nextrec(20.33) + [Op("s_branch L_loop1", at=95.2)]
    return finish(ops, "W6")

def xch_write(at):
    T = [f"s_lshl_b32 {sr(sA)}, {sr(sW)}, 8", f"s_add_u32 {sr(sC)}, {sr(sA)}, {XCH-WB}", f"s_sub_u32 {sr(sD)}, {XCH+768}, {sr(sA)}",
         f"v_add_u32 {vr(T0+3)}, {sr(sC)}, {vr(VW)}",
         f"v_mbcnt_lo_u32_b32 {vr(T0+6)}, -1, 0", f"v_mbcnt_hi_u32_b32 {vr(T0+6)}, -1, {vr(T0+6)}",
         f"v_and_b32 {vr(T0+2)}, 15, {vr(T0+6)}", f"v_lshlrev_b32 {vr(T0+2)}, 2, {vr(T0+2)}", f"v_add_u32 {vr(T0+2)}, {sr(sD)}, {vr(T0+2)}",
         f"v_lshlrev_b32 {vr(T0+6)}, 4, {vr(T0+6)}",
         f"ds_write_b32 {vr(T0+3)}, {vr(MN+8)}", f"ds_write_b32 {vr(T0+3)}, {vr(MN+12)} offset:64",
         f"ds_write_b32 {vr(T0+3)}, {vr(LR+2)} offset:128", f"ds_write_b32 {vr(T0+3)}, {vr(LR+3)} offset:192"]
    return seq_ops(T, at)
def xch_read(at):
    t = TMP
    ops = seq_ops([f"ds_read_b32 {vr(t+k)}, {vr(T0+2)} offset:{64*k}" for k in range(4)], at)
    for j in range(2):
        m = t + 4 + 2 * j
        ops += seq_ops([f"v_min_f32 {vr(m)}, {vr(MN+4*j)}, {vr(t+j)}",
              f"v_sub_f32 {vr(FF+j)}, {vr(m)}, {vr(MN+4*j)}", f"v_sub_f32 {vr(FF+2+j)}, {vr(m)}, {vr(t+j)}",
              f"v_exp_f32 {vr(FF+j)}, {vr(FF+j)}", f"v_exp_f32 {vr(FF+2+j)}, {vr(FF+2+j)}",
              f"v_mul_f32 {vr(m)}, {vr(FF+j)}, {vr(LR+j)}", f"v_fma_f32 {vr(m)}, {vr(FF+2+j)}, {vr(t+2+j)}, {vr(m)}",
              f"v_rcp_f32 {vr(m)}, {vr(m)}", f"v_mul_f32 {vr(m)}, {sr(sOMG)}, {vr(m)}",
              f"v_mul_f32 {vr(FF+j)}, {vr(FF+j)}, {vr(m)}", f"v_mul_f32 {vr(FF+2+j)}, {vr(FF+2+j)}, {vr(m)}"], at + 0.1 + 0.0001 * j)
    return ops
PM = PB[0]
FA = PB[0] + 8
def send(j, areg, at, after=None):
    return [Op(f"ds_write_b128 {vr(areg)}, {ar(48*j+4*dt,4)} offset:{1024*dt}", at=at[dt], after=after,
               meta=dict(hw=lambda c: (c.plan.xs(c.w, j), ("XO", c.w, j)), slack=0)) for dt in range(12)]
def last(kind):
    p = 0
    g = 26
    ops = [Bar("Z2", 4), Bar("Z1", g + 16)] + duty("X", 4.5, 20)
    if kind != "x": ops += vreads(p, 4.5, 23)
    if kind == "n": ops += softmax(1, KT1, lin(0, g - 5, 16), ()) + check(p, g)
    if kind == "2": ops += seq_ops([f"v_mov_b32 {vr(MN+r)}, {f32(1e30)}" for r in (8, 12)], 1)
    if kind == "x":
        ops += fin2(0)
        ops += seq_ops([f"v_mov_b32 {vr(MN+r)}, {f32(1e30)}" for r in (0, 4, 8, 12)] + [f"v_mov_b32 {vr(LR+r)}, 0" for r in range(4)], 1)
    else:
        ops += lreduce([2, 3, 0, 1], g + 0.5, TMP)
        ops += pv(p, (2, 3), lin(g + 1, g + 24, 24), czero=(kind == "2")) + pv(p, (0, 1), lin(g + 25, g + 60, 24), czero=(kind == "2"))
    ops += xch_write(g + 3)
    ops += pbuild(2, PM, sWE, g + 8, SB[1] + 16, lambda c, j: c.plan.vl(c.w, j)[1][1])
    ops += xch_read(g + 16.5)
    ops += [Op(f"v_add_u32 {vr(T0)}, {sr(sX0)}, {vr(T0+6)}", at=g + 17), Op(f"v_add_u32 {vr(T0+1)}, {sr(sV0)}, {vr(T0+6)}", at=g + 17)]
    ops += send(0, T0, lin(g + 26.5, g + 59, 12))
    for j, s in enumerate((sV0, sV1)):
        ops += seq_ops([f"s_sub_u32 {sr(sA)}, {sr(s)}, {sr(sRING)}", f"s_sub_u32 {sr(sA)}, {sr(sA)}, {2*TILE}"] +
                       [f"v_add_u32 {vr(FA+4*j+k)}, {sr(sA)}, {vr(VA+k)}" for k in range(4)], g + 18 + j)
    ops += seq_ops([f"s_sub_u32 {sr(sB_)}, 15, {sr(sI)}", f"s_mul_i32 {sr(sB_)}, {sr(sB_)}, 49152", f"s_mov_b32 {sr(sC)}, -24576",
                    f"s_cmp_lt_u32 {sr(sW)}, 2", f"s_cselect_b32 {sr(sA)}, 0, {3*24576+12288}", f"s_cselect_b32 {sr(sC)}, 24576, {sr(sC)}",
                    f"s_mul_i32 {sr(sC)}, {sr(sC)}, {sr(sW)}", f"s_add_u32 {sr(sB_)}, {sr(sB_)}, {sr(sA)}", f"s_add_u32 {sr(sB_)}, {sr(sB_)}, {sr(sC)}",
                    f"s_add_u32 {sr(sC)}, {sr(sB_)}, 6144"], g + 30)
    ops += step_inc(g + 40)
    return finish(ops, "LAST" + kind)
def final():
    pm0 = pvmem(OV, PM, FA, 0, QA, 24, 0, 6, (lambda c: c.plan.vl(c.w, 0)), "PM0", lead=14)
    ops = pm0
    for r in range(0, 48, 2): ops.append(Op(pkmul(OV + r, OV + r, FF), at=6.5))
    w = Wait("PM0", 13.5); ops.append(w)
    ops += send(1, T0 + 1, lin(14.5, 50, 12), after=[w])
    for o in ops[-12:]: o.meta["nofence"] = 1
    z3 = Bar("Z3", 13.6); ops.append(z3)
    for r in range(0, 48, 2): ops.append(Op(pkmul(OV + 48 + r, OV + 48 + r, FF + 1), at=12 + 0.01 * r))
    ops += pvmem(OV + 48, PM + 4, FA + 4, 0, QA, 24, 16, 40, (lambda c: c.plan.vl(c.w, 1)), "PM1", k0=12, lead=10)
    ops += outaddr(JW, JR, T0 + 2, 30)
    A2 = TMP
    ops += seq_ops([f"v_add_u32 {vr(A2)}, {sr(sPV0)}, {vr(T0+6)}", f"v_add_u32 {vr(A2+1)}, {sr(sPV1)}, {vr(T0+6)}",
                    f"v_add_u32 {vr(A2+2)}, {sr(sPV0)}, {vr(JW)}", f"v_add_u32 {vr(A2+3)}, {sr(sPV0)}, {vr(JR)}",
                    f"v_add_u32 {vr(A2+4)}, {sr(sPV1)}, {vr(JW)}", f"v_add_u32 {vr(A2+5)}, {sr(sPV1)}, {vr(JR)}"], 31)
    z4 = Bar("Z4", 52); z4.after += [o for o in ops if o.kind == "H"]; ops.append(z4)
    land = [96 + 4 * k for k in range(16)] + [176 + 4 * k for k in range(8)]
    for j in range(2):
        for dt in range(12):
            k = 12 * j + dt; r = land[k]
            ops.append(Op(f"ds_read_b128 {vr(r,4)}, {vr(A2+j)} offset:{1024*dt}", at=53 + 0.25 * k, tag=f"XR{j}",
                          meta=dict(src=lambda c, j=j: (c.plan.xs(3 - c.w, j), ("XO", 3 - c.w, j)))))
            o = OV + 48 * j + 4 * dt
            ops += [Op(pkfma(o, r, FF + 2 + j, o), at=60 + 22 * j + 0.5 * dt), Op(pkfma(o + 2, r + 2, FF + 2 + j, o + 2), at=60 + 22 * j + 0.5 * dt)]
        w = Wait(f"XR{j}", 66 + 22 * j); ops.append(w)
        ops += outpath(OV + 48 * j, [sB_, sC][j], A2 + 2 + 2 * j, A2 + 3 + 2 * j, 0, 66.5 + 22 * j, 90 + 22 * j, (lambda c, j=j: c.plan.xs(3 - c.w, j)), f"F{j}", after=[w])
    return [Op("s_nop 7")] + finish(ops, "FINAL")

def routine(p):
    so, sn = 1 - p, p
    L = [f"L_rt{p}:", "s_nop 7"]
    x, t, al = CHK, NEG, TA
    L += [f"v_mov_b32 {vr(T0+6)}, {vr(TA)}"]
    for qb in range(4):
        a, b = St(so, 0, qb), St(so, 1, qb)
        L += [f"v_cmp_lt_f32 vcc, {sr(sTHR)}, {vr(LS+qb)}", "s_nop 1", f"s_cbranch_vccz L_rs{p}_{qb}"]
        L += [f"v_max3_f32 {vr(x)}, {vr(a)}, {vr(a+1)}, {vr(a+2)}", f"v_max3_f32 {vr(t)}, {vr(a+3)}, {vr(b)}, {vr(b+1)}",
              f"v_max3_f32 {vr(x)}, {vr(x)}, {vr(b+2)}, {vr(b+3)}", f"v_max3_f32 {vr(x)}, {vr(x)}, {vr(t)}, 0"]
        L += xlane("v_max_f32", x, t, 0)
        L += [f"v_exp_f32 {vr(al)}, -{vr(x)}"]
        for base in (a, b, St(sn, 0, qb), St(sn, 1, qb), MN + 4 * qb):
            L += [f"v_sub_f32 {vr(base+r)}, {vr(base+r)}, {vr(x)}" for r in range(4)]
        L += [f"v_mul_f32 {vr(LR+qb)}, {vr(LR+qb)}, {vr(al)}"]
        for r in range(48):
            if qb < 2: L += [f"v_mul_f32 {vr(OV+48*qb+r)}, {vr(OV+48*qb+r)}, {vr(al)}"]
            else:
                q = 48 * (qb - 2) + r
                L += [f"v_accvgpr_read_b32 {vr(t)}, {ar(q)}", f"v_mul_f32 {vr(t)}, {vr(t)}, {vr(al)}", f"v_accvgpr_write_b32 {ar(q)}, {vr(t)}"]
        L += sorted(softmax(so, [(0, qb), (1, qb)], list(range(8)), (qb,)), key=lambda o: o.at)
        L += [f"L_rs{p}_{qb}:"]
    L += [f"v_mov_b32 {vr(TA)}, {vr(T0+6)}", f"v_mov_b32 {vr(NEG)}, 0xff800000", "s_nop 1", f"s_setpc_b64 {sr(sRET,2)}"]
    return rawfin(L)

def lanemask(fn):
    m = 0
    for l in range(64):
        if fn(l & 15, l >> 4): m |= 1 << l
    return m
def smov64(r, m): return [f"s_mov_b32 {sr(r)}, 0x{m & 0xffffffff:08x}", f"s_mov_b32 {sr(r+1)}, 0x{m >> 32:08x}"]
def desc_word(d):
    if d is None: return 16 * 128 | (15 * 3) << 12 | 255 << 20
    kind, src, dest = d
    if kind in ("K", "V"): return 16 * 128 | (dest * 3) << 12 | (src * 3) << 20
    return src * 128 | (dest * 3) << 12 | (1 << 29) | ((1 << 28) if kind == "MV" else 0)
def rec_word(e):
    t, kind, sa, sb, entry = e
    return t | kind << 8 | (sa * 3) << 12 | entry << 20
def interleave(A, B):
    out = []; n = len(A)
    for k, g in enumerate(A):
        out += g; out += B[len(B) * k // n: len(B) * (k + 1) // n]
    return out

def prologue(plans):
    KB = 84
    l, c_, g_ = T0, T0 + 1, T0 + 2
    t1, t2, t3, t4 = T0 + 3, T0 + 4, T0 + 5, T0 + 6
    H = ["s_cmp_ge_u32 s2, 256", "s_cbranch_scc1 L_end",
         f"s_load_dwordx16 s[{KB}:{KB+15}], s[0:1], 0", "s_load_dwordx2 s[100:101], s[0:1], 72"]
    if STAMP: H += ["s_memtime s[60:61]", "s_memrealtime s[62:63]"]
    if DBG: H += ["s_memrealtime s[60:61]", "s_load_dwordx2 s[62:63], s[0:1], 64"]
    if PREF:
        H += ["s_getpc_b64 s[4:5]", "L_pc:", "s_bfe_u32 s6, s2, 0x40003", "s_lshl_b32 s6, s6, 12",
              f"v_lshrrev_b32 {vr(t1)}, 6, v0", f"v_and_b32 {vr(t2)}, 15, v0", f"v_lshlrev_b32 {vr(t2)}, 6, {vr(t2)}",
              f"v_lshl_add_u32 {vr(t1)}, {vr(t1)}, 10, {vr(t2)}", f"v_add_u32 {vr(t1)}, s6, {vr(t1)}",
              f"v_min_u32 {vr(t1)}, L_codeend-L_pc-4, {vr(t1)}",
              f"v_mov_b32 {vr(t4)}, s5", f"v_add_co_u32 {vr(t3)}, vcc, s4, {vr(t1)}", "s_nop 1", f"v_addc_co_u32 {vr(t4)}, vcc, 0, {vr(t4)}, vcc",
              f"global_load_dword a255, {vr(t3,2)}, off"]
    H += [f"v_lshrrev_b32 {vr(t1)}, 6, v0", f"v_and_b32 {vr(l)}, 63, v0", f"v_readfirstlane_b32 {sr(sW)}, {vr(t1)}",
          "s_and_b32 s3, s2, 7", "s_lshl_b32 s3, s3, 2", f"s_bfe_u32 {sr(sI)}, s2, 0x20003", f"s_add_u32 s3, s3, {sr(sI)}",
          f"s_lshr_b32 {sr(sI)}, s2, 5", f"s_and_b32 {sr(sU)}, {sr(sW)}, 1",
          f"v_lshrrev_b32 {vr(t2)}, 3, {vr(l)}", f"v_and_b32 {vr(t3)}, 6, {vr(t2)}", f"v_and_b32 {vr(t4)}, 7, {vr(l)}",
          f"v_xor_b32 {vr(t3)}, {vr(t3)}, {vr(t4)}", f"v_lshlrev_b32 {vr(PAT)}, 4, {vr(t3)}",
          f"v_mul_u32_u24 {vr(OFF)}, 384, {vr(t2)}", f"v_add_u32 {vr(XV)}, {vr(OFF)}, {vr(PAT)}", f"v_add_u32 {vr(XV)}, 3072, {vr(XV)}",
          f"v_lshl_add_u32 {vr(OFF)}, {vr(t4)}, 4, {vr(OFF)}",
          f"s_sub_u32 {sr(sT)}, 15, {sr(sI)}", f"s_cmp_lt_u32 {sr(sW)}, 2", f"s_cselect_b32 {sr(sT)}, {sr(sT)}, {sr(sI)}",
          f"s_lshl_b32 {sr(sT)}, {sr(sT)}, 1", f"s_add_u32 {sr(sT)}, {sr(sT)}, {sr(sU)}",
          f"s_mul_i32 {sr(sEXIT)}, s3, 786432", f"s_mul_i32 {sr(sUA)}, {sr(sW)}, 3072",
          f"s_lshl_b32 {sr(sN)}, s3, 14", f"s_lshl_b32 {sr(sSOX)}, {sr(sT)}, 9", f"s_add_u32 {sr(sN)}, {sr(sN)}, {sr(sSOX)}",
          f"v_lshl_add_u32 {vr(t1)}, {vr(l)}, 3, {sr(sN)}", f"s_lshl_b32 {sr(sN)}, s3, 1", f"v_mov_b32 {vr(t2)}, {sr(sN)}",
          f"s_mul_i32 {sr(sSOY)}, {sr(sT)}, 24576",
          f"s_mul_i32 {sr(sMY)}, {sr(sW)}, {2*TILE}", f"s_add_u32 {sr(sMY)}, {sr(sMY)}, {4*TILE}"]
    for s in (sX, sY, sG): H += [f"s_mov_b32 {sr(s+2)}, {786432+3072}", f"s_mov_b32 {sr(s+3)}, 0x20000"]
    H += ["s_waitcnt lgkmcnt(0)"]
    if STAMP: H += [f"v_mov_b32 {vr(STV)}, 0", f"v_mov_b32 {vr(STV+1)}, 0", f"v_writelane_b32 {vr(STV)}, s60, 0", f"v_writelane_b32 {vr(STV+1)}, s62, 0", f"s_mov_b32 {sr(sST)}, 1"]
    if DBG: H += [f"v_mov_b32 {vr(STV)}, s60", "s_mov_b64 s[0:1], s[62:63]"]
    def base(b, ka): return [f"s_add_u32 {sr(b)}, {sr(ka)}, {sr(sEXIT)}", f"s_addc_u32 {sr(b+1)}, {sr(ka+1)}, 0",
                             f"s_sub_u32 {sr(b)}, {sr(b)}, 3072", f"s_subb_u32 {sr(b+1)}, {sr(b+1)}, 0"]
    def tile4(srd, blk, slot, kind):
        G = []
        for a in range(3):
            G.append([f"s_add_u32 m0, {sr(sUA)}, {slot*TILE+896*a}", f"s_add_u32 {sr(sSOX)}, {sr(sUA)}, {blk*TILE}",
                      Op(f"buffer_load_dwordx4 {vr(XV)}, {sr(srd,4)}, {sr(sSOX)} offen offset:{128*a} {NTMOD} lds", meta=dict(dma=lambda c: (slot, (kind, blk))))])
        return G
    def qblk(j):
        G = []
        for a in range(3):
            for rg in range(2):
                pre = [f"s_add_u32 m0, {sr(sMY)}, {j*6144+896*a}", f"s_add_u32 {sr(sSOX)}, {sr(sSOY)}, {j*6144}"] if rg == 0 else []
                G.append(pre + [Op(f"buffer_load_dwordx4 {vr(XV)}, {sr(sG,4)}, {sr(sSOX)} offen offset:{rg*3072+128*a} {NTQ} lds", tag=f"Q{j}",
                                   meta=dict(dma=lambda c: (4 + 2 * c.w + (j >> 1), ("Q", c.w, j)), cnt=6))])
        return G
    H += base(sG, KB)
    for g in qblk(0): H += g
    H += [f"global_load_dwordx2 {vr(YV,2)}, {vr(t1)}, {sr(KB+10,2)}", f"global_load_ushort {vr(CHK)}, {vr(t2)}, {sr(KB+12,2)}"]
    H += base(bK, KB + 2) + [f"s_mov_b64 {sr(sX,2)}, {sr(bK,2)}"]
    for g in tile4(sX, 0, 12, "K"): H += g
    H += base(bV, KB + 4) + [f"s_mov_b64 {sr(sY,2)}, {sr(bV,2)}"] + base(bMK, KB + 6) + base(bMV, KB + 8)
    H += [f"s_add_u32 {sr(sOUT)}, {sr(KB+14)}, {sr(sEXIT)}", f"s_addc_u32 {sr(sOUT+1)}, {sr(KB+15)}, 0", f"s_mov_b32 {sr(sOUT+2)}, 786432", f"s_mov_b32 {sr(sOUT+3)}, 0x20000",
          f"s_mul_i32 {sr(sN)}, s2, 49152", f"s_add_u32 {sr(sN)}, {sr(sN)}, 0x1000000", f"s_add_u32 {sr(sWS)}, s100, {sr(sN)}", f"s_addc_u32 {sr(sWS+1)}, s101, 0",
          f"s_mov_b32 {sr(sWS+2)}, 49152", f"s_mov_b32 {sr(sWS+3)}, 0x20000"]
    A = [f"v_and_b32 {vr(c_)}, 15, {vr(l)}", f"v_lshrrev_b32 {vr(g_)}, 4, {vr(l)}",
         f"v_lshrrev_b32 {vr(t1)}, 3, {vr(c_)}", f"v_mul_u32_u24 {vr(t1)}, 3072, {vr(t1)}", f"v_and_b32 {vr(t2)}, 7, {vr(c_)}",
         f"v_lshl_add_u32 {vr(t1)}, {vr(t2)}, 7, {vr(t1)}", f"v_and_b32 {vr(t3)}, 6, {vr(c_)}"]
    for j in range(2): A += [f"v_or_b32 {vr(t2)}, {4*j}, {vr(g_)}", f"v_xor_b32 {vr(t2)}, {vr(t2)}, {vr(t3)}", f"v_lshl_add_u32 {vr(KA+j)}, {vr(t2)}, 4, {vr(t1)}"]
    A += [f"v_bfe_u32 {vr(t2)}, {vr(l)}, 2, 3", f"v_lshrrev_b32 {vr(t1)}, 5, {vr(l)}", f"v_mul_u32_u24 {vr(t1)}, 3072, {vr(t1)}",
          f"v_lshl_add_u32 {vr(t1)}, {vr(t2)}, 7, {vr(t1)}", f"v_and_b32 {vr(t3)}, 1, {vr(l)}", f"v_lshl_add_u32 {vr(t1)}, {vr(t3)}, 3, {vr(t1)}",
          f"v_add_u32 {vr(t1)}, {2*TILE}, {vr(t1)}", f"v_and_b32 {vr(t2)}, 6, {vr(t2)}", f"v_bfe_u32 {vr(t3)}, {vr(l)}, 1, 1"]
    for x in range(4): A += [f"v_or_b32 {vr(t4)}, {2*x}, {vr(t3)}", f"v_xor_b32 {vr(t4)}, {vr(t4)}, {vr(t2)}", f"v_lshl_add_u32 {vr(VA+x)}, {vr(t4)}, 4, {vr(t1)}"]
    A += [f"v_lshrrev_b32 {vr(t1)}, 3, {vr(l)}", f"s_lshl_b32 {sr(sN)}, {sr(sU)}, 6", f"s_add_u32 {sr(sN)}, {sr(sN)}, {TB}", f"v_lshl_add_u32 {vr(LTB)}, {vr(t1)}, 3, {sr(sN)}",
          f"v_lshlrev_b32 {vr(t1)}, 2, {vr(c_)}", f"v_add_u32 {vr(t1)}, {WB}, {vr(t1)}", f"v_lshrrev_b32 {vr(t2)}, 2, {vr(c_)}", f"v_mov_b32 {vr(VW)}, 0x40000",
          f"v_cmp_eq_u32 vcc, {vr(t2)}, {vr(g_)}", f"v_cndmask_b32 {vr(VW)}, {vr(VW)}, {vr(t1)}, vcc"]
    for r in range(1, 4): A += smov64(sRM + 2 * (r - 1), lanemask(lambda c, g: (c & 3) == r))
    for pp in range(2): A += smov64(sPM + 2 * pp, lanemask(lambda c, g: g == c >> 2 and ((c & 3) >> 1) == pp))
    A += [f"s_mov_b32 {sr(sTHR)}, {f32(THR)}"]
    A += [f"v_accvgpr_write_b32 {ar(r)}, 0" for r in range(96)]
    DM = []
    for r in range(4): DM += smov64(sDM + 2 * r, lanemask(lambda c, g: 4 * g + r > c))
    B0 = [f"s_lshl_b32 {sr(sN)}, {sr(sI)}, 2", f"s_add_u32 {sr(sNEV)}, {sr(sN)}, {2+E-2}",
          f"s_lshl_b32 {sr(sEI)}, {sr(sU)}, 1", f"s_add_u32 {sr(sN)}, {sr(sN)}, {sr(sEI)}", f"s_add_u32 {sr(sN)}, {sr(sN)}, 2",
          f"s_mov_b32 {sr(sWX)}, {(-3<<20) & 0xffffffff}", f"s_mov_b32 {sr(sTX)}, {desc_word(('K',2*NS-5,4))}", f"s_mov_b32 {sr(sTY)}, {desc_word(('V',2*NS-3,6))}",
          f"s_cmp_lt_u32 {sr(sW)}, 2",
          f"s_cselect_b32 {sr(sWX)}, {3<<20}, {sr(sWX)}", f"s_cselect_b32 {sr(sTX)}, {desc_word(('K',4,0))}, {sr(sTX)}",
          f"s_cselect_b32 {sr(sTY)}, {desc_word(('V',2,2))}, {sr(sTY)}", f"s_cselect_b32 {sr(sWY)}, 0, {sr(sNEV)}"] + DM + [
          f"s_lshl_b32 {sr(sEI)}, {sr(sI)}, 2", f"s_add_u32 {sr(sEI)}, {sr(sEI)}, {sr(sW)}", f"s_cmp_eq_u32 {sr(sEI)}, 2",
          f"s_cselect_b64 {sr(sFM,2)}, -1, 0"] + [f"s_cselect_b64 {sr(sDM+2*r,2)}, {sr(sDM+2*r,2)}, 0" for r in range(4)]
    B = [f"v_mul_lo_u32 {vr(t1)}, {vr(l)}, {sr(sWX)}", f"v_and_b32 {vr(t2)}, 1, {vr(l)}", f"v_mul_u32_u24 {vr(t2)}, {3<<12}, {vr(t2)}",
         f"v_add_u32 {vr(t1)}, {vr(t1)}, {vr(t2)}", f"v_add_u32 {vr(DX)}, {sr(sTX)}, {vr(t1)}", f"v_add_u32 {vr(DY)}, {sr(sTY)}, {vr(t1)}",
         f"v_mov_b32 {vr(t3)}, {desc_word(None)}",
         f"v_cmp_gt_u32 vcc, {sr(sWY)}, {vr(l)}", f"v_cndmask_b32 {vr(DY)}, {vr(DY)}, {vr(t3)}, vcc",
         f"v_cmp_lt_u32 vcc, {NS-3}, {vr(l)}", f"v_cndmask_b32 {vr(DY)}, {vr(DY)}, {vr(t3)}, vcc",
         f"v_add_u32 {vr(t2)}, 2, {vr(l)}", f"v_cmp_gt_u32 vcc, {sr(sWY)}, {vr(t2)}", f"v_cndmask_b32 {vr(DX)}, {vr(DX)}, {vr(t3)}, vcc",
         f"v_cmp_lt_u32 vcc, {NS-5}, {vr(l)}", f"v_cndmask_b32 {vr(DX)}, {vr(DX)}, {vr(t3)}, vcc"]
    B += [f"v_mov_b32 {vr(OV+r)}, 0" for r in range(48, 96)]
    B += [f"v_mov_b32 {vr(LR+r)}, 0" for r in range(4)]
    Tb = [f"v_mul_u32_u24 {vr(YV)}, 384, {vr(YV)}", f"v_mul_u32_u24 {vr(YV+1)}, 384, {vr(YV+1)}",
          f"v_bfe_u32 {vr(t1)}, {vr(l)}, 3, 1", f"v_xor_b32 {vr(t2)}, 1, {vr(t1)}", f"v_mul_u32_u24 {vr(t2)}, 3072, {vr(t2)}",
          f"v_add_u32 {vr(YV)}, {vr(YV)}, {vr(t2)}", f"v_add_u32 {vr(YV+1)}, {vr(YV+1)}, {vr(t2)}",
          f"v_and_b32 {vr(t2)}, 7, {vr(l)}", f"v_lshlrev_b32 {vr(t2)}, 3, {vr(t2)}", f"v_lshl_add_u32 {vr(t2)}, {vr(t1)}, 2, {vr(t2)}",
          f"v_lshl_add_u32 {vr(t2)}, {vr(g_)}, 7, {vr(t2)}", f"s_lshl_b32 {sr(sWX)}, {sr(sW)}, 9", f"s_add_u32 {sr(sWX)}, {sr(sWX)}, {TB}",
          f"v_add_u32 {vr(t2)}, {sr(sWX)}, {vr(t2)}", f"ds_write_b32 {vr(t2)}, {vr(YV)}", f"ds_write_b32 {vr(t2)}, {vr(YV+1)} offset:64",
          f"v_bfe_u32 {vr(t1)}, {vr(l)}, 4, 1", f"v_bfe_u32 {vr(t3)}, {vr(l)}, 1, 3", f"v_lshl_add_u32 {vr(t1)}, {vr(t1)}, 4, {vr(t3)}",
          f"v_mul_u32_u24 {vr(t1)}, 384, {vr(t1)}", f"v_add_u32 {vr(t1)}, 3072, {vr(t1)}",
          f"v_and_b32 {vr(t3)}, 31, {vr(l)}", f"v_lshlrev_b32 {vr(t3)}, 2, {vr(t3)}", f"v_add_u32 {vr(t3)}, {TB+2048}, {vr(t3)}", f"ds_write_b32 {vr(t3)}, {vr(t1)}",
          f"v_lshlrev_b32 {vr(CHK)}, 16, {vr(CHK)}", f"v_mul_f32 {vr(CHK)}, {f32(-1.4426950408889634)}, {vr(CHK)}", f"v_exp_f32 {vr(CHK)}, {vr(CHK)}",
          f"v_add_f32 {vr(CHK)}, 1.0, {vr(CHK)}", f"v_rcp_f32 {vr(CHK)}, {vr(CHK)}", f"v_cvt_pk_bf16_f32 {vr(CHK)}, {vr(CHK)}, {vr(CHK)}",
          f"v_and_b32 {vr(CHK)}, 0xffff0000, {vr(CHK)}", f"v_sub_f32 {vr(TA)}, 1.0, {vr(CHK)}", f"v_cvt_pk_bf16_f32 {vr(TA)}, {vr(TA)}, {vr(TA)}",
          f"v_and_b32 {vr(TA)}, 0xffff0000, {vr(TA)}", f"v_readfirstlane_b32 {sr(sG_)}, {vr(CHK)}", f"v_readfirstlane_b32 {sr(sOMG)}, {vr(TA)}"]
    if NOGATHER: Tb = [f"v_and_b32 {vr(YV)}, 7, {vr(YV)}", f"v_and_b32 {vr(YV+1)}, 7, {vr(YV+1)}"] + Tb
    seq = H + interleave(qblk(1) + tile4(sX, 1, 1, "K"), A) + B0 + interleave(qblk(2), B + Tb)
    cval = f32(192 ** -0.5 * 1.4426950408889634)
    seq += [f"s_mov_b32 {sr(sCP)}, {cval}", f"s_mov_b32 {sr(sCP+1)}, {cval}", f"s_mov_b32 {sr(sRING)}, 0", f"s_mov_b32 {sr(sROW)}, {sr(sSOY)}",
            f"v_add_u32 {vr(t1)}, {sr(sMY)}, {vr(KA)}", f"v_add_u32 {vr(t2)}, {sr(sMY)}, {vr(KA+1)}", f"v_lshlrev_b32 {vr(t3)}, 4, {vr(l)}",
            f"s_mul_i32 {sr(sB_)}, {sr(sW)}, 24576", f"s_mul_i32 {sr(sPRV)}, {sr(sU)}, {4*TILE}", f"s_add_u32 {sr(sPRV)}, {sr(sPRV)}, {4*TILE}"]
    main = rawfin(seq)
    blocks = {}; disp = []; disp2 = {}
    for i in range(8):
        d2 = [f"L_cfg{i}:"]
        for w in range(4):
            pl = plans[i]; Bk = [f"L_cfg{i}_{w}:"]
            for ch, dv, sh in (("X", DX, -1), ("Y", DY, 0)):
                for t, d in sorted(pl.chan[w >> 1][ch].items()):
                    if d[0] in ("MK", "MV") or (ch == "X" and t == 0):
                        Bk += [f"s_mov_b32 {sr(sC)}, {desc_word(d)}", f"v_writelane_b32 {vr(dv)}, {sr(sC)}, {(t+sh) % 64}"]
            skip = 1 if (i, w) == (0, 2) else 0
            for k, e in enumerate(pl.recs[w]):
                Bk += [f"s_mov_b32 {sr(sC)}, {rec_word(e)}", f"v_writelane_b32 {vr(DY)}, {sr(sC)}, {RL0+k+skip}"]
            r0 = 0 if (skip or not pl.recs[w]) else rec_word(pl.recs[w][0])
            Bk += [f"s_mov_b32 {sr(sREC)}, {r0}", f"s_mov_b32 {sr(sEXIT)}, {r0 & 0xff}", f"s_mov_b32 {sr(sXK)}, {pl.inl | skip << 2}", "s_branch L_cfgdone"]
            blocks[(i, w)] = raw(Bk)
            if w < 3: d2 += [f"s_cmp_eq_u32 {sr(sW)}, {w}", f"s_cbranch_scc1 L_cfg{i}_{w}"]
        d2 += [f"s_branch L_cfg{i}_3"]
        disp2[i] = raw(d2)
        if i < 7: disp += [f"s_cmp_eq_u32 {sr(sI)}, {i}", f"s_cbranch_scc1 L_cfg{i}"]
    disp += ["s_branch L_cfg7"]
    pl = plans[0]
    wsel = []
    for reg, fn in ((sV0, lambda w: pl.vl(w, 0)[0] * TILE), (sV1, lambda w: pl.vl(w, 1)[0] * TILE), (sX0, lambda w: pl.xs(w, 0) * TILE),
                    (sPV0, lambda w: pl.xs(3 - w, 0) * TILE), (sPV1, lambda w: pl.xs(3 - w, 1) * TILE), (sWE, lambda w: pl.vl(w, 0)[1][1] * 64)):
        sh = 12 if reg != sWE else 6
        pk = sum((fn(w) >> sh) << (8 * w) for w in range(4))
        wsel += [f"s_lshr_b32 {sr(reg)}, {pk}, {sr(sD)}", f"s_and_b32 {sr(reg)}, {sr(reg)}, 0xff", f"s_lshl_b32 {sr(reg)}, {sr(reg)}, {sh}"]
    def presc(j, at=None, mul="pk"):
        Z = OV + 24 * (j & 1)
        G = [WaitVM(f"Q{j}", 0)]
        for s in range(6):
            G.append(Op(f"ds_read_b128 {vr(Z+4*s,4)}, {vr(t1+(s&1))} offset:{j*6144+(s>>1)*1024}", tag=f"QR{j}",
                        meta=dict(src=lambda c: (4 + 2 * c.w + (j >> 1), ("Q", c.w, j)), needvm=f"Q{j}", cnt=6)))
        St_ = []
        for r in range(0, 24, 2):
            tq = [FF + 2 * q if (r >> 1) & 1 else LS + 2 * q for q in range(2)] if j < 2 else [PB[1] + 2 + 4 * q + 8 * ((r >> 1) & 1) for q in range(2)]
            for q in range(2): G += [f"v_lshlrev_b32 {vr(tq[q])}, 16, {vr(Z+r+q)}", f"v_and_b32 {vr(tq[q]+1)}, 0xffff0000, {vr(Z+r+q)}"]
            for q in range(2): G += [f"v_pk_mul_f32 {vr(tq[q],2)}, {vr(tq[q],2)}, {sr(sCP,2)}"]
            for q in range(2): G += [f"v_cvt_pk_bf16_f32 {vr(Z+r+q)}, {vr(tq[q])}, {vr(tq[q]+1)}"]
            for q in range(2): G += [f"v_accvgpr_write_b32 {ar(QA+24*j+r+q)}, {vr(Z+r+q)}"]
        for s in range(6):
            if s % 3 == 0: St_ += [f"s_add_u32 {sr(sA)}, {sr(sB_)}, {(6*j+s)*1024}"]
            St_ += [Op(f"buffer_store_dwordx4 {Qreg(j,s)}, {vr(t3)}, {sr(sWS,4)}, {sr(sA)} offen offset:{(s%3)*1024}", tag="QS", meta=dict(nofence=1))]
        return raw(G), raw(St_)
    (p0, s0), (p1, s1), (p2, s2), (p3, s3) = [presc(j) for j in range(4)]
    seq = ["L_cfgdone:", f"s_mov_b32 {sr(sEI)}, {RL0}", f"s_lshl_b32 {sr(sD)}, {sr(sW)}, 3"] + wsel
    seq += p0[:7] + interleave(qblk(3), p0[7:])
    seq += p1[:7] + interleave(tile4(sY, 0, 2, "V") + tile4(sX, 2, 0, "K") + tile4(sY, 1, 3, "V"), p1[7:])
    seq += [f"s_mul_i32 {sr(sUA)}, {sr(sU)}, 6144", f"s_add_u32 {sr(sUA+1)}, {sr(sUA)}, 896", f"s_add_u32 {sr(sUA+2)}, {sr(sUA)}, 1792",
            f"s_mov_b32 {sr(sT)}, 63", Bar("ZP1", 0)]
    mid = rawfin(seq)
    p = 1
    k0l = [SB[0] + 4 * k for k in range(8)] + [PB[0] + 4 * k for k in range(4)]
    ops = seq_ops([f"v_add_u32 {vr(YV+k)}, {12*TILE}, {vr(KA+k)}" for k in range(2)], 0)
    for n in range(12):
        kt, s = n // 6, n % 6
        ops.append(Op(f"ds_read_b128 {vr(k0l[n],4)}, {vr(YV+(s&1))} offset:{kt*6144+(s>>1)*1024}", at=0.1 + 0.01 * n,
                      meta=dict(src=lambda c: (12, ("K", 0)), gives=lambda c, kt=kt, s=s: ("K", 0, kt, s))))
    ops += kreads(p, 0.5, 0.9) + decode("X", 1, 1.5)
    def blk(qb, a):
        o = qk(p, [(0, qb), (1, qb)], [a + 0.01 * k for k in range(12)], czero=range(4), frag=lambda n: vr(k0l[n], 4))
        if qb == 3:
            for k, x in enumerate(o): x.at = a + 0.01 * (2 * (k % 6) + k // 6)
        if qb == 0:
            o += [Op(f"v_mov_b32 {vr(NEG)}, 0xff800000", at=a)]
            o += seq_ops([f"v_cndmask_b32 {vr(St(p,1,0)+r)}, {vr(St(p,1,0)+r)}, {vr(NEG)}, {sr(sFM,2)}" for r in range(4)], a + 0.2)
        if qb < 2: o += masks(p, [(qb, qb)], [], [a + 0.3])[1:]
        o += initmax(p, qb, a + 0.4, T0, T0 + 1) + softmax(p, [(0, qb)], [a + 0.5 + 0.01 * k for k in range(4)], (qb,))
        return o
    def atset(L, a):
        for k, o in enumerate(L): o.at = a + 0.0001 * k
        return L
    ops += blk(0, 2) + atset(s0, 2.5) + blk(1, 4) + atset(s1, 4.5) + atset(raw(DM), 5)
    ops += atset(p2, 6) + blk(2, 7) + atset(s2, 7.5) + seq_ops([f"v_mov_b32 {vr(OV+r)}, 0" for r in range(24)], 8.5)
    ops += atset(p3, 10) + blk(3, 11) + seq_ops([f"v_mov_b32 {vr(OV+24+r)}, 0" for r in range(24)], 11.15) + atset(s3, 11.2)
    for o in ops:
        if o.at >= 6: o.after.append(p2[0]) if o is not p2[0] else None
        if o.at >= 10: o.after.append(p3[0]) if o is not p3[0] else None
    p2[0].after += [o for o in ops if o.at < 6]; p3[0].after += [o for o in ops if o.at < 10]
    zp2 = Bar("ZP2", 10.05); ops.append(zp2)
    ops += seq_ops([f"s_sub_u32 {sr(sB_)}, 3, {sr(sW)}", f"s_mul_i32 {sr(sB_)}, {sr(sB_)}, 24576", f"s_mov_b32 {sr(sT)}, 0"], 13)
    q1 = finish(ops, "PRO_Q")
    V4 = T0 + 1
    i0 = [f"s_lshl_b32 {sr(sC)}, {sr(sW)}, 7", f"s_lshl_b32 {sr(sD)}, {sr(sU)}, 6", f"s_sub_u32 {sr(sC)}, {sr(sC)}, {sr(sD)}",
          f"v_add_u32 {vr(T0)}, {sr(sC)}, {vr(LTB)}", f"ds_read_b64 {vr(V4,2)}, {vr(T0)} offset:1024", f"ds_read_b64 {vr(V4+2,2)}, {vr(T0)} offset:1088",
          f"s_mov_b64 {sr(sG,2)}, {sr(bMK,2)}", f"s_mul_i32 {sr(sA)}, {sr(sW)}, {TILE}"] + [f"v_add_u32 {vr(V4+k)}, {vr(PAT)}, {vr(V4+k)}" for k in range(4)]
    i0 += sorted(place_m0(tileload(V4, sA, 4 * TILE, list(range(2, 26, 2)), lambda c: (4 + c.w, ("MK", 8 + c.w)))), key=lambda o: o.at)
    i0 += [f"s_bitcmp1_b32 {sr(sXK)}, 2", "s_cbranch_scc1 L_diag2"]
    j0 = raw([f"s_cmp_lg_u32 {sr(sI)}, 0", "s_cbranch_scc1 L_loop0"])
    return dict(main=main, disp=raw(disp), disp2=disp2, blocks=blocks, mid=mid, q1=q1, j0=j0, i0=rawfin(i0))

def stamp_ops():
    return raw(["s_memtime s[2:3]", "s_memrealtime s[0:1]", f"s_mov_b32 {sr(sM0)}, m0", "s_waitcnt lgkmcnt(0)", f"s_mov_b32 m0, {sr(sST)}",
                f"s_add_u32 {sr(sST)}, {sr(sST)}, 1", f"v_writelane_b32 {vr(STV)}, s2, m0", f"v_writelane_b32 {vr(STV+1)}, s0, m0", f"s_mov_b32 m0, {sr(sM0)}", "s_nop 0"])

def build():
    plans = [make_plan(i) for i in range(8)]
    Pc = {}
    Pc["pro"] = prologue(plans)
    Pc["loop0"] = normal(0, name="LOOP0", tail=[Op(f"s_cmp_eq_u32 {sr(sT)}, {sr(sEXIT)}", at=93), Op("s_cbranch_scc1 L_exit", at=95.2)])
    Pc["loop1"] = normal(1, name="LOOP1", tail=[Op(f"s_cmp_eq_u32 {sr(sT)}, {NS-1}", at=93), Op("s_cbranch_scc0 L_loop0", at=95.2)])
    Pc["exit"] = raw(["L_exit:", f"s_bfe_u32 {sr(sA)}, {sr(sREC)}, 0x40008", f"s_cmp_eq_u32 {sr(sA)}, {EV0}", "s_cbranch_scc1 L_ev0",
                      f"s_cmp_eq_u32 {sr(sA)}, {EV1}", "s_cbranch_scc1 L_ev1", f"s_cmp_eq_u32 {sr(sA)}, {LD}", "s_cbranch_scc1 L_ld"])
    Pc["diag1"] = normal(1, tiles=[t for t in ALLT if t != (1, 0)], diag=[(0, 0), (1, 1)], full=[(1, 0)], name="DIAG1",
                         tail=[Op(f"s_cmp_lt_u32 {sr(sW)}, 2", at=93), Op("s_cbranch_scc1 L_d1x", at=95.2)])
    Pc["diag2"] = diag2(); Pc["wa"] = wa(); Pc["wb"] = wb(); Pc["w6"] = w6()
    Pc["inl"] = [inline_ks(0), inline_ks(1)]
    Pc["ev0"] = evpiece(0); Pc["ev1"] = evpiece(1); Pc["ld"] = ldpiece()
    Pc["diag2f"] = normal(0, tiles=[(0, 2), (0, 3), (1, 3)], diag=[(0, 2), (1, 3)], full=[(0, 0), (0, 1), (1, 0), (1, 1), (1, 2)], name="DIAG2F")
    Pc["maskall"] = normal(1, tiles=[], full=ALLT, name="MASKALL", tail=[Op("s_branch L_last", at=95.2)])
    Pc["last"] = last("n"); Pc["last2"] = last("2"); Pc["lastx"] = last("x")
    Pc["final"] = final()
    Pc["rt"] = [routine(0), routine(1)]
    return plans, Pc

def layout(Pc):
    pro = Pc["pro"]
    lab = lambda x: [Op(x + ":")]
    seq = pro["main"] + pro["disp"] + pro["mid"] + pro["q1"] + (stamp_ops() if STAMP else []) + pro["j0"] + pro["i0"]
    if DBG:
        k = len(pro["main"] + pro["disp"] + pro["mid"] + pro["q1"])
        seq[k:k] = raw(["s_and_b32 s99, s2, 31", f"s_or_b32 s99, s99, {sr(sW)}", "s_memrealtime s[2:3]", "s_waitcnt lgkmcnt(0)", f"v_mov_b32 {vr(STV+1)}, s2"])
    seq += [Op(".p2align 6")] + lab("L_loop0") + Pc["loop0"] + lab("L_loop1") + Pc["loop1"]
    seq += lab("L_last") + Pc["last"] + lab("L_final") + (stamp_ops() if STAMP else []) + Pc["final"]
    if STAMP:
        seq += stamp_ops() + raw(["s_waitcnt vmcnt(0)"]) + stamp_ops()
        seq += raw([f"s_sub_u32 {sr(sA)}, {sr(sWS)}, s100", f"s_sub_u32 {sr(sA)}, {sr(sA)}, 0x1000000",
                    f"s_mul_hi_u32 {sr(sA)}, {sr(sA)}, {(1<<32)//49152+1}", f"s_lshl_b32 {sr(sA)}, {sr(sA)}, 2", f"s_add_u32 {sr(sA)}, {sr(sA)}, {sr(sW)}",
                    f"s_lshl_b32 {sr(sA)}, {sr(sA)}, 9", "v_mbcnt_lo_u32_b32 v0, -1, 0", "v_mbcnt_hi_u32_b32 v0, -1, v0", "v_lshlrev_b32 v0, 3, v0",
                    f"v_add_u32 v0, {sr(sA)}, v0", f"global_store_dwordx2 v0, {vr(STV,2)}, s[100:101]"])
    if DBG:
        seq += raw(["s_waitcnt vmcnt(0)", "s_memrealtime s[2:3]", "s_waitcnt lgkmcnt(0)", "s_cmp_lg_u32 s99, 0", "s_cbranch_scc1 L_end",
                    f"s_lshl_b32 {sr(sA)}, {sr(sI)}, 2", f"v_mov_b32 v0, {sr(sA)}", "v_mov_b32 v2, s2",
                    f"v_sub_u32 v3, v2, {vr(STV)}", f"v_sub_u32 v4, {vr(STV+1)}, {vr(STV)}", "s_mov_b64 exec, 1",
                    "global_store_dword v0, v3, s[0:1]", "global_store_dword v0, v4, s[0:1] offset:32", "s_waitcnt vmcnt(0)"])
    seq += raw(["L_end:", "s_endpgm"])
    wa_ = []
    for o in Pc["wa"]:
        wa_.append(o)
        if "inl" in o.meta: wa_ += lab(f"L_inlb{o.meta['inl']}")
    seq += Pc["exit"] + Pc["diag1"] + lab("L_diag2") + Pc["diag2"] + wa_
    seq += raw([f"s_cmp_eq_u32 {sr(sT)}, {NS-1}", "s_cbranch_scc1 L_lastx"]) + Pc["wb"]
    seq += raw([f"s_cmp_eq_u32 {sr(sT)}, {NS-1}", "s_cbranch_scc1 L_last2"]) + Pc["w6"]
    seq += lab("L_ev0") + Pc["ev0"] + lab("L_ev1") + Pc["ev1"] + lab("L_ld") + Pc["ld"]
    for h in range(2): seq += lab(f"L_inl{h}") + Pc["inl"][h] + raw([f"s_branch L_inlb{h}"])
    seq += raw(["L_d1x:", f"s_cmp_eq_u32 {sr(sT)}, {NS-1}", "s_cbranch_scc1 L_last"]) + Pc["diag2f"] + Pc["maskall"]
    seq += lab("L_lastx") + Pc["lastx"] + raw(["s_branch L_final"]) + lab("L_last2") + Pc["last2"] + raw(["s_branch L_final"])
    for i in range(8):
        seq += pro["disp2"][i]
        for w in range(4): seq += pro["blocks"][(i, w)]
    seq += lab("L_codeend")
    for k, p in enumerate(sites):
        seq += raw([f"L_stub{k}:", f"s_call_b64 {sr(sRET,2)}, L_rt{p}", f"s_branch L_back{k}"])
    seq += Pc["rt"][0] + Pc["rt"][1]
    if STAMP:
        out = []
        for o in seq:
            if getattr(o, "name", "") in STAMPZ:
                st = stamp_ops(); o.lgn = 0
                out += st[:3] + [o] + raw([f"s_cselect_b32 s99, 1, 0"]) + st[4:] + raw(["s_cmp_lg_u32 s99, 0"])
            elif "stamp" in o.meta: out += [o] + raw([f"s_cselect_b32 s99, 1, 0"]) + stamp_ops() + raw(["s_cmp_lg_u32 s99, 0"])
            else: out.append(o)
        seq = out
    return seq

HEADER = open("standalone__memory_aug_memorizing_tr__prompt.s.ref").read().split("; @launch")[0]
def text(seq):
    L = [HEADER.rstrip("\n"), "; @launch grid=(256,1,1) block=(256,1,1) lds=163840",
         '.amdgcn_target "amdgcn-amd-amdhsa--gfx950"', ".text", f".globl {KN}", ".p2align 8", f".type {KN},@function", f"{KN}:"]
    L += emit(seq)
    L += ['.section .rodata,"a"', ".p2align 6", f".amdhsa_kernel {KN}", "  .amdhsa_next_free_vgpr 512", "  .amdhsa_next_free_sgpr 102",
          "  .amdhsa_accum_offset 256", "  .amdhsa_group_segment_fixed_size 0", "  .amdhsa_kernarg_size 80", "  .amdhsa_user_sgpr_count 2",
          "  .amdhsa_user_sgpr_kernarg_segment_ptr 1", "  .amdhsa_system_sgpr_workgroup_id_x 1", ".end_amdhsa_kernel"]
    t = "\n".join(L) + "\n"
    if DBG:
        at = "\n".join(f"global_atomic_umax v0, {r}, s[0:1] offset:{4*k}" for k, r in enumerate(["v1", "v2", "v3", "v4", vr(STV), "v5", "v6"]))
        t = t.replace(".long 0\n.long 1", at)
    return t

DBG = False; NTG = ''
STAMPZ = ('Z2', 'Z3', 'Z4', 'ZP1', 'ZP2'); PREF = True; NTQ = ""; NOGATHER = False; VERB = True; STAMP = False; THR = 2.0 ** 24; STV = 224
if __name__ == "__main__":
    import argparse
    ap = argparse.ArgumentParser()
    ap.add_argument("-o", default="k.s"); ap.add_argument("--stamp", action="store_true")
    ap.add_argument("--thr", type=float, default=2.0 ** 24); ap.add_argument("-q", action="store_true")
    ap.add_argument("--nt", default=""); ap.add_argument("--st", default=""); ap.add_argument("--nogather", action="store_true")
    ap.add_argument("--nopref", action="store_true"); ap.add_argument("--ntq", default="nt")
    ap.add_argument("--dbg", action="store_true")
    ap.add_argument("--ntg", default="")
    a = ap.parse_args()
    NTG = a.ntg
    DBG = a.dbg
    PREF = not a.nopref; NTQ = a.ntq; NTMOD = a.nt; STMOD = a.st; NOGATHER = a.nogather
    STAMP = a.stamp; THR = a.thr; VERB = not a.q
    plans, Pc = build()
    import trace
    trace.analyse(plans, Pc, sites, VERB)
    open(a.o, "w").write(text(layout(Pc)))
```
